```python
import torch

def _softmax(x, axis=-1):
    return torch.softmax(x, dim=axis)
def _gelu(x):
    return torch.nn.functional.gelu(x, approximate="tanh")
def _silu(x):
    return torch.nn.functional.silu(x)
def _sigmoid(x):
    return torch.sigmoid(x)
def _layernorm(x, axis=-1, eps=1e-5):
    m = x.mean(dim=axis, keepdim=True)
    v = x.var(dim=axis, keepdim=True, unbiased=False)
    return (x - m) / torch.sqrt(v + eps)
def _scatter_add(tgt, idx, src, axis=0):
    return tgt.clone().index_add_(axis, idx, src)
def _segment_sum(src, seg, n):
    out = torch.zeros((n,) + src.shape[1:], dtype=src.dtype)
    return out.index_add_(0, seg, src)
def _pad(x, pw):
    flat = tuple(v for pair in reversed(pw) for v in pair)
    return torch.nn.functional.pad(x, flat)

kernel_name = 'standalone__mha_block_cached__near_ridge'

def setup_inputs():

    _w = (lambda a: (lambda t: t.to(torch.bfloat16) if t.is_floating_point() else t)(torch.as_tensor(a)))
    B, Sq, D = 32, 64, 576
    H, Sk, Dh = 32, 512, 128
    return {
        "x": _w((lambda *s: torch.randn(*s, dtype=torch.bfloat16) * 0.8)(B, Sq, D)),
        "k_cache": _w((lambda *s: torch.randn(*s, dtype=torch.bfloat16) * 0.8)(B, H, Sk, Dh)),
        "v_cache": _w((lambda *s: torch.randn(*s, dtype=torch.bfloat16) * 0.05)(B, H, Sk, Dh)),
        "wq": _w((lambda *s: torch.randn(*s, dtype=torch.bfloat16) * 0.8)(D, H * Dh) * (D ** -0.5)),
        "wo": _w((lambda *s: torch.randn(*s, dtype=torch.bfloat16) * 0.05)(H * Dh, D) * ((H * Dh) ** -0.5)),
    }

def reference(x, k_cache, v_cache, wq, wo):
    B, Sq, D = x.shape
    H, Dh = 32, 128
    q = (lambda x, *d: x.permute(*d))((x @ wq).reshape(B, Sq, H, Dh), 0, 2, 1, 3)
    scores = torch.einsum("bhqd,bhkd->bhqk", q, k_cache) * (Dh ** -0.5)
    p = _softmax(scores, axis=-1)
    o = torch.einsum("bhqk,bhkd->bhqd", p, v_cache)
    return (lambda x, *d: x.permute(*d))(o, 0, 2, 1, 3).reshape(B, Sq, H * Dh) @ wo
```

```python
import re

_reg = re.compile(r'^([vas])(\d+)$|^([vas])\[(\d+):(\d+)\]$')
def regs(tok):
    tok = tok.strip()
    if tok.startswith('-'): tok = tok[1:]
    if tok.startswith('abs(') and tok.endswith(')'): tok = tok[4:-1]
    m = _reg.match(tok)
    if m:
        if m.group(1):
            return [(m.group(1), int(m.group(2)))]
        return [(m.group(3), i) for i in range(int(m.group(4)), int(m.group(5)) + 1)]
    if tok == 'vcc': return [('s', 'vcc')]
    if tok == 'm0': return [('s', 'm0')]
    if tok == 'exec': return [('s', 'exec')]
    return []

TRANS = ('v_exp_f32', 'v_log_f32', 'v_rcp_f32', 'v_rsq_f32', 'v_sqrt_f32', 'v_sin_f32', 'v_cos_f32')

class Ins:
    __slots__ = ('text', 'op', 'defs', 'uses', 'kind', 'cuse', 'passes', 'states', 'store_data')
    def __init__(self, text):
        self.text = text
        t = text.split(';')[0].strip()
        self.defs = set(); self.uses = set(); self.cuse = set(); self.kind = 'other'; self.passes = 0; self.states = 1
        self.store_data = set()
        if not t or t.endswith(':') or t.startswith('.'):
            self.op = None; self.kind = 'label'; self.states = 0; return
        parts = t.split(None, 1)
        op = parts[0]; self.op = op
        ops = []
        if len(parts) > 1:
            ops = [x.strip() for x in re.split(r',(?![^\[]*\])', parts[1])]
            if ops:
                last = ops[-1].split()
                ops = ops[:-1] + ([last[0]] if last else [])
        R = [regs(o) for o in ops]
        base = op.replace('_e32', '').replace('_e64', '')
        if base == 's_nop':
            self.kind = 'nop'; self.states = int(ops[0], 0) + 1
        elif base.startswith('v_mfma'):
            self.kind = 'mfma'
            self.defs = set(R[0]); self.uses = set(R[1]) | set(R[2]); self.cuse = set(R[3])
            self.passes = 8 if '32x32' in base else 4
        elif base.startswith('v_cmp'):
            self.kind = 'valu'; self.defs = set(R[0]); self.uses = set(sum(R[1:], []))
        elif base.startswith('v_permlane') and 'swap' in base:
            self.kind = 'permlane'; self.defs = set(R[0]) | set(R[1]); self.uses = set(self.defs)
        elif base in ('v_readfirstlane_b32', 'v_readlane_b32'):
            self.kind = 'readlane'; self.defs = set(R[0]); self.uses = set(sum(R[1:], []))
        elif base.startswith('v_'):
            self.kind = 'trans' if base in TRANS else 'valu'
            self.defs = set(R[0]); self.uses = set(sum(R[1:], []))
            if base in ('v_fmac_f32', 'v_mac_f32'): self.uses |= self.defs
            if base.startswith('v_cndmask') and len(ops) == 3: self.uses.add(('s', 'vcc'))
            if base.startswith('v_add_co') or base.startswith('v_addc_co'):
                self.defs |= set(R[1]); self.uses = set(sum(R[2:], []))
        elif base.startswith('ds_read') or base.startswith('ds_bpermute') :
            self.kind = 'dsread'; self.defs = set(R[0]); self.uses = set(sum(R[1:], []))
        elif base.startswith('ds_'):
            self.kind = 'dswrite'; self.uses = set(sum(R, []))
        elif base.startswith('buffer_load') or base.startswith('global_load'):
            if ' lds' in t and base.startswith('buffer_load'):
                self.kind = 'dma'; self.uses = set(sum(R, [])) | {('s', 'm0')}
            else:
                self.kind = 'vload'; self.defs = set(R[0]); self.uses = set(sum(R[1:], []))
        elif base.startswith('buffer_store') or base.startswith('global_store'):
            self.kind = 'vstore'; self.uses = set(sum(R, []))
            d = R[0] if base.startswith('buffer_store') else R[1]
            if len(d) >= 3: self.store_data = set(d)
        elif base.startswith('buffer_atomic') or base.startswith('global_atomic'):
            self.kind = 'vstore'; self.uses = set(sum(R, []))
            if ' sc0' in t: self.defs = set(R[0])
        elif base.startswith('s_'):
            self.kind = 'salu'
            if base.startswith('s_cmp') or base.startswith('s_cbranch') or base.startswith('s_branch') or base in ('s_barrier', 's_waitcnt', 's_endpgm', 's_sleep', 's_setprio'):
                self.uses = set(sum(R, []))
            else:
                self.defs = set(R[0]) if R else set(); self.uses = set(sum(R[1:], []))
        else:
            self.kind = 'other'

VALU_KINDS = ('valu', 'trans', 'permlane', 'readlane')
def is_v(r): return r[0] in ('v', 'a')

def need_states(prev, cur):
    n = 0
    pk, ck = prev.kind, cur.kind
    if pk in VALU_KINDS:
        vd = {r for r in prev.defs if is_v(r)}
        sd = {r for r in prev.defs if r[0] == 's'}
        if ck == 'mfma' and vd & (cur.uses | cur.cuse): n = max(n, 2)
        if ck == 'permlane' and vd & cur.uses: n = max(n, 2)
        if ck == 'readlane' and vd & cur.uses: n = max(n, 1)
        if pk == 'trans' and ck in VALU_KINDS and ck != 'trans' and vd & cur.uses: n = max(n, 1)
        if pk == 'trans' and ck == 'trans' and vd & cur.uses: n = max(n, 1)
        if sd:
            if ck in VALU_KINDS and sd & cur.uses: n = max(n, 2)
            if ck == 'readlane' and sd & cur.uses: n = max(n, 4)
            if ck in ('dma', 'vload', 'vstore') and sd & cur.uses: n = max(n, 5)
            if ck == 'salu' and sd & cur.uses: n = max(n, 4)
    if pk == 'mfma':
        P = prev.passes
        d = prev.defs
        raw = {4: 8, 8: 12}[P]; ovl = {4: 6, 8: 10}[P]; war = {4: 3, 8: 7}[P]
        if ck == 'mfma':
            if d & cur.uses: n = max(n, raw)
            if d & cur.cuse and not (cur.cuse == d): n = max(n, ovl)
            if d & cur.defs and not (cur.defs == d and cur.cuse == d) and not (d & cur.cuse):
                n = max(n, ovl)
        elif ck in VALU_KINDS:
            if d & (cur.uses | cur.defs): n = max(n, raw)
            if prev.cuse & cur.defs: n = max(n, war)
        elif ck in ('dsread', 'dswrite', 'vload', 'vstore', 'dma'):
            if d & (cur.uses | cur.defs): n = max(n, raw)
    if pk == 'salu' and ('s', 'm0') in prev.defs and ck == 'dma': n = max(n, 1)
    if pk == 'vstore' and prev.store_data and (ck in VALU_KINDS) and prev.store_data & cur.defs: n = max(n, 2)
    if pk == 'vstore' and prev.store_data and ck in ('dsread', 'vload') and prev.store_data & cur.defs: n = max(n, 1)
    return n

class Asm:
    def __init__(self):
        self.ins = []
    def __call__(self, text):
        for line in text.split('\n'):
            line = line.strip()
            if line: self.ins.append(Ins(line))
    def finalize(self, window=24):
        out = []
        nnop = 0
        for cur in self.ins:
            if cur.kind in ('label',):
                out.append(cur); continue
            need = 0; dist = 0
            k = len(out) - 1; seen = 0
            while k >= 0 and dist < window:
                p = out[k]
                if p.kind != 'label':
                    req = need_states(p, cur)
                    if req > dist: need = max(need, req - dist)
                    dist += p.states
                k -= 1
            while need > 0:
                m = min(need, 16)
                out.append(Ins(f's_nop {m-1}')); nnop += 1
                need -= m
            out.append(cur)
        self.nnop = nnop
        return '\n'.join(i.text for i in out) + '\n'
```

```python
import sys
sys.path.insert(0, 'work')
from asmlib import Asm

KNAME = "standalone__mha_block_cached__near_ridge_kernel"
MF = "v_mfma_f32_16x16x32_bf16"
SLOT = 16384
XBUF = 9 * SLOT
PART_BASE = 0

S0 = 0
QN = 128
T0 = 160; NT = 12
VK, VV = 208, 209
VWQ = 210; VWO = 214
POOL = 218
KA0, VB0, QC0, OD0 = 226, 227, 228, 229
VM, VMC = 230, 231
TMP = 232
VL16 = 240
VPART = 241
VOA = 242
AOUT = 0; AX = 144; AO = 216; AL = 248; AONE = 252
sK, sV, sWQ, sWO, sX, sWS, sOUT, sDBG = 's[4:7]', 's[8:11]', 's[12:15]', 's[16:19]', 's[20:23]', 's[24:27]', 's[28:31]', 's[32:35]'
sW, sW4K, sB, sJ = 's36', 's37', 's38', 's39'
sKV, sKVN, sWQO, sWOO, sLOOP, sC = 's40', 's41', 's42', 's43', 's44', 's45'
sODD = 's[46:47]'
sT0, sT1, sT2, sT3 = 's48', 's49', 's50', 's51'
sPB = 's52'

def vr(a, n=1): return f'v{a}' if n == 1 else f'v[{a}:{a+n-1}]'
def ar(a, n=1): return f'a{a}' if n == 1 else f'a[{a}:{a+n-1}]'

class Cfg:
    LA = 6
    kvflags = 'nt'
    wflags = ''
    xflags = ''
    ra_b128 = 8
    ra_tr = 6
    ra_o = 3
    dma_spread = True
    q_groups = 10
    stamps = False
    debug = None

class G:
    def __init__(self, cfg):
        self.c = cfg
        self.a = Asm()
        self.vm = []
        self.lg = []
        self.lgid = 0
        self.tnext = 0
        self.uid = 0
    def E(self, t): self.a(t)
    def vm_issue(self, tag): self.vm.append(tag)
    def vm_wait(self, pred):
        idx = [i for i, t in enumerate(self.vm) if pred(t)]
        if not idx: return
        last = max(idx); n = len(self.vm) - 1 - last
        n = min(n, 63)
        self.E(f's_waitcnt vmcnt({n})')
        self.vm = self.vm[len(self.vm) - n:] if n else []
    def lg_issue(self):
        self.lgid += 1; self.lg.append(self.lgid); return self.lgid
    def lg_wait(self, i):
        if i not in self.lg: return
        k = self.lg.index(i); n = len(self.lg) - 1 - k
        n = min(n, 15)
        self.E(f's_waitcnt lgkmcnt({n})')
        self.lg = self.lg[len(self.lg) - n:] if n else []
    def lg_drain(self):
        if self.lg: self.E('s_waitcnt lgkmcnt(0)'); self.lg = []

    def dma_ops(self, kind, idx, nxt, ring):
        c = self.c
        ops = []
        base = ring * SLOT
        if kind in ('K', 'V'):
            srd = sK if kind == 'K' else sV
            voff = [VK if kind == 'K' else VV] * 4
            sb = sKVN if nxt else sKV
            so = idx * SLOT; fl = c.kvflags
        elif kind == 'Q':
            srd = sWQ; voff = [VWQ + p for p in range(4)]; sb = sWQO; so = idx * 64 * 8192; fl = c.wflags
        else:
            srd = sWO; voff = [VWO + p for p in range(4)]; sb = sWOO; so = idx * 128; fl = c.wflags
        tag = (kind, idx, nxt)
        st = sT0 if (self.uid & 1) == 0 else sT1
        self.uid += 1
        def setup():
            self.E(f's_add_u32 m0, {sW4K}, {base}')
            self.E(f's_add_u32 {st}, {sb}, {so}')
        def piece(p):
            def f():
                if p == 0: setup()
                off = f' offset:{p*1024}' if p else ''
                self.E(f'buffer_load_dwordx4 {vr(voff[p])}, {srd}, {st} offen{off} {fl} lds'.replace('  ', ' '))
                self.vm_issue(tag)
            return f
        return [piece(p) for p in range(4)]

    def stream(self, items, ra):
        n = len(items)
        rp = 0
        tre = [None] * n; last = [None] * n
        def issue(i):
            it = items[i]
            if it.get('pre'): it['pre']()
            if it.get('reads'):
                t = T0 + 4 * (self.tnext % NT); self.tnext += 1
                tre[i] = t
                for k, (tmpl, w) in enumerate(it['reads']):
                    d = t + (2 * k if w == 2 else 0)
                    self.E(tmpl.format(d=vr(d, w)))
                    last[i] = self.lg_issue()
                    if it.get('slotid') is not None: self.slot_last_read[it['slotid']] = last[i]
        for m in range(n):
            while rp < n and rp <= m + ra:
                issue(rp); rp += 1
            it = items[m]
            if it.get('need'): it['need']()
            if last[m] is not None: self.lg_wait(last[m])
            for f in it['mf']:
                self.E(f(tre[m]))
            for f in it.get('fill', []):
                if callable(f): f()
                else: self.E(f)

    def slot_sync(self, sid, tag, issue_next, extra=None):
        lr = self.slot_last_read.get(sid - 2)
        if lr is not None: self.lg_wait(lr)
        if extra: extra()
        self.vm_wait(lambda t: t == tag)
        self.E('s_barrier')
        self.pending_dma = list(self.pending_dma) + (self.dma_ops(*issue_next) if issue_next else [])
        if not self.c.dma_spread: self.flush_dma()
    def flush_dma(self, k=99):
        while self.pending_dma and k > 0:
            self.pending_dma.pop(0)(); k -= 1

RING_K = list(range(8)); RING_Q = [8] + list(range(8)); RING_V = list(range(8)); RING_O = [8] + list(range(8))
def ring_of(kind, idx): return {'K': RING_K, 'Q': RING_Q, 'V': RING_V, 'O': RING_O}[kind][idx]

def build(cfg):
    g = G(cfg); E = g.E; c = cfg
    g.slot_last_read = {}; g.pending_dma = []
    LA = c.LA
    if c.stamps: E('s_memrealtime s[60:61]')
    E(f's_cmp_ge_u32 s2, 256')
    E(f's_cbranch_scc1 L_done')
    E('s_load_dwordx2 s[20:21], s[0:1], 0')
    E('s_load_dwordx2 s[4:5], s[0:1], 8')
    E('s_load_dwordx2 s[8:9], s[0:1], 16')
    E('s_load_dwordx2 s[12:13], s[0:1], 24')
    E('s_load_dwordx2 s[16:17], s[0:1], 32')
    E('s_load_dwordx2 s[28:29], s[0:1], 40')
    E('s_load_dwordx2 s[32:33], s[0:1], 48')
    E('s_load_dwordx2 s[24:25], s[0:1], 56')
    L, C_, G_, RR, CC, E_, POS, X, Y = 100, 101, 102, 103, 104, 105, 106, 107, 108
    E(f'v_and_b32 v{L}, 63, v0')
    E(f'v_lshrrev_b32 v{X}, 6, v0')
    E(f'v_readfirstlane_b32 {sW}, v{X}')
    E(f'v_and_b32 v{C_}, 15, v{L}')
    E(f'v_lshrrev_b32 v{G_}, 4, v{L}')
    E(f'v_lshrrev_b32 v{RR}, 2, v{L}')
    E(f'v_and_b32 v{RR}, 3, v{RR}')
    E(f'v_and_b32 v{CC}, 3, v{L}')
    E(f's_lshl_b32 {sW4K}, {sW}, 12')
    E(f's_and_b32 {sJ}, s2, 7')
    E(f's_lshr_b32 {sB}, s2, 3')
    E(f'v_lshlrev_b32 v{VL16}, 4, v{L}')
    E(f's_lshl_b32 {sT0}, {sW}, 2')
    E(f'v_add_u32 v{X}, {sT0}, v{G_}')
    E(f'v_xor_b32 v{X}, v{X}, v{C_}')
    E(f'v_lshlrev_b32 v{X}, 4, v{X}')
    E(f'v_lshl_add_u32 v{X}, v{G_}, 8, v{X}')
    E(f'v_add_u32 v{VK}, {sW4K}, v{X}')
    E(f's_and_b32 {sT1}, {sW}, 1')
    E(f's_lshl_b32 {sT1}, {sT1}, 3')
    E(f'v_lshlrev_b32 v{X}, 1, v{G_}')
    E(f'v_or_b32 v{X}, {sT1}, v{X}')
    E(f'v_xor_b32 v{X}, v{X}, v{C_}')
    E(f'v_lshlrev_b32 v{X}, 4, v{X}')
    E(f'v_lshl_add_u32 v{X}, v{G_}, 8, v{X}')
    E(f'v_add_u32 v{VV}, {sW4K}, v{X}')
    E(f'v_and_b32 v{X}, 1, v{G_}')
    E(f'v_lshrrev_b32 v{Y}, 1, v{G_}')
    E(f'v_lshl_or_b32 v{X}, v{Y}, 2, v{X}')
    E(f'v_or_b32 v{X}, {sT1}, v{X}')
    E(f'v_xor_b32 v{X}, v{X}, v{C_}')
    E(f'v_lshlrev_b32 v{X}, 4, v{X}')
    E(f'v_lshl_add_u32 v{X}, v{G_}, 13, v{X}')
    E(f's_lshl_b32 {sT2}, {sW}, 17')
    E(f'v_add_u32 v{VWQ}, {sT2}, v{X}')
    for p in range(1, 4):
        E(f'v_add_u32 v{VWQ+p}, {p*(32768-1024)}, v{VWQ}')
    E(f'v_lshrrev_b32 v{X}, 3, v{L}')
    E(f'v_and_b32 v{Y}, 6, v{X}')
    E(f'v_and_b32 v{POS}, 7, v{L}')
    E(f'v_xor_b32 v{Y}, v{Y}, v{POS}')
    E(f'v_lshlrev_b32 v{Y}, 4, v{Y}')
    E(f'v_mul_u32_u24 v{X}, 1152, v{X}')
    E(f'v_add_u32 v{X}, v{X}, v{Y}')
    E(f's_mul_i32 {sT2}, {sW}, {32*1152}')
    E(f'v_add_u32 v{VWO}, {sT2}, v{X}')
    for p in range(1, 4):
        E(f'v_add_u32 v{VWO+p}, {p*(8*1152-1024)}, v{VWO}')
    E(f'v_lshrrev_b32 v{X}, 2, v{C_}')
    E(f'v_lshlrev_b32 v{X}, 12, v{X}')
    E(f'v_and_b32 v{Y}, 3, v{C_}')
    E(f'v_lshl_add_u32 v{X}, v{Y}, 8, v{X}')
    E(f'v_xor_b32 v{Y}, v{G_}, v{C_}')
    E(f'v_lshl_add_u32 v{KA0}, v{Y}, 4, v{X}')
    ROWP = 109
    E(f'v_lshlrev_b32 v{ROWP}, 4, v{G_}')
    E(f'v_add_u32 v{ROWP}, v{ROWP}, v{RR}')
    E(f'v_lshlrev_b32 v{ROWP}, 8, v{ROWP}')
    G1 = 110
    E(f'v_and_b32 v{G1}, 1, v{G_}')
    E(f'v_lshlrev_b32 v{G1}, 3, v{G1}')
    C1 = 111
    E(f'v_and_b32 v{C1}, 1, v{CC}')
    E(f'v_lshlrev_b32 v{C1}, 3, v{C1}')
    E(f'v_lshl_or_b32 v{X}, v{RR}, 1, v{G1}')
    E(f'v_lshrrev_b32 v{Y}, 1, v{CC}')
    E(f'v_xor_b32 v{X}, v{X}, v{Y}')
    E(f'v_lshl_add_u32 v{X}, v{X}, 4, v{C1}')
    E(f'v_add_u32 v{VB0}, v{ROWP}, v{X}')
    E(f'v_and_b32 v{X}, 1, v{RR}')
    E(f'v_lshrrev_b32 v{Y}, 1, v{RR}')
    E(f'v_lshl_or_b32 v{X}, v{Y}, 2, v{X}')
    E(f'v_or_b32 v{X}, v{X}, v{G1}')
    E(f'v_xor_b32 v{X}, v{X}, v{CC}')
    E(f'v_lshl_add_u32 v{X}, v{X}, 4, v{C1}')
    E(f'v_add_u32 v{QC0}, v{ROWP}, v{X}')
    E(f'v_lshrrev_b32 v{X}, 1, v{RR}')
    E(f'v_lshlrev_b32 v{X}, 1, v{X}')
    E(f'v_lshrrev_b32 v{Y}, 1, v{G1}')
    E(f'v_or_b32 v{X}, v{X}, v{Y}')
    E(f'v_lshrrev_b32 v{Y}, 1, v{CC}')
    E(f's_lshl_b32 {sT2}, {sW}, 1')
    E(f'v_add_u32 v{Y}, {sT2}, v{Y}')
    E(f'v_xor_b32 v{X}, v{X}, v{Y}')
    E(f'v_lshl_add_u32 v{X}, v{X}, 4, v{C1}')
    E(f'v_lshlrev_b32 v{Y}, 2, v{G_}')
    E(f'v_add_u32 v{Y}, v{Y}, v{RR}')
    E(f'v_lshl_add_u32 v{OD0}, v{Y}, 7, v{X}')
    E(f'v_and_b32 v{X}, 1, v{G_}')
    E(f'v_cmp_eq_u32 {sODD}, 1, v{X}')
    VX = 112
    E(f's_lshl_b32 {sT2}, {sB}, 6')
    E(f's_lshl_b32 {sT3}, {sW}, 4')
    E(f's_add_u32 {sT2}, {sT2}, {sT3}')
    E(f'v_add_u32 v{X}, {sT2}, v{C_}')
    E(f'v_mul_u32_u24 v{X}, 1152, v{X}')
    E(f'v_lshl_add_u32 v{VX}, v{G_}, 5, v{X}')
    E(f's_lshl_b32 {sT2}, {sW}, 10')
    E(f'v_add_u32 v{VPART}, {sT2}, v{VL16}')
    E(f'v_mul_u32_u24 v243, 1152, v{C_}')
    E(f'v_lshl_add_u32 v243, v{G_}, 3, v243')
    E(f's_lshl_b32 {sKV}, {sB}, 5')
    E(f's_lshl_b32 {sT2}, {sJ}, 2')
    E(f's_add_u32 {sKV}, {sKV}, {sT2}')
    E(f's_lshl_b32 {sKV}, {sKV}, 17')
    E(f's_mov_b32 {sKVN}, {sKV}')
    E(f's_lshl_b32 {sWQO}, {sJ}, 10')
    E(f's_mul_i32 {sWOO}, {sJ}, {4*128*1152}')
    E(f's_mov_b32 {sC}, {hex(0x3e0293ee)}')
    import struct, math
    cval = struct.unpack('<I', struct.pack('<f', (128 ** -0.5) * math.log2(math.e)))[0]
    g.a.ins[-1].text = f's_mov_b32 {sC}, {hex(cval)}'
    E(f's_lshl_b32 {sPB}, {sB}, 3')
    E(f's_add_u32 {sPB}, {sPB}, {sJ}')
    E(f's_mul_i32 {sPB}, {sPB}, {72*1024}')
    E('s_waitcnt lgkmcnt(0)')
    for base, nrec in ((4, 0x8000000), (8, 0x8000000), (12, 4718592), (16, 4718592), (20, 2359296), (24, 256*72*1024), (28, 2359296), (32, 256)):
        E(f's_mov_b32 s{base+2}, {hex(nrec)}')
        E(f's_mov_b32 s{base+3}, 0x20000')
    if c.stamps:
        E('s_mov_b32 s26, 0x20000000')
    def issue_now(kind, idx, nxt):
        for f in g.dma_ops(kind, idx, nxt, ring_of(kind, idx)): f()
    issue_now('Q', 0, False)
    for jj in range(9):
        for hs in range(2):
            E(f'buffer_load_dwordx4 {ar(AX + 4*(2*jj+hs), 4)}, v{VX}, {sX}, 0 offen offset:{128*jj+16*hs} {c.xflags}'.rstrip())
            g.vm_issue(('X', jj))
    for i in range(1, LA): issue_now('Q', i, False)
    E(f'v_mov_b32 v{TMP}, 0')
    E(f'v_mov_b32 v{TMP+1}, 0x3f803f80')
    for i in range(144): E(f'v_accvgpr_write_b32 a{AOUT+i}, v{TMP}')
    for i in range(4): E(f'v_accvgpr_write_b32 a{AONE+i}, v{TMP+1}')

    sid = [0]
    def nxt_issue(seq, p):
        q = p + LA
        if q < len(seq):
            k, i, n = seq[q]
            return (k, i, n, ring_of(k, i))
        return None

    def pool_init(pat, variants, win):
        for v, xb in enumerate(variants):
            d = POOL + v
            if xb == 0:
                if win: E(f'v_add_u32 v{d}, {win*65536}, v{pat}')
                else: E(f'v_mov_b32 v{d}, v{pat}')
            else:
                E(f'v_xor_b32 v{d}, {xb}, v{POOL}')

    def spread(items, first, last):
        pass

    def k_items(seq, p0, fills):
        items = []
        for j in range(8):
            ring = RING_K[j]; win, inw = ring >> 2, (ring & 3) * SLOT
            my = sid[0]; sid[0] += 1
            for u in range(4):
                T = 4 * j + u
                for s in range(4):
                    it = {'slotid': my}
                    if u == 0 and s == 0:
                        def pre(j=j, my=my, win=win, p=p0 + j):
                            g.flush_dma()
                            g.slot_sync(my, seq[p], nxt_issue(seq, p))
                            if j % 4 == 0: pool_init(KA0, [0, 64, 128, 192], win)
                        it['pre'] = pre
                    it['reads'] = [(f'ds_read_b128 {{d}}, v{POOL+s} offset:{inw + u*1024}', 4)]
                    D = vr(S0 + 4 * T, 4); B = vr(QN + 8 * s, 4)
                    it['mf'] = [lambda t, D=D, B=B, s=s: f'{MF} {D}, {vr(t,4)}, {B}, {D if s else 0}']
                    it['fill'] = []
                    if s in (1, 3) : it['fill'].append(lambda: g.flush_dma(1) if False else None)
                    if s == 2: it['fill'].append(lambda: g.flush_dma(1))
                    if s == 3 and T >= 2:
                        a = S0 + 4 * (T - 2)
                        it['fill'] += [f'v_max3_f32 v{VM}, v{a}, v{a+1}, v{VM}', f'v_max3_f32 v{VM}, v{a+2}, v{a+3}, v{VM}']
                    items.append(it)
        return items

    def q_items(seq, p0, first_fill=None):
        items = []
        for j in range(9):
            ring = RING_Q[j]; win, inw = ring >> 2, (ring & 3) * SLOT
            my = sid[0]; sid[0] += 1
            for hs in range(2):
                for s in range(4):
                    for u in range(2):
                        it = {'slotid': my}
                        if hs == 0 and s == 0 and u == 0:
                            def pre(j=j, my=my, win=win, p=p0 + j):
                                g.flush_dma()
                                g.slot_sync(my, seq[p], nxt_issue(seq, p))
                                if j in (0, 1, 5):
                                    pool_init(QC0, [0, 8, 64, 72, 128, 136, 192, 200], win)
                            it['pre'] = pre
                        v = 2 * s + u
                        it['reads'] = [(f'ds_read_b64_tr_b16 {{d}}, v{POOL+v} offset:{inw + (8*hs+4*t)*256}', 2) for t in range(2)]
                        D = vr(QN + 4 * v, 4); B = ar(AX + 4 * (2 * j + hs), 4)
                        first = (j == 0 and hs == 0)
                        it['mf'] = [lambda t, D=D, B=B, first=first: f'{MF} {D}, {vr(t,4)}, {B}, {0 if first else D}']
                        it['fill'] = []
                        if u == 1 and s in (0, 2): it['fill'].append(lambda: g.flush_dma(1))
                        items.append(it)
        return items

    def v_items(seq, p0):
        items = []
        for j in range(8):
            ring = RING_V[j]; win, inw = ring >> 2, (ring & 3) * SLOT
            my = sid[0]; sid[0] += 1
            for hf in range(2):
                uu = 2 * j + hf
                for td in range(8):
                    it = {'slotid': my, 'uu': uu, 'td': td}
                    if hf == 0 and td == 0:
                        def pre(j=j, my=my, win=win, p=p0 + j):
                            g.flush_dma()
                            g.slot_sync(my, seq[p], nxt_issue(seq, p))
                            if j % 4 == 0: pool_init(VB0, [i << 5 for i in range(8)], win)
                        it['pre'] = pre
                    it['reads'] = [(f'ds_read_b64_tr_b16 {{d}}, v{POOL+td} offset:{inw + (8*hf+4*t)*256}', 2) for t in range(2)]
                    D = ar(AO + 4 * td, 4); B = vr(S0 + 8 * uu, 4)
                    mf = [lambda t, D=D, B=B, uu=uu: f'{MF} {D}, {vr(t,4)}, {B}, {D if uu else 0}']
                    if td == 7:
                        DL = ar(AL, 4)
                        mf.append(lambda t, B=B, uu=uu, DL=DL: f'{MF} {DL}, {ar(AONE,4)}, {B}, {DL if uu else 0}')
                    it['mf'] = mf
                    it['fill'] = []
                    if td in (2, 5): it['fill'].append(lambda: g.flush_dma(1))
                    items.append(it)
        return items

    def o_items(seq, p0, final, extra0):
        items = []
        for j in range(9):
            ring = RING_O[j]; win, inw = ring >> 2, (ring & 3) * SLOT
            my = sid[0]; sid[0] += 1
            for s in range(4):
                it = {'slotid': my}
                if s == 0:
                    def pre(j=j, my=my, win=win, p=p0 + j):
                        g.flush_dma()
                        g.slot_sync(my, seq[p], nxt_issue(seq, p), extra=(extra0[0] if j == 0 else None))
                        if j == 0: extra0[1]()
                        if j in (0, 1, 5):
                            if win: E(f'v_add_u32 v{VOA}, {win*65536}, v{OD0}')
                            else: E(f'v_mov_b32 v{VOA}, v{OD0}')
                    it['pre'] = pre
                it['reads'] = [(f'ds_read_b64_tr_b16 {{d}}, v{VOA} offset:{inw + s*4096 + t*2048}', 2) for t in range(2)]
                mf = []
                for qt in range(4):
                    D = ar(AOUT + 4 * (4 * j + qt), 4); B = vr(S0 + 4 * (4 * s + qt), 4)
                    mf.append(lambda t, D=D, B=B: f'{MF} {D}, {vr(t,4)}, {B}, {D}')
                it['mf'] = mf
                it['fill'] = [lambda: g.flush_dma(1)]
                items.append(it)
        return items

    def exp_group(uu):
        b = S0 + 8 * uu
        L_ = [f'v_fma_f32 v{b+i}, v{b+i}, {sC}, -v{VMC}' for i in range(8)]
        L_ += [f'v_exp_f32 v{b+i}, v{b+i}' for i in range(8)]
        L_ += [f'v_cvt_pk_bf16_f32 v{b+i}, v{b+2*i}, v{b+2*i+1}' for i in range(4)]
        return L_
    def max_finish():
        L_ = []
        for T in (30, 31):
            a = S0 + 4 * T
            L_ += [f'v_max3_f32 v{VM}, v{a}, v{a+1}, v{VM}', f'v_max3_f32 v{VM}, v{a+2}, v{a+3}, v{VM}']
        L_ += [f'v_mov_b32 v{TMP}, v{VM}', f'v_permlane32_swap_b32 v{VM}, v{TMP}', f'v_max_f32 v{VM}, v{VM}, v{TMP}',
               f'v_mov_b32 v{TMP}, v{VM}', f'v_permlane16_swap_b32 v{VM}, v{TMP}', f'v_max_f32 v{VM}, v{VM}, v{TMP}',
               f'v_mul_f32 v{VMC}, {sC}, v{VM}']
        return L_
    def q_finalize():
        L_ = []
        for s in range(4):
            a = QN + 8 * s; t = TMP + 4 * (s & 1)
            L_ += [f'v_cvt_pk_bf16_f32 v{t}, v{a}, v{a+1}', f'v_cvt_pk_bf16_f32 v{t+1}, v{a+2}, v{a+3}',
                   f'v_cvt_pk_bf16_f32 v{t+2}, v{a+4}, v{a+5}', f'v_cvt_pk_bf16_f32 v{t+3}, v{a+6}, v{a+7}']
            L_ += [f'v_cndmask_b32 v{a}, v{t}, v{t+2}, {sODD}', f'v_cndmask_b32 v{a+1}, v{t+1}, v{t+3}, {sODD}',
                   f'v_cndmask_b32 v{a+2}, v{t+2}, v{t}, {sODD}', f'v_cndmask_b32 v{a+3}, v{t+3}, v{t+1}, {sODD}']
        return L_
    def distribute(items, fillers, lo, hi):
        n = hi - lo
        if n <= 0 or not fillers: return
        for k, f in enumerate(fillers):
            i = lo + (k * n) // len(fillers)
            items[i]['fill'].append(f)

    def o_finalize():
        tl = 64
        E(f'v_accvgpr_read_b32 v{tl}, a{AL}')
        E(f'v_rcp_f32 v{tl}, v{tl}')
        for s in range(4):
            t = 72 + 12 * s
            for i in range(8): E(f'v_accvgpr_read_b32 v{t+i}, a{AO + 8*s + i}')
            for i in range(8): E(f'v_mul_f32 v{t+i}, v{t+i}, v{tl}')
            for i in range(4): E(f'v_cvt_pk_bf16_f32 v{t+8+i}, v{t+2*i}, v{t+2*i+1}')
            E(f'v_add_u32 v{TMP}, {XBUF + s*4096}, v{VPART}') if s == 0 else None
            E(f'ds_write_b128 v{TMP}, {vr(t+8,4)} offset:{s*4096}')
            g.lg_issue()
    def o_load_frags():
        E(f'v_add_u32 v{TMP}, {XBUF}, v{VL16}')
        for i in range(16):
            E(f'ds_read_b128 {vr(S0+4*i,4)}, v{TMP} offset:{i*1024}')
            g.o_frag_last = g.lg_issue()

    body_seq = [('K', i, False) for i in range(8)] + [('Q', i, False) for i in range(9)] + [('V', i, False) for i in range(8)] + [('O', i, False) for i in range(9)]
    pro_seq = [('Q', i, False) for i in range(9)] + [('K', i, True) for i in range(8)]
    items = q_items(pro_seq, 0)
    def xwait(): g.vm_wait(lambda t: t[0] == 'X')
    items[0]['need'] = xwait
    g.stream(items, c.ra_tr)
    g.flush_dma()
    for t in q_finalize(): E(t)
    E(f's_add_u32 {sWQO}, {sWQO}, 256')
    E(f's_add_u32 {sKVN}, {sKVN}, 131072')
    E(f's_mov_b32 {sLOOP}, 0')
    g.lg_drain()
    if c.stamps: E('s_memrealtime s[62:63]')
    assert all(t[0] == 'K' for t in g.vm[-4*LA:]), g.vm
    entry_vm = [('K', i, False) for i in range(LA) for _ in range(4)]

    def task(final):
        g.vm = list(entry_vm); g.lg = []
        g.slot_last_read = {}
        base_sid = sid[0]
        if final:
            seq = [('K', i, False) for i in range(8)] + [('V', i, False) for i in range(8)] + [('O', i, False) for i in range(9)]
        else:
            seq = body_seq + [('K', i, True) for i in range(8)]
        E(f'v_mov_b32 v{VM}, 0xff800000')
        ki = k_items(seq, 0, None)
        its = list(ki)
        groups = [exp_group(uu) for uu in range(16)]
        if not final:
            qi = q_items(seq, 8)
            fl = max_finish()
            for k, f in enumerate(fl): qi[2 + k]['fill'].append(f)
            nq = c.q_groups
            distribute(qi, sum(groups[:nq], []), 2 + len(fl) + 1, len(qi))
            vi = v_items(seq, 17)
            rest = list(range(nq, 16))
            distribute(vi, q_finalize(), 1, 16)
            for uu in rest:
                lo = max(16, 8 * (uu - (16 - nq) // 2 - 2));
            pos = 16
            for uu in rest:
                hi = 8 * uu - 2
                span = max(1, (hi - pos) // max(1, (16 - uu)) if False else 0)
            allrest = [(uu, f) for uu in rest for f in groups[uu]]
            lo, hi = 16, 8 * 15 - 4
            for k, (uu, f) in enumerate(allrest):
                i = lo + (k * (hi - lo)) // len(allrest)
                i = min(i, 8 * uu - 3)
                vi[i]['fill'].append(f)
            its = ki + qi + vi
        else:
            vi = v_items(seq, 8)
            pre_f = max_finish() + groups[0] + groups[1]
            def head(pre_f=pre_f):
                for f in pre_f: E(f)
            vi[0]['need'] = head
            allrest = [(uu, f) for uu in range(2, 16) for f in groups[uu]]
            lo, hi = 0, 8 * 14
            for k, (uu, f) in enumerate(allrest):
                i = lo + (k * (hi - lo)) // len(allrest)
                i = min(i, 8 * uu - 3)
                vi[i]['fill'].append(f)
            its = ki + vi
        g.stream(ki, c.ra_b128)
        if not final:
            g.stream(qi, c.ra_tr)
        g.stream(vi, c.ra_tr)
        g.flush_dma()
        o_finalize()
        oi = o_items(seq, 16 if final else 25, final, (lambda: g.lg_drain(), o_load_frags))
        oi[0]['need'] = lambda: g.lg_wait(g.o_frag_last)
        if final:
            def mk_store(j, h):
                def f():
                    t = 64 + 16 * ((2 * j + h) & 3)
                    for k in range(2):
                        for i in range(4): E(f'v_accvgpr_read_b32 v{t + 4*k + i}, a{AOUT + 4*(4*j + 2*h + k) + i}')
                    for i in range(4): E(f'v_cvt_pk_bf16_f32 v{t+8+i}, v{t+2*i}, v{t+2*i+1}')
                    E(f's_add_u32 {sT2}, {sPB}, {(2*j+h)*4096}')
                    E(f'buffer_store_dwordx4 {vr(t+8,4)}, v{VPART}, {sWS}, {sT2} offen sc1')
                    g.vm_issue(('ST', j, h))
                return f
            for j in range(9):
                for h in range(2):
                    tgt = 4 * j + 4 + 1 + h
                    if tgt < len(oi): oi[tgt]['fill'].append(mk_store(j, h))
                    else: oi.append({'mf': [], 'fill': [mk_store(j, h)]})
        g.stream(oi, c.ra_o)
        g.flush_dma()
        g.lg_drain()

    E('L_task:')
    task(False)
    assert g.vm[-4*LA:] == [('K', i, True) for i in range(LA) for _ in range(4)], g.vm
    E(f's_mov_b32 {sKV}, {sKVN}')
    E(f's_add_u32 {sKVN}, {sKVN}, 131072')
    E(f's_add_u32 {sWQO}, {sWQO}, 256')
    E(f's_add_u32 {sWOO}, {sWOO}, {128*1152}')
    E(f's_add_u32 {sLOOP}, {sLOOP}, 1')
    E(f's_cmp_lt_u32 {sLOOP}, 3')
    E('s_cbranch_scc1 L_task')
    if c.stamps: E('s_memrealtime s[64:65]')
    task(True)
    return g, E

def finish(g, E, c):
    E('s_waitcnt vmcnt(0)')
    if c.stamps: E('s_memrealtime s[66:67]')
    E('s_barrier')
    E(f's_lshl_b32 {sT0}, {sB}, 3')
    E(f's_cmp_lg_u32 {sW}, 0')
    E('s_cbranch_scc1 L_wait_done')
    E(f'v_mov_b32 v{TMP}, 1')
    E(f'v_mov_b32 v{TMP+1}, 0')
    E(f'v_cmp_eq_u32 vcc, 0, v{VL16}')
    E('s_and_saveexec_b64 s[54:55], vcc')
    E(f'buffer_atomic_add v{TMP}, v{TMP+1}, {sDBG}, {sT0} offen sc1')
    E('s_mov_b64 exec, s[54:55]')
    E(f's_mov_b32 {sT1}, 0')
    E('L_poll:')
    E(f'buffer_load_dword v{TMP+2}, v{TMP+1}, {sDBG}, {sT0} offen sc1')
    E('s_waitcnt vmcnt(0)')
    E(f'v_readfirstlane_b32 {sT2}, v{TMP+2}')
    E(f's_cmp_ge_u32 {sT2}, 8')
    E('s_cbranch_scc1 L_wait_done')
    E('s_sleep 2')
    E(f's_add_u32 {sT1}, {sT1}, 1')
    E(f's_cmp_lt_u32 {sT1}, 0x40000')
    E('s_cbranch_scc1 L_poll')
    E('L_wait_done:')
    E('s_barrier')
    if c.stamps: E('s_memrealtime s[68:69]')
    E(f's_mul_i32 {sT0}, {sJ}, 9')
    E(f's_add_u32 {sT0}, {sT0}, {sW}')
    E(f's_lshl_b32 {sT1}, {sB}, 3')
    E(f's_mul_i32 {sT1}, {sT1}, {72*1024}')
    def load_piece(k):
        E(f's_add_u32 {sT2}, {sT0}, {4*k}')
        E(f's_lshl_b32 {sT2}, {sT2}, 10')
        E(f's_add_u32 {sT2}, {sT2}, {sT1}')
        for src in range(8):
            E(f'buffer_load_dwordx4 {vr(32*k + 4*src, 4)}, v{VL16}, {sWS}, {sT2} offen sc1')
            if src < 7: E(f's_add_u32 {sT2}, {sT2}, {72*1024}')
    def sum_store(k):
        b = 32 * k; o = 100 + 8 * 0
        for d in range(4):
            E(f'v_lshlrev_b32 v{100+2*d}, 16, v{b+d}')
            E(f'v_and_b32 v{101+2*d}, 0xffff0000, v{b+d}')
        for src in range(1, 8):
            for d in range(4):
                E(f'v_lshlrev_b32 v{108+2*d}, 16, v{b+4*src+d}')
                E(f'v_and_b32 v{109+2*d}, 0xffff0000, v{b+4*src+d}')
            for i in range(8): E(f'v_add_f32 v{100+i}, v{100+i}, v{108+i}')
        for d in range(4): E(f'v_cvt_pk_bf16_f32 v{116+4*k+d}, v{100+2*d}, v{101+2*d}')
        E(f's_add_u32 {sT2}, {sT0}, {4*k}')
        E(f's_lshr_b32 {sT3}, {sT2}, 3')
        E(f's_lshl_b32 {sT3}, {sT3}, 2')
        E(f's_and_b32 s56, {sT2}, 3')
        E(f's_add_u32 {sT3}, {sT3}, s56')
        E(f's_lshl_b32 {sT3}, {sT3}, 5')
        E(f's_lshr_b32 s56, {sT2}, 2')
        E(f's_and_b32 s56, s56, 1')
        E(f's_lshl_b32 s56, s56, 5')
        E(f's_lshl_b32 s57, {sB}, 6')
        E(f's_add_u32 s56, s56, s57')
        E(f's_mul_i32 s56, s56, 1152')
        E(f's_add_u32 s56, s56, {sT3}')
        E(f'buffer_store_dwordx2 {vr(116+4*k,2)}, v243, {sOUT}, s56 offen')
        E(f's_add_u32 s56, s56, {16*1152}')
        E(f'buffer_store_dwordx2 {vr(118+4*k,2)}, v243, {sOUT}, s56 offen')
    load_piece(0); load_piece(1)
    E(f's_cmp_lg_u32 {sW}, 0')
    E('s_cbranch_scc1 L_two')
    load_piece(2)
    E('s_waitcnt vmcnt(0)')
    sum_store(2)
    E('L_two:')
    E('s_waitcnt vmcnt(0)')
    sum_store(0)
    sum_store(1)
    if c.stamps:
        E('s_waitcnt vmcnt(0)')
        E('s_memrealtime s[70:71]')
        E('s_waitcnt lgkmcnt(0)')
        for i in range(12): E(f'v_mov_b32 v{i}, s{60+i}')
        E(f's_lshl_b32 {sT0}, s2, 2'); E(f's_add_u32 {sT0}, {sT0}, {sW}'); E(f's_lshl_b32 {sT0}, {sT0}, 6'); E(f's_add_u32 {sT0}, {sT0}, 0x10000000')
        E(f'v_cmp_eq_u32 vcc, 0, v{VL16}')
        E('s_and_saveexec_b64 s[54:55], vcc')
        E(f'v_mov_b32 v20, 0')
        for i in range(3): E(f'buffer_store_dwordx4 {vr(4*i,4)}, v20, {sWS}, {sT0} offen offset:{16*i}')
    E('L_done:')
    E('s_endpgm')

def gen(cfg=None):
    c = cfg or Cfg()
    g, E = build(c)
    finish(g, E, c)
    body = g.a.finalize()
    head = f'''; fused MHA block: q-projection + attention + out-projection, one workgroup per (batch, 4 heads)
; @launch grid=(256,1,1) block=(256,1,1) lds=163840
.amdgcn_target "amdgcn-amd-amdhsa--gfx950"
.text
.globl {KNAME}
.p2align 8
.type {KNAME},@function
{KNAME}:
'''
    tail = f'''.section .rodata,"a"
.p2align 6
.amdhsa_kernel {KNAME}
  .amdhsa_next_free_vgpr 512
  .amdhsa_next_free_sgpr 96
  .amdhsa_accum_offset 256
  .amdhsa_group_segment_fixed_size 0
  .amdhsa_kernarg_size 64
  .amdhsa_user_sgpr_count 2
  .amdhsa_user_sgpr_kernarg_segment_ptr 1
  .amdhsa_system_sgpr_workgroup_id_x 1
.end_amdhsa_kernel
'''
    return head + body + tail, g

if __name__ == '__main__':
    s, g = gen()
    out = sys.argv[1] if len(sys.argv) > 1 else 'standalone__mha_block_cached__near_ridge.s'
    open(out, 'w').write(s)
    print('instructions', len(g.a.ins), 'nops inserted', g.a.nnop, 'bytes', len(s))
```

```python
import re

_reg = re.compile(r'^([vas])(\d+)$|^([vas])\[(\d+):(\d+)\]$')
def regs(tok):
    tok = tok.strip()
    if tok.startswith('-'): tok = tok[1:]
    if tok.startswith('abs(') and tok.endswith(')'): tok = tok[4:-1]
    m = _reg.match(tok)
    if m:
        if m.group(1):
            return [(m.group(1), int(m.group(2)))]
        return [(m.group(3), i) for i in range(int(m.group(4)), int(m.group(5)) + 1)]
    if tok in ('vcc', 'vcc_lo', 'vcc_hi'): return [('s', 'vcc')]
    if tok == 'm0': return [('s', 'm0')]
    if tok == 'exec': return [('s', 'exec')]
    return []

TRANS = ('v_exp_f32', 'v_log_f32', 'v_rcp_f32', 'v_rsq_f32', 'v_sqrt_f32', 'v_sin_f32', 'v_cos_f32')

class Ins:
    __slots__ = ('text', 'op', 'defs', 'uses', 'kind', 'cuse', 'passes', 'states', 'store_data')
    def __init__(self, text):
        self.text = text
        t = text.split(';')[0].strip()
        self.defs = set(); self.uses = set(); self.cuse = set(); self.kind = 'other'; self.passes = 0; self.states = 1
        self.store_data = set()
        if not t or t.endswith(':') or t.startswith('.'):
            self.op = None; self.kind = 'label'; self.states = 0; return
        parts = t.split(None, 1)
        op = parts[0]; self.op = op
        ops = []
        if len(parts) > 1:
            ops = [x.strip() for x in re.split(r',(?![^\[]*\])', parts[1])]
            if ops:
                last = ops[-1].split()
                ops = ops[:-1] + ([last[0]] if last else [])
        R = [regs(o) for o in ops]
        base = op.replace('_e32', '').replace('_e64', '')
        if base == 's_nop':
            self.kind = 'nop'; self.states = int(ops[0], 0) + 1
        elif base.startswith('v_mfma'):
            self.kind = 'mfma'
            self.defs = set(R[0]); self.uses = set(R[1]) | set(R[2]); self.cuse = set(R[3])
            self.passes = 8 if '32x32' in base else 4
        elif base.startswith('v_cmp'):
            self.kind = 'valu'; self.defs = set(R[0]); self.uses = set(sum(R[1:], []))
        elif base.startswith('v_permlane') and 'swap' in base:
            self.kind = 'permlane'; self.defs = set(R[0]) | set(R[1]); self.uses = set(self.defs)
        elif base == 'v_writelane_b32':
            self.kind = 'valu'; self.defs = set(R[0]); self.uses = set(R[1]) | set(R[0])
        elif base in ('v_readfirstlane_b32', 'v_readlane_b32'):
            self.kind = 'readlane'; self.defs = set(R[0]); self.uses = set(sum(R[1:], []))
        elif base.startswith('v_'):
            self.kind = 'trans' if base in TRANS else 'valu'
            self.defs = set(R[0]); self.uses = set(sum(R[1:], []))
            if base in ('v_fmac_f32', 'v_mac_f32', 'v_dot2c_f32_bf16'): self.uses |= self.defs
            if base.startswith('v_cndmask') and len(ops) == 3: self.uses.add(('s', 'vcc'))
            if base.startswith('v_add_co') or base.startswith('v_addc_co'):
                self.defs |= set(R[1]); self.uses = set(sum(R[2:], []))
        elif base.startswith('ds_read') or base.startswith('ds_bpermute') :
            self.kind = 'dsread'; self.defs = set(R[0]); self.uses = set(sum(R[1:], []))
        elif base.startswith('ds_'):
            self.kind = 'dswrite'; self.uses = set(sum(R, []))
        elif base.startswith('buffer_load') or base.startswith('global_load'):
            if ' lds' in t and base.startswith('buffer_load'):
                self.kind = 'dma'; self.uses = set(sum(R, [])) | {('s', 'm0')}
            else:
                self.kind = 'vload'; self.defs = set(R[0]); self.uses = set(sum(R[1:], []))
        elif base.startswith('buffer_store') or base.startswith('global_store'):
            self.kind = 'vstore'; self.uses = set(sum(R, []))
            d = R[0] if base.startswith('buffer_store') else R[1]
            if len(d) >= 3: self.store_data = set(d)
        elif base.startswith('buffer_atomic') or base.startswith('global_atomic'):
            self.kind = 'vstore'; self.uses = set(sum(R, []))
            if ' sc0' in t: self.defs = set(R[0])
        elif base.startswith('s_'):
            self.kind = 'salu'
            if base.startswith('s_cmp') or base.startswith('s_cbranch') or base.startswith('s_branch') or base in ('s_barrier', 's_waitcnt', 's_endpgm', 's_sleep', 's_setprio'):
                self.uses = set(sum(R, []))
            else:
                self.defs = set(R[0]) if R else set(); self.uses = set(sum(R[1:], []))
        else:
            self.kind = 'other'

VALU_KINDS = ('valu', 'trans', 'permlane', 'readlane')
def is_v(r): return r[0] in ('v', 'a')

def need_states(prev, cur):
    n = 0
    pk, ck = prev.kind, cur.kind
    if pk in VALU_KINDS:
        vd = {r for r in prev.defs if is_v(r)}
        sd = {r for r in prev.defs if r[0] == 's'}
        if ck == 'mfma' and vd & (cur.uses | cur.cuse): n = max(n, 2)
        if ck == 'permlane' and vd & cur.uses: n = max(n, 2)
        if ck == 'readlane' and vd & cur.uses: n = max(n, 1)
        if pk == 'trans' and ck in VALU_KINDS and ck != 'trans' and vd & cur.uses: n = max(n, 1)
        if pk == 'trans' and ck == 'trans' and vd & cur.uses: n = max(n, 1)
        if sd:
            if ck in VALU_KINDS and sd & cur.uses: n = max(n, 2)
            if ck == 'readlane' and sd & cur.uses: n = max(n, 4)
            if ck in ('dma', 'vload', 'vstore') and sd & cur.uses: n = max(n, 5)
            if ck == 'salu' and sd & cur.uses: n = max(n, 4)
    if pk == 'mfma':
        P = prev.passes
        d = prev.defs
        raw = {4: 8, 8: 12}[P]; ovl = {4: 6, 8: 10}[P]; war = {4: 3, 8: 7}[P]
        if ck == 'mfma':
            if d & cur.uses: n = max(n, raw)
            if d & cur.cuse and not (cur.cuse == d): n = max(n, ovl)
            if d & cur.defs and not (cur.defs == d and cur.cuse == d) and not (d & cur.cuse):
                n = max(n, ovl)
        elif ck in VALU_KINDS:
            if d & (cur.uses | cur.defs): n = max(n, raw)
            if prev.cuse & cur.defs: n = max(n, war)
        elif ck in ('dsread', 'dswrite', 'vload', 'vstore', 'dma'):
            if d & (cur.uses | cur.defs): n = max(n, raw)
    if pk == 'salu' and ('s', 'm0') in prev.defs and ck == 'dma': n = max(n, 1)
    if pk == 'vstore' and prev.store_data and (ck in VALU_KINDS) and prev.store_data & cur.defs: n = max(n, 2)
    if pk == 'vstore' and prev.store_data and ck in ('dsread', 'vload') and prev.store_data & cur.defs: n = max(n, 1)
    return n

class Asm:
    def __init__(self):
        self.ins = []
    def __call__(self, text):
        for line in text.split('\n'):
            line = line.strip()
            if line: self.ins.append(Ins(line))
    def finalize(self, window=24):
        out = []
        nnop = 0
        for cur in self.ins:
            if cur.kind in ('label',):
                out.append(cur); continue
            need = 0; dist = 0
            k = len(out) - 1; seen = 0
            while k >= 0 and dist < window:
                p = out[k]
                if p.kind != 'label':
                    req = need_states(p, cur)
                    if req > dist: need = max(need, req - dist)
                    dist += p.states
                k -= 1
            while need > 0:
                m = min(need, 16)
                out.append(Ins(f's_nop {m-1}')); nnop += 1
                need -= m
            out.append(cur)
        self.nnop = nnop
        return '\n'.join(i.text for i in out) + '\n'
```

```python
import sys, struct, math
sys.path.insert(0, 'work')
from asmlib import Asm

KNAME = "standalone__mha_block_cached__near_ridge_kernel"
MF = "v_mfma_f32_16x16x32_bf16"
SLOT = 16384
XBUF = 9 * SLOT

S0 = 0; QN = 128; T0 = 160; NT = 12
VK, VV = 208, 209
VWQ = 210; VWO = 214
POOL = 218
KA0, VB0, QC0, OD0 = 226, 227, 228, 229
VM, VMC = 230, 231
TMP = 232
VL16 = 240; VPART = 241; VOA = 242; VOUT = 243
AOUT = 0; AX = 144; AO = 216; AL = 248; AONE = 252
sK, sV, sWQ, sWO, sX, sWS, sOUT, sDBG = 's[4:7]', 's[8:11]', 's[12:15]', 's[16:19]', 's[20:23]', 's[24:27]', 's[28:31]', 's[32:35]'
sW, sW4K, sB, sJ = 's36', 's37', 's38', 's39'
sKV, sKVN, sWQO, sWOO, sLOOP, sC = 's40', 's41', 's42', 's43', 's44', 's45'
sODD = 's[46:47]'
sT0, sT1, sT2, sT3 = 's48', 's49', 's50', 's51'
sPB = 's52'
sVS = 's[88:91]'
sFIRST = 's53'
VVS = 244
ROT0 = 92
VCHK = 245

def vr(a, n=1): return f'v{a}' if n == 1 else f'v[{a}:{a+n-1}]'
def ar(a, n=1): return f'a{a}' if n == 1 else f'a[{a}:{a+n-1}]'

class Cfg:
    LA = 5
    kflags = None; vflags = None
    kvflags = 'nt'; wflags = ''; xflags = ''; pfflags = ''
    ra_b = 5; ra_t = 4; ra_o = 2
    pairwait = True
    q_groups = 10
    stamps = False
    skip_dma = ''; skip_compute = False; wfixed = False
    pf = 2; pf_b = 18; pf_mask = 1
    store_mode = 1
    poll_sleep = 16
    exit_at = 0
    k_early = 0
    two_kernel = False
    tlbwarm = False
    conv_inline = True
    codepf = True
    wgate = 1
    xp_nox = False
    xp_notail = 0
    pairbar = False
    sm_v_hi = 0
    olast = True
    klast = False
    dma_early = False
    bstamps = False
    dbgspan = False
    rot = 0
    xp_noexp = False
    xp_noq = False
    xp_halfv = False
    sm_in_v = True
    inline_store = False
    inline_b = False
    dflags = True
    dot_reduce = True
    outflags = ''
    istamps = False
    pf_first = False
    pf_wait = True
    pf_depth = 0
    golines = True
    fstamps = False
    sm_lo = 48
    sm_vhi = 32

RING = {'K': list(range(8)), 'Q': [8] + list(range(8)), 'V': list(range(8)), 'O': [8] + list(range(8))}

class G:
    def __init__(self, cfg):
        self.c = cfg; self.a = Asm()
        self.vm = []; self.lg = []; self.lgid = 0; self.tnext = 0; self.uid = 0
        self.slot_last_read = {}; self.pending = []; self.bk = 0
    def E(self, t): self.a(t)
    def vm_issue(self, tag): self.vm.append(tag)
    def vm_wait(self, pred):
        idx = [i for i, t in enumerate(self.vm) if pred(t)]
        if not idx: return
        n = min(len(self.vm) - 1 - max(idx), 63)
        self.E(f's_waitcnt vmcnt({n})')
        self.vm = self.vm[len(self.vm) - n:] if n else []
    def lg_issue(self):
        self.lgid += 1; self.lg.append(self.lgid); return self.lgid
    def lg_wait(self, i):
        if i not in self.lg: return
        n = min(len(self.lg) - 1 - self.lg.index(i), 15)
        self.E(f's_waitcnt lgkmcnt({n})')
        self.lg = self.lg[len(self.lg) - n:] if n else []
    def lg_drain(self):
        if self.lg: self.E('s_waitcnt lgkmcnt(0)'); self.lg = []

    def dma_ops(self, kind, idx, nxt, ring=None):
        c = self.c
        if ring is None: ring = RING[kind][idx]
        base = ring * SLOT
        if kind in ('K', 'V'):
            srd = sK if kind == 'K' else sVS
            voff = [VK if kind == 'K' else VVS] * 4
            sb = sKVN if nxt else sKV; so = idx * SLOT; fl = c.kvflags
            if kind == 'K' and c.kflags is not None: fl = c.kflags
            if kind == 'V' and c.vflags is not None: fl = c.vflags
        elif kind == 'Q':
            srd = sWQ; voff = [VWQ + p for p in range(4)]; sb = sWQO; so = idx * 64 * 8192; fl = c.wflags
        else:
            srd = sWO; voff = [VWO + p for p in range(4)]; sb = sWOO; so = idx * 128; fl = c.wflags
        tag = (kind, idx, nxt)
        st = sT0 if (self.uid & 1) == 0 else sT1
        self.uid += 1
        if kind in ('K', 'V') and c.rot: so = f's{64 + 0 + idx}' if False else f's{ROT0 + idx}'
        def piece(p):
            def f():
                if p == 0:
                    self.E(f's_add_u32 m0, {sW4K}, {base}')
                    self.E(f's_add_u32 {st}, {sb}, {so}')
                off = f' offset:{p*1024}' if p else ''
                if kind not in c.skip_dma:
                    self.E(f'buffer_load_dwordx4 {vr(voff[p])}, {srd}, {st} offen{off} {fl} lds'.replace('  ', ' '))
                    self.vm_issue(tag)
            return f
        return [piece(p) for p in range(4)]
    def flush_dma(self, k=99):
        while self.pending and k > 0:
            self.pending.pop(0)(); k -= 1
    def slot_sync(self, sid, tag, issue, extra=None):
        lr = self.slot_last_read.get(sid - 2)
        if lr is not None: self.lg_wait(lr)
        if extra: extra()
        if self.c.bstamps:
            k = self.bk; self.bk += 1
            self.E(f's_memtime s[{92 + 2*(k&1)}:{93 + 2*(k&1)}]')
        self.vm_wait(lambda t: t == tag)
        self.E('s_barrier')
        if self.c.bstamps:
            self.E(f's_memtime s[{96 + 2*(k&1)}:{97 + 2*(k&1)}]')
            if k > 0:
                self.E(f'v_writelane_b32 v246, s{92 + 2*((k-1)&1)}, {(k-1) % 64}')
                self.E(f'v_writelane_b32 v247, s{96 + 2*((k-1)&1)}, {(k-1) % 64}')
        for it in issue: self.pending += self.dma_ops(*it)

    def stream(self, ops):
        frags = []
        for i, o in enumerate(ops):
            if o.get('frag'):
                o['fi'] = len(frags); frags.append(o['frag'])
            else:
                o['fi'] = len(frags) - 1 if o.get('mf') and o.get('usefrag', True) else None
        rq = []
        for fi, f in enumerate(frags):
            for k in range(len(f['reads'])): rq.append((fi, k))
        rp = 0
        skip = self.c.skip_compute
        def issue_read():
            nonlocal rp
            fi, k = rq[rp]; f = frags[fi]
            if k == 0:
                if f.get('pre'): f['pre']()
                f['T'] = T0 + 4 * (self.tnext % NT); self.tnext += 1
            tmpl, w = f['reads'][k]
            if not skip:
                d = f['T'] + (2 * k if w == 2 else 0)
                self.E(tmpl.format(d=vr(d, w)))
                f['last'] = self.lg_issue()
                if f.get('slot') is not None: self.slot_last_read[f['slot']] = f['last']
            rp += 1
        for i, o in enumerate(ops):
            cur = o['fi'] if o['fi'] is not None else -1
            if o.get('dma'): self.flush_dma(o['dma'])
            if cur >= 0:
                ra = frags[cur].get('ra', 6)
            else:
                ra = 0
            target = cur + ra
            maxr = o.get('maxr', 2) + 1
            if i == 0: maxr = 99
            n = 0
            while rp < len(rq) and (rq[rp][0] <= cur or (rq[rp][0] <= target and n < maxr and len(self.lg) < 14)):
                issue_read(); n += 1
            if o.get('need'): o['need']()
            if cur >= 0 and o.get('mf') and not skip:
                f = frags[cur]
                if f['last'] in self.lg:
                    tgt = f['last']
                    if self.c.pairwait and cur + 1 < len(frags) and frags[cur + 1].get('last') in self.lg and frags[cur + 1].get('slot') is not None:
                        tgt = frags[cur + 1]['last']
                    self.lg_wait(tgt)
            for f in o.get('fill', []):
                if callable(f): f()
                elif not skip: self.E(f)
            if o.get('mf') and not skip:
                self.E(o['mf'](frags[cur]['T'] if cur >= 0 else None))
        assert rp == len(rq)

def build(cfg):
    g = G(cfg); E = g.E; c = cfg
    LA = c.LA
    if c.stamps or c.dbgspan: E('s_memrealtime s[60:61]')
    E('s_cmp_ge_u32 s2, 256')
    E('s_cbranch_scc1 L_done')
    for dst, off in ((20, 0), (4, 8), (8, 16), (12, 24), (16, 32), (28, 40), (32, 48), (24, 56)):
        E(f's_load_dwordx2 s[{dst}:{dst+1}], s[0:1], {off}')
    if c.codepf:
        E('s_getpc_b64 s[56:57]')
        E('L_pc:')
        E('v_lshlrev_b32 v113, 7, v0')
        E('v_mov_b32 v115, s57')
        E('v_add_co_u32 v114, vcc, s56, v113')
        E('v_addc_co_u32 v115, vcc, 0, v115, vcc')
        E('v_cmp_gt_u32 vcc, L_done-L_pc, v113')
        E('s_and_saveexec_b64 s[54:55], vcc')
        E('s_cbranch_execz L_cpf_skip')
        E('global_load_dword v116, v[114:115], off')
        E('L_cpf_skip:')
        E('s_mov_b64 exec, s[54:55]')
    L, C_, G_, RR, CC, POS, X, Y = 100, 101, 102, 103, 104, 106, 107, 108
    E(f'v_and_b32 v{L}, 63, v0')
    E(f'v_lshrrev_b32 v{X}, 6, v0')
    E(f'v_readfirstlane_b32 {sW}, v{X}')
    E(f'v_and_b32 v{C_}, 15, v{L}')
    E(f'v_lshrrev_b32 v{G_}, 4, v{L}')
    E(f'v_lshrrev_b32 v{RR}, 2, v{L}')
    E(f'v_and_b32 v{RR}, 3, v{RR}')
    E(f'v_and_b32 v{CC}, 3, v{L}')
    E(f's_lshl_b32 {sW4K}, {sW}, 12')
    E(f's_and_b32 {sJ}, s2, 7')
    E(f's_lshr_b32 {sB}, s2, 3')
    E(f'v_lshlrev_b32 v{VL16}, 4, v{L}')
    E(f's_lshl_b32 {sT0}, {sW}, 2')
    E(f'v_add_u32 v{X}, {sT0}, v{G_}')
    E(f'v_xor_b32 v{X}, v{X}, v{C_}')
    E(f'v_lshlrev_b32 v{X}, 4, v{X}')
    E(f'v_lshl_add_u32 v{X}, v{G_}, 8, v{X}')
    E(f'v_add_u32 v{VK}, {sW4K}, v{X}')
    E(f's_and_b32 {sT1}, {sW}, 1')
    E(f's_lshl_b32 {sT1}, {sT1}, 3')
    E(f'v_lshlrev_b32 v{X}, 1, v{G_}')
    E(f'v_or_b32 v{X}, {sT1}, v{X}')
    E(f'v_xor_b32 v{X}, v{X}, v{C_}')
    E(f'v_lshlrev_b32 v{X}, 4, v{X}')
    E(f'v_lshl_add_u32 v{X}, v{G_}, 8, v{X}')
    E(f'v_add_u32 v{VV}, {sW4K}, v{X}')
    E(f'v_and_b32 v{X}, 1, v{G_}')
    E(f'v_lshrrev_b32 v{Y}, 1, v{G_}')
    E(f'v_lshl_or_b32 v{X}, v{Y}, 2, v{X}')
    E(f'v_or_b32 v{X}, {sT1}, v{X}')
    E(f'v_xor_b32 v{X}, v{X}, v{C_}')
    E(f'v_lshlrev_b32 v{X}, 4, v{X}')
    E(f'v_lshl_add_u32 v{X}, v{G_}, 13, v{X}')
    E(f's_lshl_b32 {sT2}, {sW}, 17')
    E(f'v_add_u32 v{VWQ}, {sT2}, v{X}')
    for p in range(1, 4): E(f'v_add_u32 v{VWQ+p}, {p*(32768-1024)}, v{VWQ}')
    E(f'v_lshrrev_b32 v{X}, 3, v{L}')
    E(f'v_and_b32 v{Y}, 6, v{X}')
    E(f'v_and_b32 v{POS}, 7, v{L}')
    E(f'v_xor_b32 v{Y}, v{Y}, v{POS}')
    E(f'v_lshlrev_b32 v{Y}, 4, v{Y}')
    E(f'v_mul_u32_u24 v{X}, 1152, v{X}')
    E(f'v_add_u32 v{X}, v{X}, v{Y}')
    E(f's_mul_i32 {sT2}, {sW}, {32*1152}')
    E(f'v_add_u32 v{VWO}, {sT2}, v{X}')
    for p in range(1, 4): E(f'v_add_u32 v{VWO+p}, {p*(8*1152-1024)}, v{VWO}')
    E(f'v_lshrrev_b32 v{X}, 2, v{C_}')
    E(f'v_lshlrev_b32 v{X}, 12, v{X}')
    E(f'v_and_b32 v{Y}, 3, v{C_}')
    E(f'v_lshl_add_u32 v{X}, v{Y}, 8, v{X}')
    E(f'v_xor_b32 v{Y}, v{G_}, v{C_}')
    E(f'v_lshl_add_u32 v{KA0}, v{Y}, 4, v{X}')
    ROWP, G1, C1 = 109, 110, 111
    E(f'v_lshlrev_b32 v{ROWP}, 4, v{G_}')
    E(f'v_add_u32 v{ROWP}, v{ROWP}, v{RR}')
    E(f'v_lshlrev_b32 v{ROWP}, 8, v{ROWP}')
    E(f'v_and_b32 v{G1}, 1, v{G_}')
    E(f'v_lshlrev_b32 v{G1}, 3, v{G1}')
    E(f'v_and_b32 v{C1}, 1, v{CC}')
    E(f'v_lshlrev_b32 v{C1}, 3, v{C1}')
    E(f'v_lshl_or_b32 v{X}, v{RR}, 1, v{G1}')
    E(f'v_lshrrev_b32 v{Y}, 1, v{CC}')
    E(f'v_xor_b32 v{X}, v{X}, v{Y}')
    E(f'v_lshl_add_u32 v{X}, v{X}, 4, v{C1}')
    E(f'v_add_u32 v{VB0}, v{ROWP}, v{X}')
    E(f'v_and_b32 v{X}, 1, v{RR}')
    E(f'v_lshrrev_b32 v{Y}, 1, v{RR}')
    E(f'v_lshl_or_b32 v{X}, v{Y}, 2, v{X}')
    E(f'v_or_b32 v{X}, v{X}, v{G1}')
    E(f'v_xor_b32 v{X}, v{X}, v{CC}')
    E(f'v_lshl_add_u32 v{X}, v{X}, 4, v{C1}')
    E(f'v_add_u32 v{QC0}, v{ROWP}, v{X}')
    E(f'v_lshrrev_b32 v{X}, 1, v{RR}')
    E(f'v_lshlrev_b32 v{X}, 1, v{X}')
    E(f'v_lshrrev_b32 v{Y}, 1, v{G1}')
    E(f'v_or_b32 v{X}, v{X}, v{Y}')
    E(f'v_lshrrev_b32 v{Y}, 1, v{CC}')
    E(f's_lshl_b32 {sT2}, {sW}, 1')
    E(f'v_add_u32 v{Y}, {sT2}, v{Y}')
    E(f'v_xor_b32 v{X}, v{X}, v{Y}')
    E(f'v_lshl_add_u32 v{X}, v{X}, 4, v{C1}')
    E(f'v_lshlrev_b32 v{Y}, 2, v{G_}')
    E(f'v_add_u32 v{Y}, v{Y}, v{RR}')
    E(f'v_lshl_add_u32 v{OD0}, v{Y}, 7, v{X}')
    E(f'v_and_b32 v{X}, 1, v{G_}')
    E(f'v_cmp_eq_u32 {sODD}, 1, v{X}')
    XST = 3 * SLOT
    VX = 112
    E(f's_mul_i32 {sT2}, {sW}, {16*1152}')
    E(f'v_mul_u32_u24 v{X}, 1152, v{C_}')
    E(f'v_lshl_add_u32 v{X}, v{G_}, 5, v{X}')
    E(f'v_add_u32 v{VX}, {sT2}, v{X}')
    E(f'v_add_u32 v{VX}, {XST}, v{VX}')
    E(f's_lshl_b32 {sT2}, {sW}, 10')
    E(f'v_add_u32 v{VPART}, {sT2}, v{VL16}')
    E(f'v_mul_u32_u24 v{VOUT}, 1152, v{C_}')
    E(f'v_lshl_add_u32 v{VOUT}, v{G_}, 3, v{VOUT}')
    E(f's_lshl_b32 {sKV}, {sB}, 5')
    E(f's_lshl_b32 {sT2}, {sJ}, 2')
    E(f's_add_u32 {sKV}, {sKV}, {sT2}')
    E(f's_lshl_b32 {sKV}, {sKV}, 17')
    E(f's_mov_b32 {sKVN}, {sKV}')
    E(f's_lshl_b32 {sWQO}, {sJ}, 10')
    E(f's_mul_i32 {sWOO}, {sJ}, {4*128*1152}')
    cval = struct.unpack('<I', struct.pack('<f', (128 ** -0.5) * math.log2(math.e)))[0]
    E(f's_mov_b32 {sC}, {hex(cval)}')
    E(f's_lshl_b32 {sPB}, {sB}, 3')
    E(f's_add_u32 {sPB}, {sPB}, {sJ}')
    E(f's_mul_i32 {sPB}, {sPB}, {72*1024}')
    for i in range(4): E(f'v_mov_b32 v{TMP+i}, 0')
    E(f'v_mov_b32 v{TMP+4}, 0x3f803f80')
    for i in range(9): E(f'v_mfma_f32_32x32x16_bf16 {ar(AOUT+16*i,16)}, {vr(TMP,4)}, {vr(TMP,4)}, 0')
    for i in range(4): E(f'v_accvgpr_write_b32 a{AONE+i}, v{TMP+4}')
    E(f'v_mov_b32 v{VVS}, v{VK}')
    E(f'v_mov_b32 v{VCHK}, 0')
    E('s_waitcnt lgkmcnt(0)')
    if c.stamps: E('s_memrealtime s[82:83]')
    for base, nrec in ((4, 0x8000000), (8, 0x8000000), (12, 4718592), (16, 4718592), (20, 2359296), (24, 0x1400000 + 256*128), (28, 2359296), (32, 256)):
        E(f's_mov_b32 s{base+2}, {hex(nrec)}')
        E(f's_mov_b32 s{base+3}, 0x20000')
    if c.stamps: E('s_mov_b32 s26, 0x20000000')
    for i in range(4): E(f's_mov_b32 s{88+i}, s{4+i}')
    if c.rot:
        if c.rot == 1: E(f's_add_u32 {sT2}, {sB}, {sJ}')
        elif c.rot == 2: E(f's_mov_b32 {sT2}, {sB}')
        elif c.rot == 3:
            E(f's_lshr_b32 {sT2}, {sB}, 1'); E(f's_add_u32 {sT2}, {sT2}, {sJ}')
        elif c.rot == 4:
            E(f's_mul_i32 {sT2}, {sB}, 3'); E(f's_add_u32 {sT2}, {sT2}, {sJ}')
        for i in range(8):
            E(f's_add_u32 {sT3}, {sT2}, {i}'); E(f's_and_b32 {sT3}, {sT3}, 7'); E(f's_lshl_b32 s{ROT0+i}, {sT3}, 14')
    if c.golines:
        E(f's_cmp_lg_u32 {sW}, 0')
        E('s_cbranch_scc1 L_noinit')
        E(f's_lshl_b32 {sT2}, s2, 7'); E(f's_add_u32 {sT2}, {sT2}, 0x1400000')
        E(f'v_mov_b32 v{TMP+2}, 0')
        E(f'v_lshrrev_b32 v{TMP+3}, 2, v{VL16}')
        E(f'v_cmp_gt_u32 vcc, 256, v{VL16}')
        E('s_and_saveexec_b64 s[54:55], vcc')
        E(f'buffer_store_dword v{TMP+2}, v{TMP+3}, {sWS}, {sT2} offen sc1')
        E('s_mov_b64 exec, s[54:55]')
        E('L_noinit:')
    if c.tlbwarm:
        def touch(lo, off_code, dst):
            off_code()
            E(f's_add_u32 s86, s{lo}, {sT2}')
            E(f's_addc_u32 s87, s{lo+1}, 0')
            E(f's_load_dword s{dst}, s[86:87], 0')
        touch(20, lambda: E(f's_mul_i32 {sT2}, {sB}, {64*1152}'), 64)
        touch(4, lambda: E(f's_mov_b32 {sT2}, {sKV}'), 65)
        touch(8, lambda: E(f's_mov_b32 {sT2}, {sKV}'), 66)
        for k, off in enumerate((0, 1572864, 3145728, 4718588)):
            touch(12, lambda off=off: E(f's_mov_b32 {sT2}, {off}'), 67)
        touch(16, lambda: E(f's_mov_b32 {sT2}, {sWOO}'), 68)
        touch(16, lambda: E(f's_add_u32 {sT2}, {sWOO}, {4*128*1152-4}'), 68)
        touch(24, lambda: E(f's_mov_b32 {sT2}, {sPB}'), 69)
        touch(28, lambda: E(f's_mul_i32 {sT2}, {sB}, {64*1152}'), 69)
        E('s_load_dword s70, s[32:33], 0')

    def issue_now(kind, idx, nxt):
        for f in g.dma_ops(kind, idx, nxt): f()
    def pf_pieces(srd, n, sbase_code, step):
        sbase_code()
        E(f's_add_u32 m0, {sW4K}, {XBUF}')
        for k in range(n):
            E(f'buffer_load_dwordx4 v{VL16}, {srd}, {sT2} offen {c.pfflags} lds'.replace('  ', ' '))
            if k < n - 1: E(f's_add_u32 {sT2}, {sT2}, {step}')
    if c.pf:
        E(f's_lshl_b32 {sT2}, {sB}, 2'); E(f's_add_u32 {sT2}, {sT2}, {sW}'); E(f's_lshl_b32 {sT2}, {sT2}, 1')
        E(f's_cmp_ge_u32 {sT2}, 144'); E(f's_cselect_b32 {sT3}, 144, 0'); E(f's_sub_u32 {sT2}, {sT2}, {sT3}')
        E(f's_lshl_b32 {sT2}, {sT2}, 15'); E(f's_add_u32 {sT2}, {sT2}, {sWQO}')
        E(f'v_lshrrev_b32 v{X}, 4, v{L}'); E(f'v_lshlrev_b32 v{X}, 13, v{X}'); E(f'v_and_b32 v{Y}, 15, v{L}'); E(f'v_lshl_add_u32 v113, v{Y}, 4, v{X}')
        E(f's_add_u32 m0, {sW4K}, {XBUF}')
        for k in range(2):
            E(f'buffer_load_dwordx4 v113, {sWQ}, {sT2} offen {c.pfflags} lds'.replace('  ', ' '))
            if k == 0: E(f's_add_u32 {sT2}, {sT2}, 32768')
    E(f's_lshl_b32 {sT2}, {sB}, 6'); E(f's_lshl_b32 {sT3}, {sW}, 4'); E(f's_add_u32 {sT2}, {sT2}, {sT3}'); E(f's_mul_i32 {sT2}, {sT2}, 1152')
    E(f's_mul_i32 {sT3}, {sW}, 18432'); E(f's_add_u32 {sT3}, {sT3}, {XST}')
    for k in range(18):
        if k % 4 == 0:
            E(f's_add_u32 m0, {sT3}, {k*1024}')
            if k: E(f's_add_u32 {sT2}, {sT2}, 4096')
            else: E('s_nop 0')
        off = f' offset:{(k%4)*1024}' if k % 4 else ''
        if not c.xp_nox:
            E(f'buffer_load_dwordx4 v{VL16}, {sX}, {sT2} offen{off} {c.xflags} lds'.replace('  ', ' '))
            g.vm_issue(('X', k))
    for i in range(4): issue_now('Q', i, False)
    g.vm_wait(lambda t: t[0] == 'X')
    if c.stamps: E('s_memrealtime s[84:85]')
    E('s_waitcnt lgkmcnt(0)')
    if not c.skip_compute:
        for jj in range(9):
            for hs in range(2):
                E(f'ds_read_b128 {ar(AX + 4*(2*jj+hs), 4)}, v{VX} offset:{128*jj+16*hs}')
                if (2 * jj + hs) % 8 == 7: E('s_waitcnt lgkmcnt(0)')
        E('s_waitcnt lgkmcnt(0)')

    sid = [0]
    def pool_init(pat, variants, win):
        L_ = []
        for v, xb in enumerate(variants):
            d = POOL + v
            if xb == 0: L_.append(f'v_add_u32 v{d}, {win*65536}, v{pat}' if win else f'v_mov_b32 v{d}, v{pat}')
            else: L_.append(f'v_xor_b32 v{d}, {xb}, v{POOL}')
        for t in L_: E(t)

    def mk_pre(seq, p, my, extra=None, after=None, issue=None, j=None, n_in_phase=None, issue_map=None):
        def pre():
            if c.pairbar and j is not None:
                if j % 2 == 1:
                    if after: after()
                    return
                n = 2 if j + 1 < n_in_phase else 1
                g.flush_dma()
                if issue_map is not None: iss = sum((issue_map[j + i] for i in range(n)), [])
                else: iss = [seq[p + LA + i] for i in range(n) if p + LA + i < len(seq)]
                g.slot_sync(my, seq[p + n - 1], iss, extra)
                if after: after()
                return
            g.flush_dma()
            iss = issue if issue is not None else ([seq[p + LA]] if p + LA < len(seq) else [])
            g.slot_sync(my, seq[p], iss, extra)
            if after: after()
        return pre

    def k_ops(seq, p0, issue_map=None):
        ops = []
        for j in range(8):
            ring = RING['K'][j]; win, inw = ring >> 2, (ring & 3) * SLOT
            my = sid[0]; sid[0] += 1
            for u in range(4):
                T = 4 * j + u
                for s in range(4):
                    fr = {'slot': my, 'ra': c.ra_b, 'reads': [(f'ds_read_b128 {{d}}, v{POOL+s} offset:{inw + u*1024}', 4)]}
                    if u == 0 and s == 0:
                        fr['pre'] = mk_pre(seq, p0 + j, my, j=j, n_in_phase=8, issue_map=issue_map, issue=(issue_map[j] if issue_map else None), after=(lambda win=win: pool_init(KA0, [0, 64, 128, 192], win)) if j % 4 == 0 else None)
                    D = vr(S0 + 4 * T, 4); B = vr(QN + 8 * s, 4)
                    o = {'frag': fr, 'maxr': 1, 'fill': [],
                         'mf': (lambda t, D=D, B=B, s=s: f'{MF} {D}, {vr(t,4)}, {B}, {D if s else 0}')}
                    if (s == 2 and not c.dma_early) or (c.dma_early and u == 2): o['dma'] = 1
                    if T >= 2 and s in (1, 3):
                        a = S0 + 4 * (T - 2) + (0 if s == 1 else 2)
                        o['fill'].append(f'v_max3_f32 v{VM}, v{a}, v{a+1}, v{VM}')
                    ops.append(o)
        return ops
    def q_ops(seq, p0, issue_map=None):
        ops = []
        for j in range(9):
            ring = RING['Q'][j]; win, inw = ring >> 2, (ring & 3) * SLOT
            my = sid[0]; sid[0] += 1
            for hs in range(2):
                for s in range(4):
                    for u in range(2):
                        v = 2 * s + u
                        fr = {'slot': my, 'ra': c.ra_t, 'reads': [(f'ds_read_b64_tr_b16 {{d}}, v{POOL+v} offset:{inw + (8*hs+4*t)*256}', 2) for t in range(2)]}
                        if hs == 0 and v == 0:
                            fr['pre'] = mk_pre(seq, p0 + j, my, j=j, n_in_phase=9, issue=(issue_map.get(j) if issue_map else None),
                                               after=(lambda win=win: pool_init(QC0, [0, 8, 64, 72, 128, 136, 192, 200], win)) if j in (0, 1, 5) else None)
                        D = vr(QN + 4 * v, 4); B = ar(AX + 4 * (2 * j + hs), 4)
                        first = (j == 0 and hs == 0)
                        o = {'frag': fr, 'fill': [], 'mf': (lambda t, D=D, B=B, first=first: f'{MF} {D}, {vr(t,4)}, {B}, {0 if first else D}')}
                        if (v in (1, 5) and not c.dma_early) or (c.dma_early and hs == 0 and v >= 4): o['dma'] = 1
                        ops.append(o)
        return ops
    def v_ops(seq, p0):
        ops = []
        for j in range(8):
            ring = RING['V'][j]; win, inw = ring >> 2, (ring & 3) * SLOT
            my = sid[0]; sid[0] += 1
            for hf in range(2):
                uu = 2 * j + hf
                for td in range(8):
                    fr = {'slot': my, 'ra': c.ra_t, 'reads': [(f'ds_read_b64_tr_b16 {{d}}, v{POOL+td} offset:{inw + (8*hf+4*t)*256}', 2) for t in range(2)]}
                    if hf == 0 and td == 0:
                        fr['pre'] = mk_pre(seq, p0 + j, my, j=j, n_in_phase=8, after=(lambda win=win: pool_init(VB0, [i << 5 for i in range(8)], win)) if j % 4 == 0 else None)
                    D = ar(AO + 4 * td, 4); B = vr(S0 + 8 * uu, 4)
                    o = {'frag': fr, 'fill': [], 'uu': uu, 'mf': (lambda t, D=D, B=B, uu=uu: f'{MF} {D}, {vr(t,4)}, {B}, {D if uu else 0}')}
                    if (td in (2, 5) and not c.dma_early) or (c.dma_early and hf == 0 and td >= 4): o['dma'] = 1
                    ops.append(o)
                DL = ar(AL, 4); B = vr(S0 + 8 * uu, 4)
                ops.append({'frag': None, 'usefrag': True, 'fill': [], 'uu': uu, 'maxr': 2,
                            'mf': (lambda t, B=B, uu=uu, DL=DL: f'{MF} {DL}, {ar(AONE,4)}, {B}, {DL if uu else 0}')})
        return ops
    def o_ops(seq, p0, extra0, after0):
        ops = []
        for j in range(9):
            ring = RING['O'][j]; win, inw = ring >> 2, (ring & 3) * SLOT
            my = sid[0]; sid[0] += 1
            for s in range(4):
                fr = {'slot': my, 'ra': c.ra_o, 'reads': [(f'ds_read_b64_tr_b16 {{d}}, v{VOA} offset:{inw + s*4096 + t*2048}', 2) for t in range(2)]}
                if s == 0:
                    def after(j=j, win=win):
                        if j == 0: after0()
                        if j in (0, 1, 5): E(f'v_add_u32 v{VOA}, {win*65536}, v{OD0}' if win else f'v_mov_b32 v{VOA}, v{OD0}')
                    fr['pre'] = mk_pre(seq, p0 + j, my, j=j, n_in_phase=9, extra=(extra0 if j == 0 else None), after=after)
                for qt in range(4):
                    D = ar(AOUT + 4 * (4 * j + qt), 4); B = vr(S0 + 4 * (4 * s + qt), 4)
                    o = {'frag': fr if qt == 0 else None, 'maxr': 1, 'fill': [], 'mf': (lambda t, D=D, B=B: f'{MF} {D}, {vr(t,4)}, {B}, {D}')}
                    if qt == 2: o['dma'] = 1
                    ops.append(o)
        return ops

    def exp_group(uu):
        b = S0 + 8 * uu
        L_ = [f'v_fma_f32 v{b+i}, v{b+i}, {sC}, -v{VMC}' for i in range(8)]
        L_ += [f'v_exp_f32 v{b+i}, v{b+i}' for i in range(8)]
        L_ += [f'v_cvt_pk_bf16_f32 v{b+i}, v{b+2*i}, v{b+2*i+1}' for i in range(4)]
        return L_
    def max_finish():
        L_ = []
        for T in (30, 31):
            a = S0 + 4 * T
            L_ += [f'v_max3_f32 v{VM}, v{a}, v{a+1}, v{VM}', f'v_max3_f32 v{VM}, v{a+2}, v{a+3}, v{VM}']
        L_ += [f'v_mov_b32 v{TMP}, v{VM}', f'v_permlane32_swap_b32 v{VM}, v{TMP}', f'v_max_f32 v{VM}, v{VM}, v{TMP}',
               f'v_mov_b32 v{TMP}, v{VM}', f'v_permlane16_swap_b32 v{VM}, v{TMP}', f'v_max_f32 v{VM}, v{VM}, v{TMP}',
               f'v_mul_f32 v{VMC}, {sC}, v{VM}']
        return L_
    def q_finalize():
        L_ = []
        for s in range(4):
            a = QN + 8 * s; t = TMP + 4 * (s & 1)
            L_ += [f'v_cvt_pk_bf16_f32 v{t}, v{a}, v{a+1}', f'v_cvt_pk_bf16_f32 v{t+1}, v{a+2}, v{a+3}',
                   f'v_cvt_pk_bf16_f32 v{t+2}, v{a+4}, v{a+5}', f'v_cvt_pk_bf16_f32 v{t+3}, v{a+6}, v{a+7}']
            L_ += [f'v_cndmask_b32 v{a}, v{t}, v{t+2}, {sODD}', f'v_cndmask_b32 v{a+1}, v{t+1}, v{t+3}, {sODD}',
                   f'v_cndmask_b32 v{a+2}, v{t+2}, v{t}, {sODD}', f'v_cndmask_b32 v{a+3}, v{t+3}, v{t+1}, {sODD}']
        return L_
    def distribute(ops, fillers, lo, hi):
        n = hi - lo
        for k, f in enumerate(fillers):
            ops[lo + (k * n) // len(fillers)]['fill'].append(f)

    def gate_arrive():
        E(f's_cmp_lg_u32 {sW}, 0')
        E('s_cbranch_scc1 L_ga_done')
        E(f'v_mov_b32 v{TMP+4}, 1')
        E(f'v_mov_b32 v{TMP+5}, 0')
        E(f's_lshl_b32 {sT2}, {sJ}, 5')
        E(f's_add_u32 {sT2}, {sT2}, 4')
        E(f'v_cmp_eq_u32 vcc, 0, v{VL16}')
        E('s_and_saveexec_b64 s[54:55], vcc')
        E(f'buffer_atomic_add v{TMP+4}, v{TMP+5}, {sDBG}, {sT2} offen sc1')
        E('s_mov_b64 exec, s[54:55]')
        E('L_ga_done:')
    def gate_wait():
        E(f's_cmp_lg_u32 {sW}, 0')
        E('s_cbranch_scc1 L_gw_done')
        E(f'v_lshlrev_b32 v{TMP+5}, 1, v{VL16}')
        E(f'v_add_u32 v{TMP+5}, 4, v{TMP+5}')
        E(f's_mov_b32 {sT3}, 0')
        E('L_gw_poll:')
        E(f'buffer_load_dword v{TMP+4}, v{TMP+5}, {sDBG}, 0 offen sc1')
        E('s_waitcnt vmcnt(0)')
        E(f'v_cmp_le_u32 vcc, 32, v{TMP+4}')
        E(f's_cmp_eq_u32 vcc_lo, 0xff')
        E('s_cbranch_scc1 L_gw_done')
        E(f's_sleep {c.poll_sleep}')
        E(f's_add_u32 {sT3}, {sT3}, 1')
        E(f's_cmp_lt_u32 {sT3}, 0x40000')
        E('s_cbranch_scc1 L_gw_poll')
        E('L_gw_done:')
        E('s_barrier')
        g.vm = []
    def o_finalize():
        tl = 64
        E(f'v_accvgpr_read_b32 v{tl}, a{AL}')
        E(f'v_add_u32 v{TMP}, {XBUF}, v{VPART}')
        E(f'v_rcp_f32 v{tl}, v{tl}')
        for s in range(4):
            t = 72 + 12 * s
            for i in range(8): E(f'v_accvgpr_read_b32 v{t+i}, a{AO + 8*s + i}')
            for i in range(8): E(f'v_mul_f32 v{t+i}, v{t+i}, v{tl}')
            for i in range(4): E(f'v_cvt_pk_bf16_f32 v{t+8+i}, v{t+2*i}, v{t+2*i+1}')
            E(f'ds_write_b128 v{TMP}, {vr(t+8,4)} offset:{s*4096}')
            g.lg_issue()
    def o_load_frags():
        E(f'v_add_u32 v{TMP}, {XBUF}, v{VL16}')
        for i in range(16):
            E(f'ds_read_b128 {vr(S0+4*i,4)}, v{TMP} offset:{i*1024}')
            g.o_frag_last = g.lg_issue()

    E('s_barrier')
    for i in range(4, LA): issue_now('Q', i, False)
    if c.pf:
        npc = 9 if c.pf == 1 else c.pf_b
        if c.pf == 2:
            E(f's_and_b32 s58, {sB}, {c.pf_mask}')
            E(f's_cmp_eq_u32 s58, 0'); E('s_cbranch_scc1 L_nopf')
            E(f's_lshr_b32 s59, {sB}, 1')
            E(f's_lshl_b32 s59, s59, 2'); E(f's_add_u32 s59, s59, {sW}'); E(f's_mul_i32 s59, s59, {npc}')
            E(f's_add_u32 s58, s59, {npc}')
        elif c.pf == 3:
            E(f's_and_b32 s57, {sB}, 3')
            E(f's_cmp_eq_u32 s57, 0'); E('s_cbranch_scc1 L_nopf')
            E(f's_lshr_b32 s59, {sB}, 2'); E(f's_mul_i32 s59, s59, 144')
            E(f's_sub_u32 s56, s57, 1'); E(f's_mul_i32 s56, s56, s57'); E(f's_mul_i32 s56, s56, 12')
            E(f's_add_u32 s59, s59, s56')
            E(f's_mul_i32 s57, s57, 6')
            E(f's_mul_i32 s56, s57, {sW}'); E(f's_add_u32 s59, s59, s56')
            E(f's_add_u32 s58, s59, s57')
        else:
            E(f's_mov_b32 s59, {sB}')
            E(f's_lshl_b32 s59, s59, 2'); E(f's_add_u32 s59, s59, {sW}'); E(f's_mul_i32 s59, s59, {npc}')
            E(f's_add_u32 s58, s59, {npc}')
        E(f's_add_u32 m0, {sW4K}, {XBUF}')
        E('L_pf:')
        E(f's_cmp_ge_u32 s59, 576'); E('s_cbranch_scc1 L_pfo')
        E(f's_lshl_b32 s56, s59, 13'); E(f's_lshl_b32 s57, {sJ}, 10'); E(f's_add_u32 s56, s56, s57')
        E(f'buffer_load_dwordx4 v{VL16}, {sWQ}, s56 offen {c.pfflags} lds'.replace('  ', ' '))
        E('s_branch L_pfn')
        E('L_pfo:')
        E(f's_sub_u32 s56, s59, 576'); E(f's_lshl_b32 s56, s56, 10'); E(f's_mul_i32 s57, {sJ}, {4*128*1152}'); E(f's_add_u32 s56, s56, s57')
        E(f'buffer_load_dwordx4 v{VL16}, {sWO}, s56 offen {c.pfflags} lds'.replace('  ', ' '))
        E('L_pfn:')
        if c.pf_depth: E(f's_waitcnt vmcnt({c.pf_depth})')
        E('s_add_u32 s59, s59, 1'); E('s_cmp_lt_u32 s59, s58'); E('s_cbranch_scc1 L_pf')
        if c.pf_wait: E('s_waitcnt vmcnt(0)')
        E('L_nopf:')
    E(f's_mov_b32 {sFIRST}, 1')
    E(f's_mov_b32 {sLOOP}, 0')
    E('s_branch L_Q')

    seq = [('K', i, False) for i in range(8)] + [('Q', i, False) for i in range(9)] + [('V', i, False) for i in range(8)] + \
          [('O', i, False) for i in range(9)] + [('K', i, True) for i in range(8)]
    def st(i):
        if c.istamps: return
        if c.stamps and not c.fstamps: E(f's_memtime s[{72+2*i}:{73+2*i}]')
        if c.stamps and c.fstamps: E(f's_memrealtime s[{72+2*i}:{73+2*i}]')
    def vpos(vi, uu): return next(i for i, o in enumerate(vi) if o['uu'] == uu)
    groups = [exp_group(uu) if not c.xp_noexp else exp_group(uu)[16:] for uu in range(16)]
    E('L_K:')
    g.vm = [('K', i, False) for i in range(LA) for _ in range(4)] if 'K' not in c.skip_dma else []
    g.lg = []; g.slot_last_read = {}
    st(0)
    E(f'v_mov_b32 v{VM}, 0xff800000')
    g.stream(k_ops(seq, 0))
    g.flush_dma(); g.lg_drain()
    nq = c.q_groups
    if c.sm_in_v and not c.klast:
        E(f's_cmp_eq_u32 {sLOOP}, 3')
        E('s_cbranch_scc1 L_skipq')
    E('L_Q:')
    st(1)
    qi = q_ops(seq, 8)
    fl = max_finish()
    if not c.sm_in_v:
        for k, f in enumerate(fl): qi[3 + k]['fill'].append(f)
        distribute(qi, sum(groups[:nq], []), max(c.sm_lo, 3 + len(fl) + 1), len(qi))
    if c.xp_noq:
        for o in qi:
            o['mf'] = None
            if o.get('frag'): o['frag']['reads'] = [('s_nop 0 ; {d}', 4)]
    g.stream(qi)
    g.flush_dma(); g.lg_drain()
    E(f's_cmp_lg_u32 {sFIRST}, 0')
    E('s_cbranch_scc1 L_first_done')
    E('L_V:')
    st(2)
    vi = v_ops(seq, 17)
    if c.sm_in_v:
        vi[0]['fill'] += fl + groups[0] + groups[1]
        rest = [(None, f) for f in q_finalize()]
        allrest = [(uu, f) for uu in range(2, 16) for f in groups[uu]]
        lo, hi = 1, (c.sm_v_hi or vpos(vi, 15) - 3)
        for k, (uu, f) in enumerate(allrest):
            i = min(lo + (k * (hi - lo)) // len(allrest), vpos(vi, uu) - 2)
            vi[i]['fill'].append(f)
        distribute(vi, q_finalize(), len(vi) - 18, len(vi) - 1)
    else:
        distribute(vi, q_finalize(), 2, 18)
        allrest = [(uu, f) for uu in range(nq, 16) for f in groups[uu]]
        lo, hi = 2, max(c.sm_vhi, 4)
        for k, (uu, f) in enumerate(allrest):
            i = min(lo + (k * (hi - lo)) // len(allrest), vpos(vi, uu) - 2)
            vi[i]['fill'].append(f)
    def drop_next():
        if not c.olast:
            E(f's_cmp_eq_u32 {sLOOP}, 3')
            E('s_cselect_b32 s6, 0, s6')
        if not (c.klast and c.sm_in_v):
            E(f's_cmp_eq_u32 {sLOOP}, 2')
            E('s_cselect_b32 s14, 0, s14')
    vi[20]['fill'].append(drop_next)
    if c.dflags:
        def rdchk():
            E(f's_cmp_lg_u32 {sLOOP}, 3'); E('s_cbranch_scc1 L_nochk')
            E(f's_cmp_lg_u32 {sW}, 0'); E('s_cbranch_scc1 L_nochk')
            E(f's_lshl_b32 {sT2}, {sB}, 3'); E(f's_add_u32 {sT2}, {sT2}, 4')
            E(f'v_mov_b32 v{TMP+7}, 0')
            E(f'buffer_load_dword v{VCHK}, v{TMP+7}, {sDBG}, {sT2} offen sc1')
            E('L_nochk:')
        vi[24]['fill'].append(rdchk)
    g.stream(vi)
    g.flush_dma()
    st(3)
    if not c.skip_compute: o_finalize()
    if c.olast:
        E(f's_cmp_eq_u32 {sLOOP}, 3')
        E('s_cbranch_scc1 L_Olast')
        saved = (list(g.vm), list(g.lg), dict(g.slot_last_read), sid[0], g.tnext)
    oi = o_ops(seq, 25, (lambda: g.lg_drain()), (o_load_frags if not c.skip_compute else (lambda: None)))
    if not c.skip_compute: oi[0]['need'] = lambda: g.lg_wait(g.o_frag_last)
    def preg(j, h):
        k = 2 * j + h
        return 64 + 4 * k if k < 14 else 128 + 4 * (k - 14)
    def conv(j, h):
        t = 120
        L_ = []
        for k in range(2):
            for i in range(4): L_.append(f'v_accvgpr_read_b32 v{t + 4*k + i}, a{AOUT + 4*(4*j + 2*h + k) + i}')
        d = preg(j, h)
        for i in range(4): L_.append(f'v_cvt_pk_bf16_f32 v{d+i}, v{t+2*i}, v{t+2*i+1}')
        return L_
    def mk_store(j, h):
        def f():
            E(f's_add_u32 {sT2}, {sPB}, {(2*j+h)*4096}')
            E(f'buffer_store_dwordx4 {vr(preg(j,h),4)}, v{VPART}, {sWS}, {sT2} offen sc1')
        return f
    post = []
    if not c.skip_compute and not c.olast:
        for j in range(9):
            blk = conv(j, 0) + conv(j, 1)
            pos = 16 * (j + 1) + 4
            if pos < len(oi) and c.conv_inline:
                def cb(blk=blk, j=j):
                    E(f's_cmp_lg_u32 {sLOOP}, 3'); E(f's_cbranch_scc1 L_cv{j}')
                    for t in blk[:12]: E(t)
                    if c.inline_store: mk_store(j, 0)()
                    for t in blk[12:]: E(t)
                    if c.inline_store: mk_store(j, 1)()
                    if c.inline_b:
                        E(f's_bitcmp1_b32 {sB}, 0'); E(f's_cbranch_scc0 L_cv{j}')
                        mk_store(j, 0)(); mk_store(j, 1)()
                    E(f'L_cv{j}:')
                oi[pos]['fill'].append(cb)
            else:
                post += blk
    g.stream(oi)
    g.flush_dma(); g.lg_drain()
    st(4)
    if not c.skip_dma: assert g.vm[-4*LA:] == [('K', i, True) for i in range(LA) for _ in range(4)], g.vm
    E(f's_mov_b32 {sKV}, {sKVN}')
    E(f's_add_u32 {sKVN}, {sKVN}, 131072')
    if not c.wfixed:
        E(f's_add_u32 {sWQO}, {sWQO}, 256')
        E(f's_add_u32 {sWOO}, {sWOO}, {128*1152}')
    E(f's_add_u32 {sLOOP}, {sLOOP}, 1')
    if c.stamps:
        E(f's_cmp_eq_u32 {sLOOP}, 3'); E('s_cbranch_scc0 L_ns3'); E('s_memrealtime s[64:65]'); E('L_ns3:')
        if c.istamps:
            for t in range(1, 5):
                E(f's_cmp_eq_u32 {sLOOP}, {t}'); E(f's_cbranch_scc0 L_is{t}'); E(f's_memrealtime s[{72+2*t}:{73+2*t}]'); E(f'L_is{t}:')
    if c.sm_in_v and c.klast:
        E(f's_cmp_lt_u32 {sLOOP}, 3')
        E('s_cbranch_scc1 L_K')
        if c.exit_at != 2:
            E(f's_cmp_eq_u32 {sLOOP}, 3')
            E('s_cbranch_scc1 L_Klast')
    else:
        E(f's_cmp_lt_u32 {sLOOP}, {4 if c.exit_at != 2 else 3}')
        E('s_cbranch_scc1 L_K')
    if c.exit_at == 2: E('s_branch L_stamps')
    E('s_branch L_exit')
    if c.sm_in_v and c.klast:
        E('L_Klast:')
        g.vm = [('K', i, False) for i in range(LA) for _ in range(4)] if 'K' not in c.skip_dma else []
        g.lg = []; g.slot_last_read = {}; g.pending = []
        st(0)
        E(f'v_mov_b32 v{VM}, 0xff800000')
        lst = [('K', i, False) for i in range(LA, 8)] + [('V', i, False) for i in range(LA)]
        g.stream(k_ops(seq, 0, {p: [lst[p]] for p in range(8)}))
        g.flush_dma(); g.lg_drain()
        if not c.skip_dma: assert g.vm[-4*LA:] == [('V', i, False) for i in range(LA) for _ in range(4)], g.vm
        E('s_branch L_V')
    if c.sm_in_v and not c.klast:
        E('L_skipq:')
        E('s_barrier')
        for i in range(LA):
            for f in g.dma_ops('V', i, False): f()
        E('s_branch L_V')
    if c.olast:
        E('L_Olast:')
        if c.wgate == 1:
            E(f's_bitcmp1_b32 {sB}, 0'); E('s_cbranch_scc0 L_nosig')
            E(f's_cmp_lg_u32 {sW}, 0'); E('s_cbranch_scc1 L_nosig')
            E(f's_sub_u32 {sT2}, s2, 8'); E(f's_lshl_b32 {sT2}, {sT2}, 7'); E(f's_add_u32 {sT2}, {sT2}, {0x1400000 + 32}')
            E(f'v_mov_b32 v{TMP+4}, 1'); E(f'v_mov_b32 v{TMP+5}, 0')
            E(f'v_cmp_eq_u32 vcc, 0, v{VL16}')
            E('s_and_saveexec_b64 s[54:55], vcc')
            E(f'buffer_store_dword v{TMP+4}, v{TMP+5}, {sWS}, {sT2} offen sc1')
            E('s_mov_b64 exec, s[54:55]')
            E('L_nosig:')
        g.vm, g.lg, g.slot_last_read, sid[0], g.tnext = list(saved[0]), list(saved[1]), dict(saved[2]), saved[3], saved[4]
        g.pending = []
        seq_l = seq[:34]
        ol = o_ops(seq_l, 25, (lambda: g.lg_drain()), (o_load_frags if not c.skip_compute else (lambda: None)))
        if not c.skip_compute:
            ol[0]['need'] = lambda: g.lg_wait(g.o_frag_last)
            for j in range(8):
                blk = conv(j, 0) + conv(j, 1)
                lo = 16 * (j + 1) + 2
                distribute(ol, blk, lo, lo + 13)
                def stb(j=j):
                    if c.xp_notail == 2: return
                    if c.inline_store:
                        mk_store(j, 0)(); mk_store(j, 1)()
                    elif c.inline_b:
                        E(f's_bitcmp1_b32 {sB}, 0'); E(f's_cbranch_scc0 L_sb{j}')
                        mk_store(j, 0)(); mk_store(j, 1)()
                        E(f'L_sb{j}:')
                ol[lo + 13]['fill'].append(stb)
            post = conv(8, 0) + conv(8, 1)
        g.stream(ol)
        g.flush_dma(); g.lg_drain()
        st(4)
        E('s_branch L_exit')
    E('L_first_done:')
    E('s_nop 7')
    for t in q_finalize(): E(t)
    E('s_mov_b32 s88, s8'); E('s_mov_b32 s89, s9')
    E(f'v_mov_b32 v{VVS}, v{VV}')
    E(f's_add_u32 {sWQO}, {sWQO}, 256')
    E(f's_add_u32 {sKVN}, {sKVN}, 131072')
    E(f's_mov_b32 {sFIRST}, 0')
    if c.dflags:
        E(f's_cmp_lg_u32 {sW}, 0'); E('s_cbranch_scc1 L_noid')
        E(f's_lshl_b32 {sT2}, {sB}, 3'); E(f's_add_u32 {sT2}, {sT2}, 4')
        E(f'v_mov_b32 v{TMP}, 1'); E(f'v_mov_b32 v{TMP+1}, 0')
        E(f'v_cmp_eq_u32 vcc, 0, v{VL16}')
        E('s_and_saveexec_b64 s[54:55], vcc')
        E(f'buffer_atomic_add v{TMP}, v{TMP+1}, {sDBG}, {sT2} offen sc1')
        E('s_mov_b64 exec, s[54:55]')
        E('L_noid:')
    if c.stamps: E('s_memrealtime s[62:63]')
    if c.istamps: E('s_memrealtime s[72:73]')
    if c.exit_at == 1: E('s_branch L_stamps')
    E('s_branch L_K')
    E('L_exit:')
    E('s_nop 7')
    for t in post: E(t)
    def gate_code():
        E(f's_cmp_lg_u32 {sW}, 0'); E('s_cbranch_scc1 L_gate_ok')
        E(f's_lshl_b32 {sT0}, s2, 7'); E(f's_add_u32 {sT0}, {sT0}, {0x1400000 + 32}')
        E(f'v_mov_b32 v{TMP+5}, 0'); E(f's_mov_b32 {sT1}, 0')
        E('L_gate:')
        E(f'buffer_load_dword v{TMP+4}, v{TMP+5}, {sWS}, {sT0} offen sc1')
        E('s_waitcnt vmcnt(0)')
        E(f'v_readfirstlane_b32 {sT3}, v{TMP+4}')
        E(f's_cmp_eq_u32 {sT3}, 1'); E('s_cbranch_scc1 L_gate_ok')
        E('s_sleep 2')
        E(f's_add_u32 {sT1}, {sT1}, 1'); E(f's_cmp_lt_u32 {sT1}, 48'); E('s_cbranch_scc1 L_gate')
        E('L_gate_ok:')
        E('s_barrier')
    if c.xp_notail == 2:
        pass
    elif c.store_mode == 1 and not c.skip_compute:
        if c.inline_b:
            for h in range(2): mk_store(8, h)()
            E(f's_bitcmp1_b32 {sB}, 0'); E('s_cbranch_scc1 L_stored')
            if c.wgate: gate_code()
            for j in range(8):
                for h in range(2): mk_store(j, h)()
            E('L_stored:')
        else:
            if c.wgate:
                E(f's_bitcmp1_b32 {sB}, 0'); E('s_cbranch_scc1 L_nogate')
                gate_code()
                E('L_nogate:')
            for j in range(9):
                if c.inline_store and c.conv_inline and j < 8: continue
                for h in range(2): mk_store(j, h)()
    return g, E

def reduce_code(E, c):
    E(f's_mul_i32 {sT0}, {sJ}, 9')
    E(f's_add_u32 {sT0}, {sT0}, {sW}')
    E(f's_lshl_b32 {sT1}, {sB}, 3')
    E(f's_mul_i32 {sT1}, {sT1}, {72*1024}')
    fl = '' if c.two_kernel else 'sc1'
    def load_piece(k):
        E(f's_add_u32 {sT2}, {sT0}, {4*k}')
        E(f's_lshl_b32 {sT2}, {sT2}, 10')
        E(f's_add_u32 {sT2}, {sT2}, {sT1}')
        for src in range(8):
            E(f'buffer_load_dwordx4 {vr(32*k + 4*src, 4)}, v{VL16}, {sWS}, {sT2} offen {fl}')
            if src < 7: E(f's_add_u32 {sT2}, {sT2}, {72*1024}')
    def sum_store(k):
        b = 32 * k
        if c.dot_reduce:
            for i in range(8): E(f'v_mov_b32 v{100+i}, 0')
            for src in range(8):
                for d in range(4):
                    E(f'v_dot2c_f32_bf16 v{100+2*d}, v{b+4*src+d}, v112')
                    E(f'v_dot2c_f32_bf16 v{101+2*d}, v{b+4*src+d}, v113')
            E('s_nop 2')
        else:
            for d in range(4):
                E(f'v_lshlrev_b32 v{100+2*d}, 16, v{b+d}')
                E(f'v_and_b32 v{101+2*d}, 0xffff0000, v{b+d}')
            for src in range(1, 8):
                for d in range(4):
                    E(f'v_lshlrev_b32 v{108+2*d}, 16, v{b+4*src+d}')
                    E(f'v_and_b32 v{109+2*d}, 0xffff0000, v{b+4*src+d}')
                for i in range(8): E(f'v_add_f32 v{100+i}, v{100+i}, v{108+i}')
        for d in range(4): E(f'v_cvt_pk_bf16_f32 v{116+4*k+d}, v{100+2*d}, v{101+2*d}')
        E(f's_add_u32 {sT2}, {sT0}, {4*k}')
        E(f's_lshr_b32 {sT3}, {sT2}, 3')
        E(f's_lshl_b32 {sT3}, {sT3}, 2')
        E(f's_and_b32 s56, {sT2}, 3')
        E(f's_add_u32 {sT3}, {sT3}, s56')
        E(f's_lshl_b32 {sT3}, {sT3}, 5')
        E(f's_lshr_b32 s56, {sT2}, 2')
        E(f's_and_b32 s56, s56, 1')
        E(f's_lshl_b32 s56, s56, 5')
        E(f's_lshl_b32 s57, {sB}, 6')
        E(f's_add_u32 s56, s56, s57')
        E(f's_mul_i32 s56, s56, 1152')
        E(f's_add_u32 s56, s56, {sT3}')
        E(f'buffer_store_dwordx2 {vr(116+4*k,2)}, v{VOUT}, {sOUT}, s56 offen {c.outflags}')
        E(f's_add_u32 s56, s56, {16*1152}')
        E(f'buffer_store_dwordx2 {vr(118+4*k,2)}, v{VOUT}, {sOUT}, s56 offen {c.outflags}')
    E('v_mov_b32 v112, 0x00003f80'); E('v_mov_b32 v113, 0x3f800000')
    load_piece(0); load_piece(1)
    E(f's_cmp_lg_u32 {sW}, 0')
    E('s_cbranch_scc1 L_two')
    load_piece(2)
    E('L_two:')
    E('s_waitcnt vmcnt(8)')
    sum_store(0)
    E('s_waitcnt vmcnt(2)')
    sum_store(1)
    E(f's_cmp_lg_u32 {sW}, 0')
    E('s_cbranch_scc1 L_red_done')
    sum_store(2)
    E('L_red_done:')

def finish(g, E, c):
    E('s_waitcnt vmcnt(0)')
    if c.stamps: E('s_memrealtime s[66:67]')
    if not c.two_kernel and c.xp_notail != 2:
        E('s_barrier')
        E(f's_lshl_b32 {sT0}, {sB}, 3')
        E(f's_cmp_lg_u32 {sW}, 0')
        E('s_cbranch_scc1 L_wait_done')
        E(f'v_mov_b32 v{TMP}, 1')
        E(f'v_mov_b32 v{TMP+1}, 0')
        if c.dflags:
            E(f's_add_u32 {sT0}, {sT0}, 4')
            E(f's_mov_b32 {sT1}, 0')
            E('L_chk:')
            E(f'v_readfirstlane_b32 {sT2}, v{VCHK}')
            E(f's_cmp_ge_u32 {sT2}, 8'); E('s_cbranch_scc1 L_chk_ok')
            E(f'buffer_load_dword v{VCHK}, v{TMP+1}, {sDBG}, {sT0} offen sc1')
            E('s_waitcnt vmcnt(0)')
            E(f's_add_u32 {sT1}, {sT1}, 1'); E(f's_cmp_lt_u32 {sT1}, 0x40000'); E('s_cbranch_scc1 L_chk')
            E('L_chk_ok:')
            E(f's_lshl_b32 {sT3}, {sB}, 10'); E(f's_lshl_b32 {sT2}, {sJ}, 2'); E(f's_add_u32 {sT3}, {sT3}, {sT2}'); E(f's_add_u32 {sT3}, {sT3}, 0x1400000')
            E(f'v_lshlrev_b32 v{TMP+1}, 3, v{VL16}')
            E(f'v_cmp_gt_u32 vcc, 128, v{VL16}')
            E('s_and_saveexec_b64 s[54:55], vcc')
            E(f'buffer_store_dword v{TMP}, v{TMP+1}, {sWS}, {sT3} offen sc1')
            E('s_mov_b64 exec, s[54:55]')
            E(f's_lshl_b32 {sT0}, s2, 7'); E(f's_add_u32 {sT0}, {sT0}, 0x1400000')
            E(f'v_lshrrev_b32 v{TMP+1}, 2, v{VL16}')
            E(f'v_and_b32 v{TMP+1}, 31, v{TMP+1}')
            E(f's_mov_b32 {sT1}, 0')
            E('L_poll:')
            E(f'buffer_load_dword v{TMP+2}, v{TMP+1}, {sWS}, {sT0} offen sc1')
            E('s_waitcnt vmcnt(0)')
            E(f'v_cmp_eq_u32 vcc, 1, v{TMP+2}')
            E(f's_cmp_eq_u64 vcc, -1')
            E('s_cbranch_scc1 L_wait_done')
            E(f's_sleep 1')
            E(f's_add_u32 {sT1}, {sT1}, 1')
            E(f's_cmp_lt_u32 {sT1}, 0x40000')
            E('s_cbranch_scc1 L_poll')
        elif c.golines:
            E(f'v_cmp_eq_u32 vcc, 0, v{VL16}')
            E('s_and_saveexec_b64 s[54:55], vcc')
            E(f'buffer_atomic_add v{TMP}, v{TMP+1}, {sDBG}, {sT0} offen sc0 sc1')
            E('s_waitcnt vmcnt(0)')
            E('s_mov_b64 exec, s[54:55]')
            E(f'v_readfirstlane_b32 {sT2}, v{TMP}')
            E(f's_and_b32 {sT2}, {sT2}, 7')
            E(f's_cmp_eq_u32 {sT2}, 7')
            E('s_cbranch_scc0 L_notlast')
            E(f's_lshl_b32 {sT3}, {sB}, 10'); E(f's_add_u32 {sT3}, {sT3}, 0x1400000')
            E(f'v_lshlrev_b32 v{TMP+1}, 3, v{VL16}')
            E(f'v_mov_b32 v{TMP}, 1')
            E(f'v_cmp_gt_u32 vcc, 128, v{VL16}')
            E('s_and_saveexec_b64 s[54:55], vcc')
            E(f'buffer_store_dword v{TMP}, v{TMP+1}, {sWS}, {sT3} offen sc1')
            E('s_mov_b64 exec, s[54:55]')
            E('s_branch L_wait_done')
            E('L_notlast:')
            E(f's_lshl_b32 {sT0}, s2, 7'); E(f's_add_u32 {sT0}, {sT0}, 0x1400000')
            E(f'v_mov_b32 v{TMP+1}, 0')
            E(f's_mov_b32 {sT1}, 0')
            E('L_poll:')
            E(f'buffer_load_dword v{TMP+2}, v{TMP+1}, {sWS}, {sT0} offen sc1')
            E('s_waitcnt vmcnt(0)')
            E(f'v_readfirstlane_b32 {sT2}, v{TMP+2}')
            E(f's_cmp_eq_u32 {sT2}, 1')
            E('s_cbranch_scc1 L_wait_done')
            E(f's_sleep 2')
            E(f's_add_u32 {sT1}, {sT1}, 1')
            E(f's_cmp_lt_u32 {sT1}, 0x40000')
            E('s_cbranch_scc1 L_poll')
        else:
            E(f'v_cmp_eq_u32 vcc, 0, v{VL16}')
            E('s_and_saveexec_b64 s[54:55], vcc')
            E(f'buffer_atomic_add v{TMP}, v{TMP+1}, {sDBG}, {sT0} offen sc1')
            E('s_mov_b64 exec, s[54:55]')
            E(f's_mov_b32 {sT1}, 0')
            E('L_poll:')
            E(f'buffer_load_dword v{TMP+2}, v{TMP+1}, {sDBG}, {sT0} offen sc1')
            E('s_waitcnt vmcnt(0)')
            E(f'v_readfirstlane_b32 {sT2}, v{TMP+2}')
            E(f's_cmp_ge_u32 {sT2}, 8')
            E('s_cbranch_scc1 L_wait_done')
            E(f's_sleep {min(c.poll_sleep, 8)}')
            E(f's_add_u32 {sT1}, {sT1}, 1')
            E(f's_cmp_lt_u32 {sT1}, 0x40000')
            E('s_cbranch_scc1 L_poll')
        E('L_wait_done:')
        E('s_barrier')
        if c.stamps: E('s_memrealtime s[68:69]')
        if not c.xp_notail: reduce_code(E, c)
    if c.stamps:
        E('L_stamps:')
        E('s_waitcnt vmcnt(0)')
        E('s_memrealtime s[70:71]')
        E('s_waitcnt lgkmcnt(0)')
        for i in range(12): E(f'v_mov_b32 v{i}, s{60+i}')
        for i in range(4): E(f'v_mov_b32 v{12+i}, s{72+2*i}')
        E('v_mov_b32 v16, s80'); E('v_mov_b32 v17, s82'); E('v_mov_b32 v18, s84')
        E(f's_lshl_b32 {sT0}, s2, 2'); E(f's_add_u32 {sT0}, {sT0}, {sW}'); E(f's_lshl_b32 {sT0}, {sT0}, 7'); E(f's_add_u32 {sT0}, {sT0}, 0x10000000')
        if c.bstamps:
            E(f's_lshl_b32 {sT1}, s2, 2'); E(f's_add_u32 {sT1}, {sT1}, {sW}'); E(f's_lshl_b32 {sT1}, {sT1}, 9'); E(f's_add_u32 {sT1}, {sT1}, 0x11000000')
            E(f'v_lshrrev_b32 v21, 2, v{VL16}')
            E(f'buffer_store_dword v246, v21, {sWS}, {sT1} offen')
            E(f'buffer_store_dword v247, v21, {sWS}, {sT1} offen offset:256')
        E(f'v_cmp_eq_u32 vcc, 0, v{VL16}')
        E('s_and_saveexec_b64 s[54:55], vcc')
        E('v_mov_b32 v20, 0')
        for i in range(4): E(f'buffer_store_dwordx4 {vr(4*i,4)}, v20, {sWS}, {sT0} offen offset:{16*i}')
        E(f'buffer_store_dwordx3 v[16:18], v20, {sWS}, {sT0} offen offset:64')
    if c.dbgspan:
        E('s_waitcnt vmcnt(0)')
        E('s_memrealtime s[70:71]')
        E('s_waitcnt lgkmcnt(0)')
        E(f's_cmp_lg_u32 {sW}, 0'); E('s_cbranch_scc1 L_done')
        E('s_not_b32 s60, s60')
        E('v_mov_b32 v1, s60'); E('v_mov_b32 v2, s70'); E('v_mov_b32 v3, 0')
        E(f'v_cmp_eq_u32 vcc, 0, v{VL16}')
        E('s_and_saveexec_b64 s[54:55], vcc')
        E(f'buffer_atomic_umax v1, v3, {sDBG}, 0 offen offset:0 sc1')
        E(f'buffer_atomic_umax v2, v3, {sDBG}, 0 offen offset:8 sc1')
    E('L_done:')
    E('s_endpgm')

DESC = '''.section .rodata,"a"
.p2align 6
.amdhsa_kernel {name}
  .amdhsa_next_free_vgpr {vg}
  .amdhsa_next_free_sgpr 100
  .amdhsa_accum_offset {acc}
  .amdhsa_group_segment_fixed_size 0
  .amdhsa_kernarg_size 64
  .amdhsa_user_sgpr_count 2
  .amdhsa_user_sgpr_kernarg_segment_ptr 1
  .amdhsa_system_sgpr_workgroup_id_x 1
.end_amdhsa_kernel
'''
def gen(cfg=None):
    c = cfg or Cfg()
    g, E = build(c)
    finish(g, E, c)
    body = g.a.finalize()
    head = f'''; fused MHA block: q-projection + attention + out-projection, one workgroup per (batch, 4 heads)
; @launch grid=(256,1,1) block=(256,1,1) lds=163840
.amdgcn_target "amdgcn-amd-amdhsa--gfx950"
.text
.globl {KNAME}
.p2align 8
.type {KNAME},@function
{KNAME}:
'''
    return head + body + DESC.format(name=KNAME, vg=512, acc=256), g

if __name__ == '__main__':
    s, g = gen()
    out = sys.argv[1] if len(sys.argv) > 1 else 'standalone__mha_block_cached__near_ridge.s'
    open(out, 'w').write(s)
    print('instructions', len(g.a.ins), 'nops inserted', g.a.nnop, 'bytes', len(s))
```

```python
import sys
sys.path.insert(0, 'work')
import importlib
import gen3 as gen
def mk(name, **kw):
    c = gen.Cfg()
    for k, v in kw.items():
        assert hasattr(c, k), k
        setattr(c, k, v)
    s, g = gen.gen(c)
    open(f'work/{name}.s', 'w').write(s)
    print(name, 'ins', len(g.a.ins), 'nops', g.a.nnop)
if __name__ == '__main__':
    kw = {}
    for a in sys.argv[2:]:
        k, v = a.split('=', 1)
        try: v = eval(v)
        except Exception: pass
        kw[k] = v
    mk(sys.argv[1], **kw)
```

```python
import sys, struct, math
sys.path.insert(0, 'work')
from asmlib import Asm

KNAME = "standalone__mha_block_cached__near_ridge_kernel"
MF = "v_mfma_f32_16x16x32_bf16"
SLOT = 16384
XBUF = 9 * SLOT

S0 = 0; QN = 128; T0 = 160; NT = 12
VK, VV = 208, 209
VWQ = 210; VWO = 214
POOL = 218
KA0, VB0, QC0, OD0 = 226, 227, 228, 229
VM, VMC = 230, 231
TMP = 232
VL16 = 240; VPART = 241; VOA = 242; VOUT = 243
AOUT = 0; AX = 144; AO = 216; AL = 248; AONE = 252
sK, sV, sWQ, sWO, sX, sWS, sOUT, sDBG = 's[4:7]', 's[8:11]', 's[12:15]', 's[16:19]', 's[20:23]', 's[24:27]', 's[28:31]', 's[32:35]'
sW, sW4K, sB, sJ = 's36', 's37', 's38', 's39'
sKV, sKVN, sWQO, sWOO, sLOOP, sC = 's40', 's41', 's42', 's43', 's44', 's45'
sODD = 's[46:47]'
sT0, sT1, sT2, sT3 = 's48', 's49', 's50', 's51'
sPB = 's52'
sVS = 's[88:91]'
sFIRST = 's53'
VVS = 244
ROT0 = 92
VCHK = 245

def vr(a, n=1): return f'v{a}' if n == 1 else f'v[{a}:{a+n-1}]'
def ar(a, n=1): return f'a{a}' if n == 1 else f'a[{a}:{a+n-1}]'

class Cfg:
    LA = 5
    kflags = None; vflags = None
    kvflags = 'nt'; wflags = ''; xflags = ''; pfflags = ''
    ra_b = 5; ra_t = 4; ra_o = 2
    pairwait = True
    q_groups = 10
    stamps = False
    skip_dma = ''; skip_compute = False; wfixed = False
    pf = 2; pf_b = 18; pf_mask = 1
    store_mode = 1
    poll_sleep = 16
    exit_at = 0
    k_early = 0
    two_kernel = False
    tlbwarm = False
    conv_inline = True
    codepf = True
    xorder = 1
    xdirect = True
    wgate = 1
    xp_nox = False
    xp_notail = 0
    pairbar = False
    sm_v_hi = 0
    olast = True
    klast = False
    dma_early = False
    bstamps = False
    dbgspan = False
    rot = 0
    xp_noexp = False
    xp_noq = False
    xp_halfv = False
    sm_in_v = True
    inline_store = False
    inline_b = False
    dflags = True
    dot_reduce = True
    outflags = ''
    istamps = False
    pf_first = False
    pf_wait = True
    pf_depth = 0
    golines = True
    fstamps = False
    sm_lo = 48
    sm_vhi = 32

RING = {'K': list(range(8)), 'Q': [8] + list(range(8)), 'V': list(range(8)), 'O': [8] + list(range(8))}

class G:
    def __init__(self, cfg):
        self.c = cfg; self.a = Asm()
        self.vm = []; self.lg = []; self.lgid = 0; self.tnext = 0; self.uid = 0
        self.slot_last_read = {}; self.pending = []; self.bk = 0
    def E(self, t): self.a(t)
    def vm_issue(self, tag): self.vm.append(tag)
    def vm_wait(self, pred):
        idx = [i for i, t in enumerate(self.vm) if pred(t)]
        if not idx: return
        n = min(len(self.vm) - 1 - max(idx), 63)
        self.E(f's_waitcnt vmcnt({n})')
        self.vm = self.vm[len(self.vm) - n:] if n else []
    def lg_issue(self):
        self.lgid += 1; self.lg.append(self.lgid); return self.lgid
    def lg_wait(self, i):
        if i not in self.lg: return
        n = min(len(self.lg) - 1 - self.lg.index(i), 15)
        self.E(f's_waitcnt lgkmcnt({n})')
        self.lg = self.lg[len(self.lg) - n:] if n else []
    def lg_drain(self):
        if self.lg: self.E('s_waitcnt lgkmcnt(0)'); self.lg = []

    def dma_ops(self, kind, idx, nxt, ring=None):
        c = self.c
        if ring is None: ring = RING[kind][idx]
        base = ring * SLOT
        if kind in ('K', 'V'):
            srd = sK if kind == 'K' else sVS
            voff = [VK if kind == 'K' else VVS] * 4
            sb = sKVN if nxt else sKV; so = idx * SLOT; fl = c.kvflags
            if kind == 'K' and c.kflags is not None: fl = c.kflags
            if kind == 'V' and c.vflags is not None: fl = c.vflags
        elif kind == 'Q':
            srd = sWQ; voff = [VWQ + p for p in range(4)]; sb = sWQO; so = idx * 64 * 8192; fl = c.wflags
        else:
            srd = sWO; voff = [VWO + p for p in range(4)]; sb = sWOO; so = idx * 128; fl = c.wflags
        tag = (kind, idx, nxt)
        st = sT0 if (self.uid & 1) == 0 else sT1
        self.uid += 1
        if kind in ('K', 'V') and c.rot: so = f's{64 + 0 + idx}' if False else f's{ROT0 + idx}'
        def piece(p):
            def f():
                if p == 0:
                    self.E(f's_add_u32 m0, {sW4K}, {base}')
                    self.E(f's_add_u32 {st}, {sb}, {so}')
                off = f' offset:{p*1024}' if p else ''
                if kind not in c.skip_dma:
                    self.E(f'buffer_load_dwordx4 {vr(voff[p])}, {srd}, {st} offen{off} {fl} lds'.replace('  ', ' '))
                    self.vm_issue(tag)
            return f
        return [piece(p) for p in range(4)]
    def flush_dma(self, k=99):
        while self.pending and k > 0:
            self.pending.pop(0)(); k -= 1
    def slot_sync(self, sid, tag, issue, extra=None):
        lr = self.slot_last_read.get(sid - 2)
        if lr is not None: self.lg_wait(lr)
        if extra: extra()
        if self.c.bstamps:
            k = self.bk; self.bk += 1
            self.E(f's_memtime s[{92 + 2*(k&1)}:{93 + 2*(k&1)}]')
        self.vm_wait(lambda t: t == tag)
        self.E('s_barrier')
        if self.c.bstamps:
            self.E(f's_memtime s[{96 + 2*(k&1)}:{97 + 2*(k&1)}]')
            if k > 0:
                self.E(f'v_writelane_b32 v246, s{92 + 2*((k-1)&1)}, {(k-1) % 64}')
                self.E(f'v_writelane_b32 v247, s{96 + 2*((k-1)&1)}, {(k-1) % 64}')
        for it in issue: self.pending += self.dma_ops(*it)

    def stream(self, ops):
        frags = []
        for i, o in enumerate(ops):
            if o.get('frag'):
                o['fi'] = len(frags); frags.append(o['frag'])
            else:
                o['fi'] = len(frags) - 1 if o.get('mf') and o.get('usefrag', True) else None
        rq = []
        for fi, f in enumerate(frags):
            for k in range(len(f['reads'])): rq.append((fi, k))
        rp = 0
        skip = self.c.skip_compute
        def issue_read():
            nonlocal rp
            fi, k = rq[rp]; f = frags[fi]
            if k == 0:
                if f.get('pre'): f['pre']()
                f['T'] = T0 + 4 * (self.tnext % NT); self.tnext += 1
            tmpl, w = f['reads'][k]
            if not skip:
                d = f['T'] + (2 * k if w == 2 else 0)
                self.E(tmpl.format(d=vr(d, w)))
                f['last'] = self.lg_issue()
                if f.get('slot') is not None: self.slot_last_read[f['slot']] = f['last']
            rp += 1
        for i, o in enumerate(ops):
            cur = o['fi'] if o['fi'] is not None else -1
            if o.get('dma'): self.flush_dma(o['dma'])
            if cur >= 0:
                ra = frags[cur].get('ra', 6)
            else:
                ra = 0
            target = cur + ra
            maxr = o.get('maxr', 2) + 1
            if i == 0: maxr = 99
            n = 0
            while rp < len(rq) and (rq[rp][0] <= cur or (rq[rp][0] <= target and n < maxr and len(self.lg) < 14)):
                issue_read(); n += 1
            if o.get('need'): o['need']()
            if cur >= 0 and o.get('mf') and not skip:
                f = frags[cur]
                if f['last'] in self.lg:
                    tgt = f['last']
                    if self.c.pairwait and cur + 1 < len(frags) and frags[cur + 1].get('last') in self.lg and frags[cur + 1].get('slot') is not None:
                        tgt = frags[cur + 1]['last']
                    self.lg_wait(tgt)
            for f in o.get('fill', []):
                if callable(f): f()
                elif not skip: self.E(f)
            if o.get('mf') and not skip:
                self.E(o['mf'](frags[cur]['T'] if cur >= 0 else None))
        assert rp == len(rq)

def build(cfg):
    g = G(cfg); E = g.E; c = cfg
    LA = c.LA
    if c.stamps or c.dbgspan: E('s_memrealtime s[60:61]')
    E('s_cmp_ge_u32 s2, 256')
    E('s_cbranch_scc1 L_done')
    for dst, off in ((20, 0), (4, 8), (8, 16), (12, 24), (16, 32), (28, 40), (32, 48), (24, 56)):
        E(f's_load_dwordx2 s[{dst}:{dst+1}], s[0:1], {off}')
    if c.codepf:
        E('s_getpc_b64 s[56:57]')
        E('L_pc:')
        E('v_lshlrev_b32 v113, 7, v0')
        E('v_mov_b32 v115, s57')
        E('v_add_co_u32 v114, vcc, s56, v113')
        E('v_addc_co_u32 v115, vcc, 0, v115, vcc')
        E('v_cmp_gt_u32 vcc, L_done-L_pc, v113')
        E('s_and_saveexec_b64 s[54:55], vcc')
        E('s_cbranch_execz L_cpf_skip')
        E('global_load_dword v116, v[114:115], off')
        E('L_cpf_skip:')
        E('s_mov_b64 exec, s[54:55]')
    L, C_, G_, RR, CC, POS, X, Y = 100, 101, 102, 103, 104, 106, 107, 108
    E(f'v_and_b32 v{L}, 63, v0')
    E(f'v_lshrrev_b32 v{X}, 6, v0')
    E(f'v_readfirstlane_b32 {sW}, v{X}')
    E(f'v_and_b32 v{C_}, 15, v{L}')
    E(f'v_lshrrev_b32 v{G_}, 4, v{L}')
    E(f'v_lshrrev_b32 v{RR}, 2, v{L}')
    E(f'v_and_b32 v{RR}, 3, v{RR}')
    E(f'v_and_b32 v{CC}, 3, v{L}')
    E(f's_lshl_b32 {sW4K}, {sW}, 12')
    E(f's_and_b32 {sJ}, s2, 7')
    E(f's_lshr_b32 {sB}, s2, 3')
    E(f'v_lshlrev_b32 v{VL16}, 4, v{L}')
    E(f's_lshl_b32 {sT0}, {sW}, 2')
    E(f'v_add_u32 v{X}, {sT0}, v{G_}')
    E(f'v_xor_b32 v{X}, v{X}, v{C_}')
    E(f'v_lshlrev_b32 v{X}, 4, v{X}')
    E(f'v_lshl_add_u32 v{X}, v{G_}, 8, v{X}')
    E(f'v_add_u32 v{VK}, {sW4K}, v{X}')
    E(f's_and_b32 {sT1}, {sW}, 1')
    E(f's_lshl_b32 {sT1}, {sT1}, 3')
    E(f'v_lshlrev_b32 v{X}, 1, v{G_}')
    E(f'v_or_b32 v{X}, {sT1}, v{X}')
    E(f'v_xor_b32 v{X}, v{X}, v{C_}')
    E(f'v_lshlrev_b32 v{X}, 4, v{X}')
    E(f'v_lshl_add_u32 v{X}, v{G_}, 8, v{X}')
    E(f'v_add_u32 v{VV}, {sW4K}, v{X}')
    E(f'v_and_b32 v{X}, 1, v{G_}')
    E(f'v_lshrrev_b32 v{Y}, 1, v{G_}')
    E(f'v_lshl_or_b32 v{X}, v{Y}, 2, v{X}')
    E(f'v_or_b32 v{X}, {sT1}, v{X}')
    E(f'v_xor_b32 v{X}, v{X}, v{C_}')
    E(f'v_lshlrev_b32 v{X}, 4, v{X}')
    E(f'v_lshl_add_u32 v{X}, v{G_}, 13, v{X}')
    E(f's_lshl_b32 {sT2}, {sW}, 17')
    E(f'v_add_u32 v{VWQ}, {sT2}, v{X}')
    for p in range(1, 4): E(f'v_add_u32 v{VWQ+p}, {p*(32768-1024)}, v{VWQ}')
    E(f'v_lshrrev_b32 v{X}, 3, v{L}')
    E(f'v_and_b32 v{Y}, 6, v{X}')
    E(f'v_and_b32 v{POS}, 7, v{L}')
    E(f'v_xor_b32 v{Y}, v{Y}, v{POS}')
    E(f'v_lshlrev_b32 v{Y}, 4, v{Y}')
    E(f'v_mul_u32_u24 v{X}, 1152, v{X}')
    E(f'v_add_u32 v{X}, v{X}, v{Y}')
    E(f's_mul_i32 {sT2}, {sW}, {32*1152}')
    E(f'v_add_u32 v{VWO}, {sT2}, v{X}')
    for p in range(1, 4): E(f'v_add_u32 v{VWO+p}, {p*(8*1152-1024)}, v{VWO}')
    E(f'v_lshrrev_b32 v{X}, 2, v{C_}')
    E(f'v_lshlrev_b32 v{X}, 12, v{X}')
    E(f'v_and_b32 v{Y}, 3, v{C_}')
    E(f'v_lshl_add_u32 v{X}, v{Y}, 8, v{X}')
    E(f'v_xor_b32 v{Y}, v{G_}, v{C_}')
    E(f'v_lshl_add_u32 v{KA0}, v{Y}, 4, v{X}')
    ROWP, G1, C1 = 109, 110, 111
    E(f'v_lshlrev_b32 v{ROWP}, 4, v{G_}')
    E(f'v_add_u32 v{ROWP}, v{ROWP}, v{RR}')
    E(f'v_lshlrev_b32 v{ROWP}, 8, v{ROWP}')
    E(f'v_and_b32 v{G1}, 1, v{G_}')
    E(f'v_lshlrev_b32 v{G1}, 3, v{G1}')
    E(f'v_and_b32 v{C1}, 1, v{CC}')
    E(f'v_lshlrev_b32 v{C1}, 3, v{C1}')
    E(f'v_lshl_or_b32 v{X}, v{RR}, 1, v{G1}')
    E(f'v_lshrrev_b32 v{Y}, 1, v{CC}')
    E(f'v_xor_b32 v{X}, v{X}, v{Y}')
    E(f'v_lshl_add_u32 v{X}, v{X}, 4, v{C1}')
    E(f'v_add_u32 v{VB0}, v{ROWP}, v{X}')
    E(f'v_and_b32 v{X}, 1, v{RR}')
    E(f'v_lshrrev_b32 v{Y}, 1, v{RR}')
    E(f'v_lshl_or_b32 v{X}, v{Y}, 2, v{X}')
    E(f'v_or_b32 v{X}, v{X}, v{G1}')
    E(f'v_xor_b32 v{X}, v{X}, v{CC}')
    E(f'v_lshl_add_u32 v{X}, v{X}, 4, v{C1}')
    E(f'v_add_u32 v{QC0}, v{ROWP}, v{X}')
    E(f'v_lshrrev_b32 v{X}, 1, v{RR}')
    E(f'v_lshlrev_b32 v{X}, 1, v{X}')
    E(f'v_lshrrev_b32 v{Y}, 1, v{G1}')
    E(f'v_or_b32 v{X}, v{X}, v{Y}')
    E(f'v_lshrrev_b32 v{Y}, 1, v{CC}')
    E(f's_lshl_b32 {sT2}, {sW}, 1')
    E(f'v_add_u32 v{Y}, {sT2}, v{Y}')
    E(f'v_xor_b32 v{X}, v{X}, v{Y}')
    E(f'v_lshl_add_u32 v{X}, v{X}, 4, v{C1}')
    E(f'v_lshlrev_b32 v{Y}, 2, v{G_}')
    E(f'v_add_u32 v{Y}, v{Y}, v{RR}')
    E(f'v_lshl_add_u32 v{OD0}, v{Y}, 7, v{X}')
    E(f'v_and_b32 v{X}, 1, v{G_}')
    E(f'v_cmp_eq_u32 {sODD}, 1, v{X}')
    XST = 3 * SLOT
    VX = 112
    E(f's_mul_i32 {sT2}, {sW}, {16*1152}')
    E(f'v_mul_u32_u24 v{X}, 1152, v{C_}')
    E(f'v_lshl_add_u32 v{X}, v{G_}, 5, v{X}')
    E(f'v_add_u32 v{VX}, {sT2}, v{X}')
    E(f'v_add_u32 v{VX}, {XST}, v{VX}')
    E(f's_lshl_b32 {sT2}, {sW}, 10')
    E(f'v_add_u32 v{VPART}, {sT2}, v{VL16}')
    E(f'v_mul_u32_u24 v{VOUT}, 1152, v{C_}')
    E(f'v_lshl_add_u32 v{VOUT}, v{G_}, 3, v{VOUT}')
    E(f's_lshl_b32 {sKV}, {sB}, 5')
    E(f's_lshl_b32 {sT2}, {sJ}, 2')
    E(f's_add_u32 {sKV}, {sKV}, {sT2}')
    E(f's_lshl_b32 {sKV}, {sKV}, 17')
    E(f's_mov_b32 {sKVN}, {sKV}')
    E(f's_lshl_b32 {sWQO}, {sJ}, 10')
    E(f's_mul_i32 {sWOO}, {sJ}, {4*128*1152}')
    cval = struct.unpack('<I', struct.pack('<f', (128 ** -0.5) * math.log2(math.e)))[0]
    E(f's_mov_b32 {sC}, {hex(cval)}')
    E(f's_lshl_b32 {sPB}, {sB}, 3')
    E(f's_add_u32 {sPB}, {sPB}, {sJ}')
    E(f's_mul_i32 {sPB}, {sPB}, {72*1024}')
    for i in range(4): E(f'v_mov_b32 v{TMP+i}, 0')
    E(f'v_mov_b32 v{TMP+4}, 0x3f803f80')
    for i in range(9): E(f'v_mfma_f32_32x32x16_bf16 {ar(AOUT+16*i,16)}, {vr(TMP,4)}, {vr(TMP,4)}, 0')
    for i in range(4): E(f'v_accvgpr_write_b32 a{AONE+i}, v{TMP+4}')
    E(f'v_mov_b32 v{VVS}, v{VK}')
    E(f'v_mov_b32 v{VCHK}, 0')
    E('s_waitcnt lgkmcnt(0)')
    if c.stamps: E('s_memrealtime s[82:83]')
    for base, nrec in ((4, 0x8000000), (8, 0x8000000), (12, 4718592), (16, 4718592), (20, 2359296), (24, 0x1400000 + 256*128), (28, 2359296), (32, 256)):
        E(f's_mov_b32 s{base+2}, {hex(nrec)}')
        E(f's_mov_b32 s{base+3}, 0x20000')
    if c.stamps: E('s_mov_b32 s26, 0x20000000')
    for i in range(4): E(f's_mov_b32 s{88+i}, s{4+i}')
    if c.rot:
        if c.rot == 1: E(f's_add_u32 {sT2}, {sB}, {sJ}')
        elif c.rot == 2: E(f's_mov_b32 {sT2}, {sB}')
        elif c.rot == 3:
            E(f's_lshr_b32 {sT2}, {sB}, 1'); E(f's_add_u32 {sT2}, {sT2}, {sJ}')
        elif c.rot == 4:
            E(f's_mul_i32 {sT2}, {sB}, 3'); E(f's_add_u32 {sT2}, {sT2}, {sJ}')
        for i in range(8):
            E(f's_add_u32 {sT3}, {sT2}, {i}'); E(f's_and_b32 {sT3}, {sT3}, 7'); E(f's_lshl_b32 s{ROT0+i}, {sT3}, 14')
    if c.golines:
        E(f's_cmp_lg_u32 {sW}, 0')
        E('s_cbranch_scc1 L_noinit')
        E(f's_lshl_b32 {sT2}, s2, 7'); E(f's_add_u32 {sT2}, {sT2}, 0x1400000')
        E(f'v_mov_b32 v{TMP+2}, 0')
        E(f'v_lshrrev_b32 v{TMP+3}, 2, v{VL16}')
        E(f'v_cmp_gt_u32 vcc, 256, v{VL16}')
        E('s_and_saveexec_b64 s[54:55], vcc')
        E(f'buffer_store_dword v{TMP+2}, v{TMP+3}, {sWS}, {sT2} offen sc1')
        E('s_mov_b64 exec, s[54:55]')
        E('L_noinit:')
    if c.tlbwarm:
        def touch(lo, off_code, dst):
            off_code()
            E(f's_add_u32 s86, s{lo}, {sT2}')
            E(f's_addc_u32 s87, s{lo+1}, 0')
            E(f's_load_dword s{dst}, s[86:87], 0')
        touch(20, lambda: E(f's_mul_i32 {sT2}, {sB}, {64*1152}'), 64)
        touch(4, lambda: E(f's_mov_b32 {sT2}, {sKV}'), 65)
        touch(8, lambda: E(f's_mov_b32 {sT2}, {sKV}'), 66)
        for k, off in enumerate((0, 1572864, 3145728, 4718588)):
            touch(12, lambda off=off: E(f's_mov_b32 {sT2}, {off}'), 67)
        touch(16, lambda: E(f's_mov_b32 {sT2}, {sWOO}'), 68)
        touch(16, lambda: E(f's_add_u32 {sT2}, {sWOO}, {4*128*1152-4}'), 68)
        touch(24, lambda: E(f's_mov_b32 {sT2}, {sPB}'), 69)
        touch(28, lambda: E(f's_mul_i32 {sT2}, {sB}, {64*1152}'), 69)
        E('s_load_dword s70, s[32:33], 0')

    def issue_now(kind, idx, nxt):
        for f in g.dma_ops(kind, idx, nxt): f()
    def pf_pieces(srd, n, sbase_code, step):
        sbase_code()
        E(f's_add_u32 m0, {sW4K}, {XBUF}')
        for k in range(n):
            E(f'buffer_load_dwordx4 v{VL16}, {srd}, {sT2} offen {c.pfflags} lds'.replace('  ', ' '))
            if k < n - 1: E(f's_add_u32 {sT2}, {sT2}, {step}')
    if c.pf:
        E(f's_lshl_b32 {sT2}, {sB}, 2'); E(f's_add_u32 {sT2}, {sT2}, {sW}'); E(f's_lshl_b32 {sT2}, {sT2}, 1')
        E(f's_cmp_ge_u32 {sT2}, 144'); E(f's_cselect_b32 {sT3}, 144, 0'); E(f's_sub_u32 {sT2}, {sT2}, {sT3}')
        E(f's_lshl_b32 {sT2}, {sT2}, 15'); E(f's_add_u32 {sT2}, {sT2}, {sWQO}')
        E(f'v_lshrrev_b32 v{X}, 4, v{L}'); E(f'v_lshlrev_b32 v{X}, 13, v{X}'); E(f'v_and_b32 v{Y}, 15, v{L}'); E(f'v_lshl_add_u32 v113, v{Y}, 4, v{X}')
        E(f's_add_u32 m0, {sW4K}, {XBUF}')
        for k in range(2):
            E(f'buffer_load_dwordx4 v113, {sWQ}, {sT2} offen {c.pfflags} lds'.replace('  ', ' '))
            if k == 0: E(f's_add_u32 {sT2}, {sT2}, 32768')
    if c.xdirect:
        E(f's_lshl_b32 {sT2}, {sB}, 6'); E(f's_lshl_b32 {sT3}, {sW}, 4'); E(f's_add_u32 {sT2}, {sT2}, {sT3}'); E(f's_mul_i32 {sT2}, {sT2}, 1152')
        E(f'v_mul_u32_u24 v{X}, 1152, v{C_}')
        E(f'v_lshl_add_u32 v{VX}, v{G_}, 5, v{X}')
        def xl(jj):
            for hs in range(2):
                E(f'buffer_load_dwordx4 {ar(AX + 4*(2*jj+hs), 4)}, v{VX}, {sX}, {sT2} offen offset:{128*jj+16*hs} {c.xflags}'.rstrip())
        order = [('Q', 0), ('x', 0), ('x', 1)] + [('Q', i) for i in range(1, LA)] + [('x', j) for j in range(2, 9)]
        if c.xorder == 1: order = [('x', j) for j in range(9)] + [('Q', i) for i in range(LA)]
        if c.xorder == 2: order = [('x', j) for j in range(5)] + [('Q', 0), ('Q', 1)] + [('x', j) for j in range(5, 9)] + [('Q', i) for i in range(2, LA)]
        sim = []
        for kind, i in order:
            if kind == 'Q':
                issue_now('Q', i, False); sim += [('Q', i)] * 4
            else:
                xl(i); sim += [('x', i)] * 2
        N = 4 * (LA - 1)
        q = list(sim)
        for j in range(9):
            q = q[-N:] if len(q) > N else q
            assert ('x', j) not in q and ('Q', j) not in q, (j, q)
            q += [('n', j)] * 4
        if c.stamps: E('s_memrealtime s[84:85]')
    else:
        E(f's_lshl_b32 {sT2}, {sB}, 6'); E(f's_lshl_b32 {sT3}, {sW}, 4'); E(f's_add_u32 {sT2}, {sT2}, {sT3}'); E(f's_mul_i32 {sT2}, {sT2}, 1152')
        E(f's_mul_i32 {sT3}, {sW}, 18432'); E(f's_add_u32 {sT3}, {sT3}, {XST}')
        for k in range(18):
            if k % 4 == 0:
                E(f's_add_u32 m0, {sT3}, {k*1024}')
                if k: E(f's_add_u32 {sT2}, {sT2}, 4096')
                else: E('s_nop 0')
            off = f' offset:{(k%4)*1024}' if k % 4 else ''
            if not c.xp_nox:
                E(f'buffer_load_dwordx4 v{VL16}, {sX}, {sT2} offen{off} {c.xflags} lds'.replace('  ', ' '))
                g.vm_issue(('X', k))
        for i in range(4): issue_now('Q', i, False)
        g.vm_wait(lambda t: t[0] == 'X')
        if c.stamps: E('s_memrealtime s[84:85]')
        E('s_waitcnt lgkmcnt(0)')
        if not c.skip_compute:
            for jj in range(9):
                for hs in range(2):
                    E(f'ds_read_b128 {ar(AX + 4*(2*jj+hs), 4)}, v{VX} offset:{128*jj+16*hs}')
                    if (2 * jj + hs) % 8 == 7: E('s_waitcnt lgkmcnt(0)')
            E('s_waitcnt lgkmcnt(0)')

    sid = [0]
    def pool_init(pat, variants, win):
        L_ = []
        for v, xb in enumerate(variants):
            d = POOL + v
            if xb == 0: L_.append(f'v_add_u32 v{d}, {win*65536}, v{pat}' if win else f'v_mov_b32 v{d}, v{pat}')
            else: L_.append(f'v_xor_b32 v{d}, {xb}, v{POOL}')
        for t in L_: E(t)

    def mk_pre(seq, p, my, extra=None, after=None, issue=None, j=None, n_in_phase=None, issue_map=None):
        def pre():
            if c.pairbar and j is not None:
                if j % 2 == 1:
                    if after: after()
                    return
                n = 2 if j + 1 < n_in_phase else 1
                g.flush_dma()
                if issue_map is not None: iss = sum((issue_map[j + i] for i in range(n)), [])
                else: iss = [seq[p + LA + i] for i in range(n) if p + LA + i < len(seq)]
                g.slot_sync(my, seq[p + n - 1], iss, extra)
                if after: after()
                return
            g.flush_dma()
            iss = issue if issue is not None else ([seq[p + LA]] if p + LA < len(seq) else [])
            g.slot_sync(my, seq[p], iss, extra)
            if after: after()
        return pre

    def k_ops(seq, p0, issue_map=None):
        ops = []
        for j in range(8):
            ring = RING['K'][j]; win, inw = ring >> 2, (ring & 3) * SLOT
            my = sid[0]; sid[0] += 1
            for u in range(4):
                T = 4 * j + u
                for s in range(4):
                    fr = {'slot': my, 'ra': c.ra_b, 'reads': [(f'ds_read_b128 {{d}}, v{POOL+s} offset:{inw + u*1024}', 4)]}
                    if u == 0 and s == 0:
                        fr['pre'] = mk_pre(seq, p0 + j, my, j=j, n_in_phase=8, issue_map=issue_map, issue=(issue_map[j] if issue_map else None), after=(lambda win=win: pool_init(KA0, [0, 64, 128, 192], win)) if j % 4 == 0 else None)
                    D = vr(S0 + 4 * T, 4); B = vr(QN + 8 * s, 4)
                    o = {'frag': fr, 'maxr': 1, 'fill': [],
                         'mf': (lambda t, D=D, B=B, s=s: f'{MF} {D}, {vr(t,4)}, {B}, {D if s else 0}')}
                    if (s == 2 and not c.dma_early) or (c.dma_early and u == 2): o['dma'] = 1
                    if T >= 2 and s in (1, 3):
                        a = S0 + 4 * (T - 2) + (0 if s == 1 else 2)
                        o['fill'].append(f'v_max3_f32 v{VM}, v{a}, v{a+1}, v{VM}')
                    ops.append(o)
        return ops
    def q_ops(seq, p0, issue_map=None):
        ops = []
        for j in range(9):
            ring = RING['Q'][j]; win, inw = ring >> 2, (ring & 3) * SLOT
            my = sid[0]; sid[0] += 1
            for hs in range(2):
                for s in range(4):
                    for u in range(2):
                        v = 2 * s + u
                        fr = {'slot': my, 'ra': c.ra_t, 'reads': [(f'ds_read_b64_tr_b16 {{d}}, v{POOL+v} offset:{inw + (8*hs+4*t)*256}', 2) for t in range(2)]}
                        if hs == 0 and v == 0:
                            fr['pre'] = mk_pre(seq, p0 + j, my, j=j, n_in_phase=9, issue=(issue_map.get(j) if issue_map else None),
                                               after=(lambda win=win: pool_init(QC0, [0, 8, 64, 72, 128, 136, 192, 200], win)) if j in (0, 1, 5) else None)
                        D = vr(QN + 4 * v, 4); B = ar(AX + 4 * (2 * j + hs), 4)
                        first = (j == 0 and hs == 0)
                        o = {'frag': fr, 'fill': [], 'mf': (lambda t, D=D, B=B, first=first: f'{MF} {D}, {vr(t,4)}, {B}, {0 if first else D}')}
                        if (v in (1, 5) and not c.dma_early) or (c.dma_early and hs == 0 and v >= 4): o['dma'] = 1
                        ops.append(o)
        return ops
    def v_ops(seq, p0):
        ops = []
        for j in range(8):
            ring = RING['V'][j]; win, inw = ring >> 2, (ring & 3) * SLOT
            my = sid[0]; sid[0] += 1
            for hf in range(2):
                uu = 2 * j + hf
                for td in range(8):
                    fr = {'slot': my, 'ra': c.ra_t, 'reads': [(f'ds_read_b64_tr_b16 {{d}}, v{POOL+td} offset:{inw + (8*hf+4*t)*256}', 2) for t in range(2)]}
                    if hf == 0 and td == 0:
                        fr['pre'] = mk_pre(seq, p0 + j, my, j=j, n_in_phase=8, after=(lambda win=win: pool_init(VB0, [i << 5 for i in range(8)], win)) if j % 4 == 0 else None)
                    D = ar(AO + 4 * td, 4); B = vr(S0 + 8 * uu, 4)
                    o = {'frag': fr, 'fill': [], 'uu': uu, 'mf': (lambda t, D=D, B=B, uu=uu: f'{MF} {D}, {vr(t,4)}, {B}, {D if uu else 0}')}
                    if (td in (2, 5) and not c.dma_early) or (c.dma_early and hf == 0 and td >= 4): o['dma'] = 1
                    ops.append(o)
                DL = ar(AL, 4); B = vr(S0 + 8 * uu, 4)
                ops.append({'frag': None, 'usefrag': True, 'fill': [], 'uu': uu, 'maxr': 2,
                            'mf': (lambda t, B=B, uu=uu, DL=DL: f'{MF} {DL}, {ar(AONE,4)}, {B}, {DL if uu else 0}')})
        return ops
    def o_ops(seq, p0, extra0, after0):
        ops = []
        for j in range(9):
            ring = RING['O'][j]; win, inw = ring >> 2, (ring & 3) * SLOT
            my = sid[0]; sid[0] += 1
            for s in range(4):
                fr = {'slot': my, 'ra': c.ra_o, 'reads': [(f'ds_read_b64_tr_b16 {{d}}, v{VOA} offset:{inw + s*4096 + t*2048}', 2) for t in range(2)]}
                if s == 0:
                    def after(j=j, win=win):
                        if j == 0: after0()
                        if j in (0, 1, 5): E(f'v_add_u32 v{VOA}, {win*65536}, v{OD0}' if win else f'v_mov_b32 v{VOA}, v{OD0}')
                    fr['pre'] = mk_pre(seq, p0 + j, my, j=j, n_in_phase=9, extra=(extra0 if j == 0 else None), after=after)
                for qt in range(4):
                    D = ar(AOUT + 4 * (4 * j + qt), 4); B = vr(S0 + 4 * (4 * s + qt), 4)
                    o = {'frag': fr if qt == 0 else None, 'maxr': 1, 'fill': [], 'mf': (lambda t, D=D, B=B: f'{MF} {D}, {vr(t,4)}, {B}, {D}')}
                    if qt == 2: o['dma'] = 1
                    ops.append(o)
        return ops

    def exp_group(uu):
        b = S0 + 8 * uu
        L_ = [f'v_fma_f32 v{b+i}, v{b+i}, {sC}, -v{VMC}' for i in range(8)]
        L_ += [f'v_exp_f32 v{b+i}, v{b+i}' for i in range(8)]
        L_ += [f'v_cvt_pk_bf16_f32 v{b+i}, v{b+2*i}, v{b+2*i+1}' for i in range(4)]
        return L_
    def max_finish():
        L_ = []
        for T in (30, 31):
            a = S0 + 4 * T
            L_ += [f'v_max3_f32 v{VM}, v{a}, v{a+1}, v{VM}', f'v_max3_f32 v{VM}, v{a+2}, v{a+3}, v{VM}']
        L_ += [f'v_mov_b32 v{TMP}, v{VM}', f'v_permlane32_swap_b32 v{VM}, v{TMP}', f'v_max_f32 v{VM}, v{VM}, v{TMP}',
               f'v_mov_b32 v{TMP}, v{VM}', f'v_permlane16_swap_b32 v{VM}, v{TMP}', f'v_max_f32 v{VM}, v{VM}, v{TMP}',
               f'v_mul_f32 v{VMC}, {sC}, v{VM}']
        return L_
    def q_finalize():
        L_ = []
        for s in range(4):
            a = QN + 8 * s; t = TMP + 4 * (s & 1)
            L_ += [f'v_cvt_pk_bf16_f32 v{t}, v{a}, v{a+1}', f'v_cvt_pk_bf16_f32 v{t+1}, v{a+2}, v{a+3}',
                   f'v_cvt_pk_bf16_f32 v{t+2}, v{a+4}, v{a+5}', f'v_cvt_pk_bf16_f32 v{t+3}, v{a+6}, v{a+7}']
            L_ += [f'v_cndmask_b32 v{a}, v{t}, v{t+2}, {sODD}', f'v_cndmask_b32 v{a+1}, v{t+1}, v{t+3}, {sODD}',
                   f'v_cndmask_b32 v{a+2}, v{t+2}, v{t}, {sODD}', f'v_cndmask_b32 v{a+3}, v{t+3}, v{t+1}, {sODD}']
        return L_
    def distribute(ops, fillers, lo, hi):
        n = hi - lo
        for k, f in enumerate(fillers):
            ops[lo + (k * n) // len(fillers)]['fill'].append(f)

    def gate_arrive():
        E(f's_cmp_lg_u32 {sW}, 0')
        E('s_cbranch_scc1 L_ga_done')
        E(f'v_mov_b32 v{TMP+4}, 1')
        E(f'v_mov_b32 v{TMP+5}, 0')
        E(f's_lshl_b32 {sT2}, {sJ}, 5')
        E(f's_add_u32 {sT2}, {sT2}, 4')
        E(f'v_cmp_eq_u32 vcc, 0, v{VL16}')
        E('s_and_saveexec_b64 s[54:55], vcc')
        E(f'buffer_atomic_add v{TMP+4}, v{TMP+5}, {sDBG}, {sT2} offen sc1')
        E('s_mov_b64 exec, s[54:55]')
        E('L_ga_done:')
    def gate_wait():
        E(f's_cmp_lg_u32 {sW}, 0')
        E('s_cbranch_scc1 L_gw_done')
        E(f'v_lshlrev_b32 v{TMP+5}, 1, v{VL16}')
        E(f'v_add_u32 v{TMP+5}, 4, v{TMP+5}')
        E(f's_mov_b32 {sT3}, 0')
        E('L_gw_poll:')
        E(f'buffer_load_dword v{TMP+4}, v{TMP+5}, {sDBG}, 0 offen sc1')
        E('s_waitcnt vmcnt(0)')
        E(f'v_cmp_le_u32 vcc, 32, v{TMP+4}')
        E(f's_cmp_eq_u32 vcc_lo, 0xff')
        E('s_cbranch_scc1 L_gw_done')
        E(f's_sleep {c.poll_sleep}')
        E(f's_add_u32 {sT3}, {sT3}, 1')
        E(f's_cmp_lt_u32 {sT3}, 0x40000')
        E('s_cbranch_scc1 L_gw_poll')
        E('L_gw_done:')
        E('s_barrier')
        g.vm = []
    def o_finalize():
        tl = 64
        E(f'v_accvgpr_read_b32 v{tl}, a{AL}')
        E(f'v_add_u32 v{TMP}, {XBUF}, v{VPART}')
        E(f'v_rcp_f32 v{tl}, v{tl}')
        for s in range(4):
            t = 72 + 12 * s
            for i in range(8): E(f'v_accvgpr_read_b32 v{t+i}, a{AO + 8*s + i}')
            for i in range(8): E(f'v_mul_f32 v{t+i}, v{t+i}, v{tl}')
            for i in range(4): E(f'v_cvt_pk_bf16_f32 v{t+8+i}, v{t+2*i}, v{t+2*i+1}')
            E(f'ds_write_b128 v{TMP}, {vr(t+8,4)} offset:{s*4096}')
            g.lg_issue()
    def o_load_frags():
        E(f'v_add_u32 v{TMP}, {XBUF}, v{VL16}')
        for i in range(16):
            E(f'ds_read_b128 {vr(S0+4*i,4)}, v{TMP} offset:{i*1024}')
            g.o_frag_last = g.lg_issue()

    if not c.xdirect:
        E('s_barrier')
        for i in range(4, LA): issue_now('Q', i, False)
    if c.pf:
        npc = 9 if c.pf == 1 else c.pf_b
        if c.pf == 2:
            E(f's_and_b32 s58, {sB}, {c.pf_mask}')
            E(f's_cmp_eq_u32 s58, 0'); E('s_cbranch_scc1 L_nopf')
            E(f's_lshr_b32 s59, {sB}, 1')
            E(f's_lshl_b32 s59, s59, 2'); E(f's_add_u32 s59, s59, {sW}'); E(f's_mul_i32 s59, s59, {npc}')
            E(f's_add_u32 s58, s59, {npc}')
        elif c.pf == 3:
            E(f's_and_b32 s57, {sB}, 3')
            E(f's_cmp_eq_u32 s57, 0'); E('s_cbranch_scc1 L_nopf')
            E(f's_lshr_b32 s59, {sB}, 2'); E(f's_mul_i32 s59, s59, 144')
            E(f's_sub_u32 s56, s57, 1'); E(f's_mul_i32 s56, s56, s57'); E(f's_mul_i32 s56, s56, 12')
            E(f's_add_u32 s59, s59, s56')
            E(f's_mul_i32 s57, s57, 6')
            E(f's_mul_i32 s56, s57, {sW}'); E(f's_add_u32 s59, s59, s56')
            E(f's_add_u32 s58, s59, s57')
        else:
            E(f's_mov_b32 s59, {sB}')
            E(f's_lshl_b32 s59, s59, 2'); E(f's_add_u32 s59, s59, {sW}'); E(f's_mul_i32 s59, s59, {npc}')
            E(f's_add_u32 s58, s59, {npc}')
        E(f's_add_u32 m0, {sW4K}, {XBUF}')
        E('L_pf:')
        E(f's_cmp_ge_u32 s59, 576'); E('s_cbranch_scc1 L_pfo')
        E(f's_lshl_b32 s56, s59, 13'); E(f's_lshl_b32 s57, {sJ}, 10'); E(f's_add_u32 s56, s56, s57')
        E(f'buffer_load_dwordx4 v{VL16}, {sWQ}, s56 offen {c.pfflags} lds'.replace('  ', ' '))
        E('s_branch L_pfn')
        E('L_pfo:')
        E(f's_sub_u32 s56, s59, 576'); E(f's_lshl_b32 s56, s56, 10'); E(f's_mul_i32 s57, {sJ}, {4*128*1152}'); E(f's_add_u32 s56, s56, s57')
        E(f'buffer_load_dwordx4 v{VL16}, {sWO}, s56 offen {c.pfflags} lds'.replace('  ', ' '))
        E('L_pfn:')
        if c.pf_depth: E(f's_waitcnt vmcnt({c.pf_depth})')
        E('s_add_u32 s59, s59, 1'); E('s_cmp_lt_u32 s59, s58'); E('s_cbranch_scc1 L_pf')
        if c.pf_wait: E('s_waitcnt vmcnt(0)')
        E('L_nopf:')
    E(f's_mov_b32 {sFIRST}, 1')
    E(f's_mov_b32 {sLOOP}, 0')
    E('s_branch L_Q')

    seq = [('K', i, False) for i in range(8)] + [('Q', i, False) for i in range(9)] + [('V', i, False) for i in range(8)] + \
          [('O', i, False) for i in range(9)] + [('K', i, True) for i in range(8)]
    def st(i):
        if c.istamps: return
        if c.stamps and not c.fstamps: E(f's_memtime s[{72+2*i}:{73+2*i}]')
        if c.stamps and c.fstamps: E(f's_memrealtime s[{72+2*i}:{73+2*i}]')
    def vpos(vi, uu): return next(i for i, o in enumerate(vi) if o['uu'] == uu)
    groups = [exp_group(uu) if not c.xp_noexp else exp_group(uu)[16:] for uu in range(16)]
    E('L_K:')
    g.vm = [('K', i, False) for i in range(LA) for _ in range(4)] if 'K' not in c.skip_dma else []
    g.lg = []; g.slot_last_read = {}
    st(0)
    E(f'v_mov_b32 v{VM}, 0xff800000')
    g.stream(k_ops(seq, 0))
    g.flush_dma(); g.lg_drain()
    nq = c.q_groups
    if c.sm_in_v and not c.klast:
        E(f's_cmp_eq_u32 {sLOOP}, 3')
        E('s_cbranch_scc1 L_skipq')
    E('L_Q:')
    st(1)
    qi = q_ops(seq, 8)
    fl = max_finish()
    if not c.sm_in_v:
        for k, f in enumerate(fl): qi[3 + k]['fill'].append(f)
        distribute(qi, sum(groups[:nq], []), max(c.sm_lo, 3 + len(fl) + 1), len(qi))
    if c.xp_noq:
        for o in qi:
            o['mf'] = None
            if o.get('frag'): o['frag']['reads'] = [('s_nop 0 ; {d}', 4)]
    g.stream(qi)
    g.flush_dma(); g.lg_drain()
    E(f's_cmp_lg_u32 {sFIRST}, 0')
    E('s_cbranch_scc1 L_first_done')
    E('L_V:')
    st(2)
    vi = v_ops(seq, 17)
    if c.sm_in_v:
        vi[0]['fill'] += fl + groups[0] + groups[1]
        rest = [(None, f) for f in q_finalize()]
        allrest = [(uu, f) for uu in range(2, 16) for f in groups[uu]]
        lo, hi = 1, (c.sm_v_hi or vpos(vi, 15) - 3)
        for k, (uu, f) in enumerate(allrest):
            i = min(lo + (k * (hi - lo)) // len(allrest), vpos(vi, uu) - 2)
            vi[i]['fill'].append(f)
        distribute(vi, q_finalize(), len(vi) - 18, len(vi) - 1)
    else:
        distribute(vi, q_finalize(), 2, 18)
        allrest = [(uu, f) for uu in range(nq, 16) for f in groups[uu]]
        lo, hi = 2, max(c.sm_vhi, 4)
        for k, (uu, f) in enumerate(allrest):
            i = min(lo + (k * (hi - lo)) // len(allrest), vpos(vi, uu) - 2)
            vi[i]['fill'].append(f)
    def drop_next():
        if not c.olast:
            E(f's_cmp_eq_u32 {sLOOP}, 3')
            E('s_cselect_b32 s6, 0, s6')
        if not (c.klast and c.sm_in_v):
            E(f's_cmp_eq_u32 {sLOOP}, 2')
            E('s_cselect_b32 s14, 0, s14')
    vi[20]['fill'].append(drop_next)
    if c.dflags:
        def rdchk():
            E(f's_cmp_lg_u32 {sLOOP}, 3'); E('s_cbranch_scc1 L_nochk')
            E(f's_cmp_lg_u32 {sW}, 0'); E('s_cbranch_scc1 L_nochk')
            E(f's_lshl_b32 {sT2}, {sB}, 3'); E(f's_add_u32 {sT2}, {sT2}, 4')
            E(f'v_mov_b32 v{TMP+7}, 0')
            E(f'buffer_load_dword v{VCHK}, v{TMP+7}, {sDBG}, {sT2} offen sc1')
            E('L_nochk:')
        vi[24]['fill'].append(rdchk)
    g.stream(vi)
    g.flush_dma()
    st(3)
    if not c.skip_compute: o_finalize()
    if c.olast:
        E(f's_cmp_eq_u32 {sLOOP}, 3')
        E('s_cbranch_scc1 L_Olast')
        saved = (list(g.vm), list(g.lg), dict(g.slot_last_read), sid[0], g.tnext)
    oi = o_ops(seq, 25, (lambda: g.lg_drain()), (o_load_frags if not c.skip_compute else (lambda: None)))
    if not c.skip_compute: oi[0]['need'] = lambda: g.lg_wait(g.o_frag_last)
    def preg(j, h):
        k = 2 * j + h
        return 64 + 4 * k if k < 14 else 128 + 4 * (k - 14)
    def conv(j, h):
        t = 120
        L_ = []
        for k in range(2):
            for i in range(4): L_.append(f'v_accvgpr_read_b32 v{t + 4*k + i}, a{AOUT + 4*(4*j + 2*h + k) + i}')
        d = preg(j, h)
        for i in range(4): L_.append(f'v_cvt_pk_bf16_f32 v{d+i}, v{t+2*i}, v{t+2*i+1}')
        return L_
    def mk_store(j, h):
        def f():
            E(f's_add_u32 {sT2}, {sPB}, {(2*j+h)*4096}')
            E(f'buffer_store_dwordx4 {vr(preg(j,h),4)}, v{VPART}, {sWS}, {sT2} offen sc1')
        return f
    post = []
    if not c.skip_compute and not c.olast:
        for j in range(9):
            blk = conv(j, 0) + conv(j, 1)
            pos = 16 * (j + 1) + 4
            if pos < len(oi) and c.conv_inline:
                def cb(blk=blk, j=j):
                    E(f's_cmp_lg_u32 {sLOOP}, 3'); E(f's_cbranch_scc1 L_cv{j}')
                    for t in blk[:12]: E(t)
                    if c.inline_store: mk_store(j, 0)()
                    for t in blk[12:]: E(t)
                    if c.inline_store: mk_store(j, 1)()
                    if c.inline_b:
                        E(f's_bitcmp1_b32 {sB}, 0'); E(f's_cbranch_scc0 L_cv{j}')
                        mk_store(j, 0)(); mk_store(j, 1)()
                    E(f'L_cv{j}:')
                oi[pos]['fill'].append(cb)
            else:
                post += blk
    g.stream(oi)
    g.flush_dma(); g.lg_drain()
    st(4)
    if not c.skip_dma: assert g.vm[-4*LA:] == [('K', i, True) for i in range(LA) for _ in range(4)], g.vm
    E(f's_mov_b32 {sKV}, {sKVN}')
    E(f's_add_u32 {sKVN}, {sKVN}, 131072')
    if not c.wfixed:
        E(f's_add_u32 {sWQO}, {sWQO}, 256')
        E(f's_add_u32 {sWOO}, {sWOO}, {128*1152}')
    E(f's_add_u32 {sLOOP}, {sLOOP}, 1')
    if c.stamps:
        E(f's_cmp_eq_u32 {sLOOP}, 3'); E('s_cbranch_scc0 L_ns3'); E('s_memrealtime s[64:65]'); E('L_ns3:')
        if c.istamps:
            for t in range(1, 5):
                E(f's_cmp_eq_u32 {sLOOP}, {t}'); E(f's_cbranch_scc0 L_is{t}'); E(f's_memrealtime s[{72+2*t}:{73+2*t}]'); E(f'L_is{t}:')
    if c.sm_in_v and c.klast:
        E(f's_cmp_lt_u32 {sLOOP}, 3')
        E('s_cbranch_scc1 L_K')
        if c.exit_at != 2:
            E(f's_cmp_eq_u32 {sLOOP}, 3')
            E('s_cbranch_scc1 L_Klast')
    else:
        E(f's_cmp_lt_u32 {sLOOP}, {4 if c.exit_at != 2 else 3}')
        E('s_cbranch_scc1 L_K')
    if c.exit_at == 2: E('s_branch L_stamps')
    E('s_branch L_exit')
    if c.sm_in_v and c.klast:
        E('L_Klast:')
        g.vm = [('K', i, False) for i in range(LA) for _ in range(4)] if 'K' not in c.skip_dma else []
        g.lg = []; g.slot_last_read = {}; g.pending = []
        st(0)
        E(f'v_mov_b32 v{VM}, 0xff800000')
        lst = [('K', i, False) for i in range(LA, 8)] + [('V', i, False) for i in range(LA)]
        g.stream(k_ops(seq, 0, {p: [lst[p]] for p in range(8)}))
        g.flush_dma(); g.lg_drain()
        if not c.skip_dma: assert g.vm[-4*LA:] == [('V', i, False) for i in range(LA) for _ in range(4)], g.vm
        E('s_branch L_V')
    if c.sm_in_v and not c.klast:
        E('L_skipq:')
        E('s_barrier')
        for i in range(LA):
            for f in g.dma_ops('V', i, False): f()
        E('s_branch L_V')
    if c.olast:
        E('L_Olast:')
        if c.wgate == 1:
            E(f's_bitcmp1_b32 {sB}, 0'); E('s_cbranch_scc0 L_nosig')
            E(f's_cmp_lg_u32 {sW}, 0'); E('s_cbranch_scc1 L_nosig')
            E(f's_sub_u32 {sT2}, s2, 8'); E(f's_lshl_b32 {sT2}, {sT2}, 7'); E(f's_add_u32 {sT2}, {sT2}, {0x1400000 + 32}')
            E(f'v_mov_b32 v{TMP+4}, 1'); E(f'v_mov_b32 v{TMP+5}, 0')
            E(f'v_cmp_eq_u32 vcc, 0, v{VL16}')
            E('s_and_saveexec_b64 s[54:55], vcc')
            E(f'buffer_store_dword v{TMP+4}, v{TMP+5}, {sWS}, {sT2} offen sc1')
            E('s_mov_b64 exec, s[54:55]')
            E('L_nosig:')
        g.vm, g.lg, g.slot_last_read, sid[0], g.tnext = list(saved[0]), list(saved[1]), dict(saved[2]), saved[3], saved[4]
        g.pending = []
        seq_l = seq[:34]
        ol = o_ops(seq_l, 25, (lambda: g.lg_drain()), (o_load_frags if not c.skip_compute else (lambda: None)))
        if not c.skip_compute:
            ol[0]['need'] = lambda: g.lg_wait(g.o_frag_last)
            for j in range(8):
                blk = conv(j, 0) + conv(j, 1)
                lo = 16 * (j + 1) + 2
                distribute(ol, blk, lo, lo + 13)
                def stb(j=j):
                    if c.xp_notail == 2: return
                    if c.inline_store:
                        mk_store(j, 0)(); mk_store(j, 1)()
                    elif c.inline_b:
                        E(f's_bitcmp1_b32 {sB}, 0'); E(f's_cbranch_scc0 L_sb{j}')
                        mk_store(j, 0)(); mk_store(j, 1)()
                        E(f'L_sb{j}:')
                ol[lo + 13]['fill'].append(stb)
            post = conv(8, 0) + conv(8, 1)
        g.stream(ol)
        g.flush_dma(); g.lg_drain()
        st(4)
        E('s_branch L_exit')
    E('L_first_done:')
    E('s_nop 7')
    for t in q_finalize(): E(t)
    E('s_mov_b32 s88, s8'); E('s_mov_b32 s89, s9')
    E(f'v_mov_b32 v{VVS}, v{VV}')
    E(f's_add_u32 {sWQO}, {sWQO}, 256')
    E(f's_add_u32 {sKVN}, {sKVN}, 131072')
    E(f's_mov_b32 {sFIRST}, 0')
    if c.dflags:
        E(f's_cmp_lg_u32 {sW}, 0'); E('s_cbranch_scc1 L_noid')
        E(f's_lshl_b32 {sT2}, {sB}, 3'); E(f's_add_u32 {sT2}, {sT2}, 4')
        E(f'v_mov_b32 v{TMP}, 1'); E(f'v_mov_b32 v{TMP+1}, 0')
        E(f'v_cmp_eq_u32 vcc, 0, v{VL16}')
        E('s_and_saveexec_b64 s[54:55], vcc')
        E(f'buffer_atomic_add v{TMP}, v{TMP+1}, {sDBG}, {sT2} offen sc1')
        E('s_mov_b64 exec, s[54:55]')
        E('L_noid:')
    if c.stamps: E('s_memrealtime s[62:63]')
    if c.istamps: E('s_memrealtime s[72:73]')
    if c.exit_at == 1: E('s_branch L_stamps')
    E('s_branch L_K')
    E('L_exit:')
    E('s_nop 7')
    for t in post: E(t)
    def gate_code():
        E(f's_cmp_lg_u32 {sW}, 0'); E('s_cbranch_scc1 L_gate_ok')
        E(f's_lshl_b32 {sT0}, s2, 7'); E(f's_add_u32 {sT0}, {sT0}, {0x1400000 + 32}')
        E(f'v_mov_b32 v{TMP+5}, 0'); E(f's_mov_b32 {sT1}, 0')
        E('L_gate:')
        E(f'buffer_load_dword v{TMP+4}, v{TMP+5}, {sWS}, {sT0} offen sc1')
        E('s_waitcnt vmcnt(0)')
        E(f'v_readfirstlane_b32 {sT3}, v{TMP+4}')
        E(f's_cmp_eq_u32 {sT3}, 1'); E('s_cbranch_scc1 L_gate_ok')
        E('s_sleep 2')
        E(f's_add_u32 {sT1}, {sT1}, 1'); E(f's_cmp_lt_u32 {sT1}, 48'); E('s_cbranch_scc1 L_gate')
        E('L_gate_ok:')
        E('s_barrier')
    if c.xp_notail == 2:
        pass
    elif c.store_mode == 1 and not c.skip_compute:
        if c.inline_b:
            for h in range(2): mk_store(8, h)()
            E(f's_bitcmp1_b32 {sB}, 0'); E('s_cbranch_scc1 L_stored')
            if c.wgate: gate_code()
            for j in range(8):
                for h in range(2): mk_store(j, h)()
            E('L_stored:')
        else:
            if c.wgate:
                E(f's_bitcmp1_b32 {sB}, 0'); E('s_cbranch_scc1 L_nogate')
                gate_code()
                E('L_nogate:')
            for j in range(9):
                if c.inline_store and c.conv_inline and j < 8: continue
                for h in range(2): mk_store(j, h)()
    return g, E

def reduce_code(E, c):
    E(f's_mul_i32 {sT0}, {sJ}, 9')
    E(f's_add_u32 {sT0}, {sT0}, {sW}')
    E(f's_lshl_b32 {sT1}, {sB}, 3')
    E(f's_mul_i32 {sT1}, {sT1}, {72*1024}')
    fl = '' if c.two_kernel else 'sc1'
    def load_piece(k):
        E(f's_add_u32 {sT2}, {sT0}, {4*k}')
        E(f's_lshl_b32 {sT2}, {sT2}, 10')
        E(f's_add_u32 {sT2}, {sT2}, {sT1}')
        for src in range(8):
            E(f'buffer_load_dwordx4 {vr(32*k + 4*src, 4)}, v{VL16}, {sWS}, {sT2} offen {fl}')
            if src < 7: E(f's_add_u32 {sT2}, {sT2}, {72*1024}')
    def sum_store(k):
        b = 32 * k
        if c.dot_reduce:
            for i in range(8): E(f'v_mov_b32 v{100+i}, 0')
            for src in range(8):
                for d in range(4):
                    E(f'v_dot2c_f32_bf16 v{100+2*d}, v{b+4*src+d}, v112')
                    E(f'v_dot2c_f32_bf16 v{101+2*d}, v{b+4*src+d}, v113')
            E('s_nop 2')
        else:
            for d in range(4):
                E(f'v_lshlrev_b32 v{100+2*d}, 16, v{b+d}')
                E(f'v_and_b32 v{101+2*d}, 0xffff0000, v{b+d}')
            for src in range(1, 8):
                for d in range(4):
                    E(f'v_lshlrev_b32 v{108+2*d}, 16, v{b+4*src+d}')
                    E(f'v_and_b32 v{109+2*d}, 0xffff0000, v{b+4*src+d}')
                for i in range(8): E(f'v_add_f32 v{100+i}, v{100+i}, v{108+i}')
        for d in range(4): E(f'v_cvt_pk_bf16_f32 v{116+4*k+d}, v{100+2*d}, v{101+2*d}')
        E(f's_add_u32 {sT2}, {sT0}, {4*k}')
        E(f's_lshr_b32 {sT3}, {sT2}, 3')
        E(f's_lshl_b32 {sT3}, {sT3}, 2')
        E(f's_and_b32 s56, {sT2}, 3')
        E(f's_add_u32 {sT3}, {sT3}, s56')
        E(f's_lshl_b32 {sT3}, {sT3}, 5')
        E(f's_lshr_b32 s56, {sT2}, 2')
        E(f's_and_b32 s56, s56, 1')
        E(f's_lshl_b32 s56, s56, 5')
        E(f's_lshl_b32 s57, {sB}, 6')
        E(f's_add_u32 s56, s56, s57')
        E(f's_mul_i32 s56, s56, 1152')
        E(f's_add_u32 s56, s56, {sT3}')
        E(f'buffer_store_dwordx2 {vr(116+4*k,2)}, v{VOUT}, {sOUT}, s56 offen {c.outflags}')
        E(f's_add_u32 s56, s56, {16*1152}')
        E(f'buffer_store_dwordx2 {vr(118+4*k,2)}, v{VOUT}, {sOUT}, s56 offen {c.outflags}')
    E('v_mov_b32 v112, 0x00003f80'); E('v_mov_b32 v113, 0x3f800000')
    load_piece(0); load_piece(1)
    E(f's_cmp_lg_u32 {sW}, 0')
    E('s_cbranch_scc1 L_two')
    load_piece(2)
    E('L_two:')
    E('s_waitcnt vmcnt(8)')
    sum_store(0)
    E('s_waitcnt vmcnt(2)')
    sum_store(1)
    E(f's_cmp_lg_u32 {sW}, 0')
    E('s_cbranch_scc1 L_red_done')
    sum_store(2)
    E('L_red_done:')

def finish(g, E, c):
    E('s_waitcnt vmcnt(0)')
    if c.stamps: E('s_memrealtime s[66:67]')
    if not c.two_kernel and c.xp_notail != 2:
        E('s_barrier')
        E(f's_lshl_b32 {sT0}, {sB}, 3')
        E(f's_cmp_lg_u32 {sW}, 0')
        E('s_cbranch_scc1 L_wait_done')
        E(f'v_mov_b32 v{TMP}, 1')
        E(f'v_mov_b32 v{TMP+1}, 0')
        if c.dflags:
            E(f's_add_u32 {sT0}, {sT0}, 4')
            E(f's_mov_b32 {sT1}, 0')
            E('L_chk:')
            E(f'v_readfirstlane_b32 {sT2}, v{VCHK}')
            E(f's_cmp_ge_u32 {sT2}, 8'); E('s_cbranch_scc1 L_chk_ok')
            E(f'buffer_load_dword v{VCHK}, v{TMP+1}, {sDBG}, {sT0} offen sc1')
            E('s_waitcnt vmcnt(0)')
            E(f's_add_u32 {sT1}, {sT1}, 1'); E(f's_cmp_lt_u32 {sT1}, 0x40000'); E('s_cbranch_scc1 L_chk')
            E('L_chk_ok:')
            E(f's_lshl_b32 {sT3}, {sB}, 10'); E(f's_lshl_b32 {sT2}, {sJ}, 2'); E(f's_add_u32 {sT3}, {sT3}, {sT2}'); E(f's_add_u32 {sT3}, {sT3}, 0x1400000')
            E(f'v_lshlrev_b32 v{TMP+1}, 3, v{VL16}')
            E(f'v_cmp_gt_u32 vcc, 128, v{VL16}')
            E('s_and_saveexec_b64 s[54:55], vcc')
            E(f'buffer_store_dword v{TMP}, v{TMP+1}, {sWS}, {sT3} offen sc1')
            E('s_mov_b64 exec, s[54:55]')
            E(f's_lshl_b32 {sT0}, s2, 7'); E(f's_add_u32 {sT0}, {sT0}, 0x1400000')
            E(f'v_lshrrev_b32 v{TMP+1}, 2, v{VL16}')
            E(f'v_and_b32 v{TMP+1}, 31, v{TMP+1}')
            E(f's_mov_b32 {sT1}, 0')
            E('L_poll:')
            E(f'buffer_load_dword v{TMP+2}, v{TMP+1}, {sWS}, {sT0} offen sc1')
            E('s_waitcnt vmcnt(0)')
            E(f'v_cmp_eq_u32 vcc, 1, v{TMP+2}')
            E(f's_cmp_eq_u64 vcc, -1')
            E('s_cbranch_scc1 L_wait_done')
            E(f's_sleep 1')
            E(f's_add_u32 {sT1}, {sT1}, 1')
            E(f's_cmp_lt_u32 {sT1}, 0x40000')
            E('s_cbranch_scc1 L_poll')
        elif c.golines:
            E(f'v_cmp_eq_u32 vcc, 0, v{VL16}')
            E('s_and_saveexec_b64 s[54:55], vcc')
            E(f'buffer_atomic_add v{TMP}, v{TMP+1}, {sDBG}, {sT0} offen sc0 sc1')
            E('s_waitcnt vmcnt(0)')
            E('s_mov_b64 exec, s[54:55]')
            E(f'v_readfirstlane_b32 {sT2}, v{TMP}')
            E(f's_and_b32 {sT2}, {sT2}, 7')
            E(f's_cmp_eq_u32 {sT2}, 7')
            E('s_cbranch_scc0 L_notlast')
            E(f's_lshl_b32 {sT3}, {sB}, 10'); E(f's_add_u32 {sT3}, {sT3}, 0x1400000')
            E(f'v_lshlrev_b32 v{TMP+1}, 3, v{VL16}')
            E(f'v_mov_b32 v{TMP}, 1')
            E(f'v_cmp_gt_u32 vcc, 128, v{VL16}')
            E('s_and_saveexec_b64 s[54:55], vcc')
            E(f'buffer_store_dword v{TMP}, v{TMP+1}, {sWS}, {sT3} offen sc1')
            E('s_mov_b64 exec, s[54:55]')
            E('s_branch L_wait_done')
            E('L_notlast:')
            E(f's_lshl_b32 {sT0}, s2, 7'); E(f's_add_u32 {sT0}, {sT0}, 0x1400000')
            E(f'v_mov_b32 v{TMP+1}, 0')
            E(f's_mov_b32 {sT1}, 0')
            E('L_poll:')
            E(f'buffer_load_dword v{TMP+2}, v{TMP+1}, {sWS}, {sT0} offen sc1')
            E('s_waitcnt vmcnt(0)')
            E(f'v_readfirstlane_b32 {sT2}, v{TMP+2}')
            E(f's_cmp_eq_u32 {sT2}, 1')
            E('s_cbranch_scc1 L_wait_done')
            E(f's_sleep 2')
            E(f's_add_u32 {sT1}, {sT1}, 1')
            E(f's_cmp_lt_u32 {sT1}, 0x40000')
            E('s_cbranch_scc1 L_poll')
        else:
            E(f'v_cmp_eq_u32 vcc, 0, v{VL16}')
            E('s_and_saveexec_b64 s[54:55], vcc')
            E(f'buffer_atomic_add v{TMP}, v{TMP+1}, {sDBG}, {sT0} offen sc1')
            E('s_mov_b64 exec, s[54:55]')
            E(f's_mov_b32 {sT1}, 0')
            E('L_poll:')
            E(f'buffer_load_dword v{TMP+2}, v{TMP+1}, {sDBG}, {sT0} offen sc1')
            E('s_waitcnt vmcnt(0)')
            E(f'v_readfirstlane_b32 {sT2}, v{TMP+2}')
            E(f's_cmp_ge_u32 {sT2}, 8')
            E('s_cbranch_scc1 L_wait_done')
            E(f's_sleep {min(c.poll_sleep, 8)}')
            E(f's_add_u32 {sT1}, {sT1}, 1')
            E(f's_cmp_lt_u32 {sT1}, 0x40000')
            E('s_cbranch_scc1 L_poll')
        E('L_wait_done:')
        E('s_barrier')
        if c.stamps: E('s_memrealtime s[68:69]')
        if not c.xp_notail: reduce_code(E, c)
    if c.stamps:
        E('L_stamps:')
        E('s_waitcnt vmcnt(0)')
        E('s_memrealtime s[70:71]')
        E('s_waitcnt lgkmcnt(0)')
        for i in range(12): E(f'v_mov_b32 v{i}, s{60+i}')
        for i in range(4): E(f'v_mov_b32 v{12+i}, s{72+2*i}')
        E('v_mov_b32 v16, s80'); E('v_mov_b32 v17, s82'); E('v_mov_b32 v18, s84')
        E(f's_lshl_b32 {sT0}, s2, 2'); E(f's_add_u32 {sT0}, {sT0}, {sW}'); E(f's_lshl_b32 {sT0}, {sT0}, 7'); E(f's_add_u32 {sT0}, {sT0}, 0x10000000')
        if c.bstamps:
            E(f's_lshl_b32 {sT1}, s2, 2'); E(f's_add_u32 {sT1}, {sT1}, {sW}'); E(f's_lshl_b32 {sT1}, {sT1}, 9'); E(f's_add_u32 {sT1}, {sT1}, 0x11000000')
            E(f'v_lshrrev_b32 v21, 2, v{VL16}')
            E(f'buffer_store_dword v246, v21, {sWS}, {sT1} offen')
            E(f'buffer_store_dword v247, v21, {sWS}, {sT1} offen offset:256')
        E(f'v_cmp_eq_u32 vcc, 0, v{VL16}')
        E('s_and_saveexec_b64 s[54:55], vcc')
        E('v_mov_b32 v20, 0')
        for i in range(4): E(f'buffer_store_dwordx4 {vr(4*i,4)}, v20, {sWS}, {sT0} offen offset:{16*i}')
        E(f'buffer_store_dwordx3 v[16:18], v20, {sWS}, {sT0} offen offset:64')
    if c.dbgspan:
        E('s_waitcnt vmcnt(0)')
        E('s_memrealtime s[70:71]')
        E('s_waitcnt lgkmcnt(0)')
        E(f's_cmp_lg_u32 {sW}, 0'); E('s_cbranch_scc1 L_done')
        E('s_not_b32 s60, s60')
        E('v_mov_b32 v1, s60'); E('v_mov_b32 v2, s70'); E('v_mov_b32 v3, 0')
        E(f'v_cmp_eq_u32 vcc, 0, v{VL16}')
        E('s_and_saveexec_b64 s[54:55], vcc')
        E(f'buffer_atomic_umax v1, v3, {sDBG}, 0 offen offset:0 sc1')
        E(f'buffer_atomic_umax v2, v3, {sDBG}, 0 offen offset:8 sc1')
    E('L_done:')
    E('s_endpgm')

DESC = '''.section .rodata,"a"
.p2align 6
.amdhsa_kernel {name}
  .amdhsa_next_free_vgpr {vg}
  .amdhsa_next_free_sgpr 100
  .amdhsa_accum_offset {acc}
  .amdhsa_group_segment_fixed_size 0
  .amdhsa_kernarg_size 64
  .amdhsa_user_sgpr_count 2
  .amdhsa_user_sgpr_kernarg_segment_ptr 1
  .amdhsa_system_sgpr_workgroup_id_x 1
.end_amdhsa_kernel
'''
def gen(cfg=None):
    c = cfg or Cfg()
    g, E = build(c)
    finish(g, E, c)
    body = g.a.finalize()
    head = f'''; fused MHA block: q-projection + attention + out-projection, one workgroup per (batch, 4 heads)
; @launch grid=(256,1,1) block=(256,1,1) lds=163840
.amdgcn_target "amdgcn-amd-amdhsa--gfx950"
.text
.globl {KNAME}
.p2align 8
.type {KNAME},@function
{KNAME}:
'''
    return head + body + DESC.format(name=KNAME, vg=512, acc=256), g

if __name__ == '__main__':
    s, g = gen()
    out = sys.argv[1] if len(sys.argv) > 1 else 'standalone__mha_block_cached__near_ridge.s'
    open(out, 'w').write(s)
    print('instructions', len(g.a.ins), 'nops inserted', g.a.nnop, 'bytes', len(s))
```

```python
import sys, struct, math
sys.path.insert(0, 'work')
from asmlib import Asm

KNAME = "standalone__mha_block_cached__near_ridge_kernel"
MF = "v_mfma_f32_16x16x32_bf16"
SLOT = 16384
XBUF = 9 * SLOT

S0 = 0; QN = 128; T0 = 160; NT = 12
VK, VV = 208, 209
VWQ = 210; VWO = 214
POOL = 218
KA0, VB0, QC0, OD0 = 226, 227, 228, 229
VM, VMC = 230, 231
TMP = 232
VL16 = 240; VPART = 241; VOA = 242; VOUT = 243
AOUT = 0; AX = 144; AO = 216; AL = 248; AONE = 252
sK, sV, sWQ, sWO, sX, sWS, sOUT, sDBG = 's[4:7]', 's[8:11]', 's[12:15]', 's[16:19]', 's[20:23]', 's[24:27]', 's[28:31]', 's[32:35]'
sW, sW4K, sB, sJ = 's36', 's37', 's38', 's39'
sKV, sKVN, sWQO, sWOO, sLOOP, sC = 's40', 's41', 's42', 's43', 's44', 's45'
sODD = 's[46:47]'
sT0, sT1, sT2, sT3 = 's48', 's49', 's50', 's51'
sPB = 's52'
sVS = 's[88:91]'
sFIRST = 's53'
VVS = 244
sLV = 's86'
sTHR = 's87'
ROT0 = 92
VCHK = 245

def vr(a, n=1): return f'v{a}' if n == 1 else f'v[{a}:{a+n-1}]'
def ar(a, n=1): return f'a{a}' if n == 1 else f'a[{a}:{a+n-1}]'

class Cfg:
    LA = 5
    kflags = None; vflags = None
    kvflags = 'nt'; wflags = ''; xflags = ''; pfflags = ''
    ra_b = 5; ra_t = 4; ra_o = 2
    pairwait = True
    q_groups = 10
    stamps = False
    skip_dma = ''; skip_compute = False; wfixed = False
    pf = 2; pf_b = 18; pf_mask = 1
    store_mode = 1
    poll_sleep = 16
    exit_at = 0
    k_early = 0
    two_kernel = False
    tlbwarm = False
    conv_inline = True
    codepf = True
    late_setup = True
    fullline = True
    shift = 0
    align = 0
    throttle = 0
    xorder = 1
    xdirect = True
    wgate = 1
    xp_nox = False
    xp_notail = 0
    pairbar = False
    sm_v_hi = 0
    olast = True
    klast = False
    dma_early = False
    bstamps = False
    dbgspan = False
    rot = 0
    xp_noexp = False
    xp_noq = False
    xp_halfv = False
    sm_in_v = True
    inline_store = False
    inline_b = False
    dflags = True
    dot_reduce = True
    outflags = ''
    istamps = False
    pf_first = False
    pf_wait = True
    pf_depth = 0
    golines = True
    fstamps = False
    sm_lo = 48
    sm_vhi = 32

RING = {'K': list(range(8)), 'Q': [8] + list(range(8)), 'V': list(range(8)), 'O': [8] + list(range(8))}

class G:
    def __init__(self, cfg):
        self.c = cfg; self.a = Asm()
        self.vm = []; self.lg = []; self.lgid = 0; self.tnext = 0; self.uid = 0
        self.slot_last_read = {}; self.pending = []; self.bk = 0
    def E(self, t): self.a(t)
    def vm_issue(self, tag): self.vm.append(tag)
    def vm_wait(self, pred):
        idx = [i for i, t in enumerate(self.vm) if pred(t)]
        if not idx: return
        n = min(len(self.vm) - 1 - max(idx), 63)
        self.E(f's_waitcnt vmcnt({n})')
        self.vm = self.vm[len(self.vm) - n:] if n else []
    def lg_issue(self):
        self.lgid += 1; self.lg.append(self.lgid); return self.lgid
    def lg_wait(self, i):
        if i not in self.lg: return
        n = min(len(self.lg) - 1 - self.lg.index(i), 15)
        self.E(f's_waitcnt lgkmcnt({n})')
        self.lg = self.lg[len(self.lg) - n:] if n else []
    def lg_drain(self):
        if self.lg: self.E('s_waitcnt lgkmcnt(0)'); self.lg = []

    def dma_ops(self, kind, idx, nxt, ring=None):
        c = self.c
        if ring is None: ring = RING[kind][idx]
        base = ring * SLOT
        if kind in ('K', 'V'):
            srd = sK if kind == 'K' else sVS
            voff = [VK if kind == 'K' else VVS] * 4
            sb = sKVN if nxt else sKV; so = idx * SLOT; fl = c.kvflags
            if kind == 'K' and c.kflags is not None: fl = c.kflags
            if kind == 'V' and c.vflags is not None: fl = c.vflags
        elif kind == 'Q':
            srd = sWQ; voff = [VWQ + p for p in range(4)]; sb = sWQO; so = idx * 64 * 8192; fl = c.wflags
        else:
            srd = sWO; voff = [VWO + p for p in range(4)]; sb = sWOO; so = idx * 128; fl = c.wflags
        tag = (kind, idx, nxt)
        st = sT0 if (self.uid & 1) == 0 else sT1
        self.uid += 1
        if kind in ('K', 'V') and c.rot: so = f's{64 + 0 + idx}' if False else f's{ROT0 + idx}'
        def piece(p):
            def f():
                if p == 0:
                    self.E(f's_add_u32 m0, {sW4K}, {base}')
                    self.E(f's_add_u32 {st}, {sb}, {so}')
                off = f' offset:{p*1024}' if p else ''
                if kind not in c.skip_dma:
                    self.E(f'buffer_load_dwordx4 {vr(voff[p])}, {srd}, {st} offen{off} {fl} lds'.replace('  ', ' '))
                    self.vm_issue(tag)
            return f
        return [piece(p) for p in range(4)]
    def flush_dma(self, k=99):
        while self.pending and k > 0:
            self.pending.pop(0)(); k -= 1
    def slot_sync(self, sid, tag, issue, extra=None):
        lr = self.slot_last_read.get(sid - 2)
        if lr is not None: self.lg_wait(lr)
        if extra: extra()
        if self.c.bstamps:
            k = self.bk; self.bk += 1
            self.E(f's_memtime s[{92 + 2*(k&1)}:{93 + 2*(k&1)}]')
        self.vm_wait(lambda t: t == tag)
        if self.c.throttle and tag[0] in 'KV':
            self.thr = getattr(self, 'thr', 0) + 1
            self.E(f's_cmp_eq_u32 {sTHR}, 0'); self.E(f's_cbranch_scc1 L_thr{self.thr}')
            self.E(f's_waitcnt vmcnt({self.c.throttle})')
            self.E(f'L_thr{self.thr}:')
        self.E('s_barrier')
        if self.c.bstamps:
            self.E(f's_memtime s[{96 + 2*(k&1)}:{97 + 2*(k&1)}]')
            if k > 0:
                self.E(f'v_writelane_b32 v246, s{92 + 2*((k-1)&1)}, {(k-1) % 64}')
                self.E(f'v_writelane_b32 v247, s{96 + 2*((k-1)&1)}, {(k-1) % 64}')
        for it in issue: self.pending += self.dma_ops(*it)

    def stream(self, ops):
        frags = []
        for i, o in enumerate(ops):
            if o.get('frag'):
                o['fi'] = len(frags); frags.append(o['frag'])
            else:
                o['fi'] = len(frags) - 1 if o.get('mf') and o.get('usefrag', True) else None
        rq = []
        for fi, f in enumerate(frags):
            for k in range(len(f['reads'])): rq.append((fi, k))
        rp = 0
        skip = self.c.skip_compute
        def issue_read():
            nonlocal rp
            fi, k = rq[rp]; f = frags[fi]
            if k == 0:
                if f.get('pre'): f['pre']()
                f['T'] = T0 + 4 * (self.tnext % NT); self.tnext += 1
            tmpl, w = f['reads'][k]
            if not skip:
                d = f['T'] + (2 * k if w == 2 else 0)
                self.E(tmpl.format(d=vr(d, w)))
                f['last'] = self.lg_issue()
                if f.get('slot') is not None: self.slot_last_read[f['slot']] = f['last']
            rp += 1
        for i, o in enumerate(ops):
            cur = o['fi'] if o['fi'] is not None else -1
            if o.get('dma'): self.flush_dma(o['dma'])
            if cur >= 0:
                ra = frags[cur].get('ra', 6)
            else:
                ra = 0
            target = cur + ra
            maxr = o.get('maxr', 2) + 1
            if i == 0: maxr = 99
            n = 0
            while rp < len(rq) and (rq[rp][0] <= cur or (rq[rp][0] <= target and n < maxr and len(self.lg) < 14)):
                issue_read(); n += 1
            if o.get('need'): o['need']()
            if cur >= 0 and o.get('mf') and not skip:
                f = frags[cur]
                if f['last'] in self.lg:
                    tgt = f['last']
                    if self.c.pairwait and cur + 1 < len(frags) and frags[cur + 1].get('last') in self.lg and frags[cur + 1].get('slot') is not None:
                        tgt = frags[cur + 1]['last']
                    self.lg_wait(tgt)
            for f in o.get('fill', []):
                if callable(f): f()
                elif not skip: self.E(f)
            if o.get('mf') and not skip:
                self.E(o['mf'](frags[cur]['T'] if cur >= 0 else None))
        assert rp == len(rq)

def build(cfg):
    g = G(cfg); E = g.E; c = cfg
    LA = c.LA
    if c.stamps or c.dbgspan: E('s_memrealtime s[60:61]')
    E('s_cmp_ge_u32 s2, 256')
    E('s_cbranch_scc1 L_done')
    for dst, off in ((20, 0), (4, 8), (8, 16), (12, 24), (16, 32), (28, 40), (32, 48), (24, 56)):
        E(f's_load_dwordx2 s[{dst}:{dst+1}], s[0:1], {off}')
    if c.codepf:
        E('s_getpc_b64 s[56:57]')
        E('L_pc:')
        E('v_lshlrev_b32 v113, 7, v0')
        E('v_mov_b32 v115, s57')
        E('v_add_co_u32 v114, vcc, s56, v113')
        E('v_addc_co_u32 v115, vcc, 0, v115, vcc')
        E('v_cmp_gt_u32 vcc, L_done-L_pc, v113')
        E('s_and_saveexec_b64 s[54:55], vcc')
        E('s_cbranch_execz L_cpf_skip')
        E('global_load_dword v116, v[114:115], off')
        E('L_cpf_skip:')
        E('s_mov_b64 exec, s[54:55]')
    late = []
    def EL(t):
        if c.late_setup: late.append(t)
        else: E(t)
    L, C_, G_, RR, CC, POS, X, Y = 100, 101, 102, 103, 104, 106, 107, 108
    E(f'v_and_b32 v{L}, 63, v0')
    E(f'v_lshrrev_b32 v{X}, 6, v0')
    E(f'v_readfirstlane_b32 {sW}, v{X}')
    E(f'v_and_b32 v{C_}, 15, v{L}')
    E(f'v_lshrrev_b32 v{G_}, 4, v{L}')
    E(f'v_lshrrev_b32 v{RR}, 2, v{L}')
    E(f'v_and_b32 v{RR}, 3, v{RR}')
    E(f'v_and_b32 v{CC}, 3, v{L}')
    E(f's_lshl_b32 {sW4K}, {sW}, 12')
    E(f's_and_b32 {sJ}, s2, 7')
    E(f's_lshr_b32 {sB}, s2, 3')
    E(f'v_lshlrev_b32 v{VL16}, 4, v{L}')
    EL(f's_lshl_b32 {sT0}, {sW}, 2')
    EL(f'v_add_u32 v{X}, {sT0}, v{G_}')
    EL(f'v_xor_b32 v{X}, v{X}, v{C_}')
    EL(f'v_lshlrev_b32 v{X}, 4, v{X}')
    EL(f'v_lshl_add_u32 v{X}, v{G_}, 8, v{X}')
    EL(f'v_add_u32 v{VK}, {sW4K}, v{X}')
    E(f's_and_b32 {sT1}, {sW}, 1')
    E(f's_lshl_b32 {sT1}, {sT1}, 3')
    EL(f'v_lshlrev_b32 v{X}, 1, v{G_}')
    EL(f'v_or_b32 v{X}, {sT1}, v{X}')
    EL(f'v_xor_b32 v{X}, v{X}, v{C_}')
    EL(f'v_lshlrev_b32 v{X}, 4, v{X}')
    EL(f'v_lshl_add_u32 v{X}, v{G_}, 8, v{X}')
    EL(f'v_add_u32 v{VV}, {sW4K}, v{X}')
    E(f'v_and_b32 v{X}, 1, v{G_}')
    E(f'v_lshrrev_b32 v{Y}, 1, v{G_}')
    E(f'v_lshl_or_b32 v{X}, v{Y}, 2, v{X}')
    E(f'v_or_b32 v{X}, {sT1}, v{X}')
    E(f'v_xor_b32 v{X}, v{X}, v{C_}')
    E(f'v_lshlrev_b32 v{X}, 4, v{X}')
    E(f'v_lshl_add_u32 v{X}, v{G_}, 13, v{X}')
    E(f's_lshl_b32 {sT2}, {sW}, 17')
    E(f'v_add_u32 v{VWQ}, {sT2}, v{X}')
    for p in range(1, 4): E(f'v_add_u32 v{VWQ+p}, {p*(32768-1024)}, v{VWQ}')
    EL(f'v_lshrrev_b32 v{X}, 3, v{L}')
    EL(f'v_and_b32 v{Y}, 6, v{X}')
    EL(f'v_and_b32 v{POS}, 7, v{L}')
    EL(f'v_xor_b32 v{Y}, v{Y}, v{POS}')
    EL(f'v_lshlrev_b32 v{Y}, 4, v{Y}')
    EL(f'v_mul_u32_u24 v{X}, 1152, v{X}')
    EL(f'v_add_u32 v{X}, v{X}, v{Y}')
    EL(f's_mul_i32 {sT2}, {sW}, {32*1152}')
    EL(f'v_add_u32 v{VWO}, {sT2}, v{X}')
    for p in range(1, 4): EL(f'v_add_u32 v{VWO+p}, {p*(8*1152-1024)}, v{VWO}')
    EL(f'v_lshrrev_b32 v{X}, 2, v{C_}')
    EL(f'v_lshlrev_b32 v{X}, 12, v{X}')
    EL(f'v_and_b32 v{Y}, 3, v{C_}')
    EL(f'v_lshl_add_u32 v{X}, v{Y}, 8, v{X}')
    EL(f'v_xor_b32 v{Y}, v{G_}, v{C_}')
    EL(f'v_lshl_add_u32 v{KA0}, v{Y}, 4, v{X}')
    ROWP, G1, C1 = 109, 110, 111
    EL(f'v_lshlrev_b32 v{ROWP}, 4, v{G_}')
    EL(f'v_add_u32 v{ROWP}, v{ROWP}, v{RR}')
    EL(f'v_lshlrev_b32 v{ROWP}, 8, v{ROWP}')
    EL(f'v_and_b32 v{G1}, 1, v{G_}')
    EL(f'v_lshlrev_b32 v{G1}, 3, v{G1}')
    EL(f'v_and_b32 v{C1}, 1, v{CC}')
    EL(f'v_lshlrev_b32 v{C1}, 3, v{C1}')
    EL(f'v_lshl_or_b32 v{X}, v{RR}, 1, v{G1}')
    EL(f'v_lshrrev_b32 v{Y}, 1, v{CC}')
    EL(f'v_xor_b32 v{X}, v{X}, v{Y}')
    EL(f'v_lshl_add_u32 v{X}, v{X}, 4, v{C1}')
    EL(f'v_add_u32 v{VB0}, v{ROWP}, v{X}')
    EL(f'v_and_b32 v{X}, 1, v{RR}')
    EL(f'v_lshrrev_b32 v{Y}, 1, v{RR}')
    EL(f'v_lshl_or_b32 v{X}, v{Y}, 2, v{X}')
    EL(f'v_or_b32 v{X}, v{X}, v{G1}')
    EL(f'v_xor_b32 v{X}, v{X}, v{CC}')
    EL(f'v_lshl_add_u32 v{X}, v{X}, 4, v{C1}')
    EL(f'v_add_u32 v{QC0}, v{ROWP}, v{X}')
    EL(f'v_lshrrev_b32 v{X}, 1, v{RR}')
    EL(f'v_lshlrev_b32 v{X}, 1, v{X}')
    EL(f'v_lshrrev_b32 v{Y}, 1, v{G1}')
    EL(f'v_or_b32 v{X}, v{X}, v{Y}')
    EL(f'v_lshrrev_b32 v{Y}, 1, v{CC}')
    EL(f's_lshl_b32 {sT2}, {sW}, 1')
    EL(f'v_add_u32 v{Y}, {sT2}, v{Y}')
    EL(f'v_xor_b32 v{X}, v{X}, v{Y}')
    EL(f'v_lshl_add_u32 v{X}, v{X}, 4, v{C1}')
    EL(f'v_lshlrev_b32 v{Y}, 2, v{G_}')
    EL(f'v_add_u32 v{Y}, v{Y}, v{RR}')
    EL(f'v_lshl_add_u32 v{OD0}, v{Y}, 7, v{X}')
    EL(f'v_and_b32 v{X}, 1, v{G_}')
    EL(f'v_cmp_eq_u32 {sODD}, 1, v{X}')
    XST = 3 * SLOT
    VX = 112
    E(f's_mul_i32 {sT2}, {sW}, {16*1152}')
    E(f'v_mul_u32_u24 v{X}, 1152, v{C_}')
    E(f'v_lshl_add_u32 v{X}, v{G_}, 5, v{X}')
    E(f'v_add_u32 v{VX}, {sT2}, v{X}')
    E(f'v_add_u32 v{VX}, {XST}, v{VX}')
    EL(f's_lshl_b32 {sT2}, {sW}, 10')
    EL(f'v_add_u32 v{VPART}, {sT2}, v{VL16}')
    EL(f'v_mul_u32_u24 v{VOUT}, 1152, v{C_}')
    EL(f'v_lshl_add_u32 v{VOUT}, v{G_}, 3, v{VOUT}')
    E(f's_lshl_b32 {sKV}, {sB}, 5')
    E(f's_lshl_b32 {sT2}, {sJ}, 2')
    E(f's_add_u32 {sKV}, {sKV}, {sT2}')
    E(f's_lshl_b32 {sKV}, {sKV}, 17')
    E(f's_mov_b32 {sKVN}, {sKV}')
    E(f's_lshl_b32 {sWQO}, {sJ}, 10')
    E(f's_mul_i32 {sWOO}, {sJ}, {4*128*1152}')
    cval = struct.unpack('<I', struct.pack('<f', (128 ** -0.5) * math.log2(math.e)))[0]
    E(f's_mov_b32 {sC}, {hex(cval)}')
    if c.pf == 4:
        E(f's_mul_i32 {sT2}, {sB}, 86'); E(f's_lshr_b32 {sT2}, {sT2}, 8'); E(f's_mul_i32 {sT2}, {sT2}, 3'); E(f's_sub_u32 {sLV}, {sB}, {sT2}')
    else:
        E(f's_and_b32 {sLV}, {sB}, 1')
    E(f's_lshl_b32 {sPB}, {sB}, 3')
    E(f's_add_u32 {sPB}, {sPB}, {sJ}')
    E(f's_mul_i32 {sPB}, {sPB}, {72*1024}')
    for i in range(4): EL(f'v_mov_b32 v{TMP+i}, 0')
    EL(f'v_mov_b32 v{TMP+4}, 0x3f803f80')
    for i in range(9): EL(f'v_mfma_f32_32x32x16_bf16 {ar(AOUT+16*i,16)}, {vr(TMP,4)}, {vr(TMP,4)}, 0')
    for i in range(4): EL(f'v_accvgpr_write_b32 a{AONE+i}, v{TMP+4}')
    EL(f'v_mov_b32 v{VVS}, v{VK}')
    EL(f'v_mov_b32 v{VCHK}, 0')
    E('s_waitcnt lgkmcnt(0)')
    if c.stamps: E('s_memrealtime s[82:83]')
    for base, nrec in ((4, 0x8000000), (8, 0x8000000), (12, 4718592), (16, 4718592), (20, 2359296), (24, 0x1400000 + 256*128), (28, 2359296), (32, 256)):
        E(f's_mov_b32 s{base+2}, {hex(nrec)}')
        E(f's_mov_b32 s{base+3}, 0x20000')
    if c.stamps: E('s_mov_b32 s26, 0x20000000')
    for i in range(4): E(f's_mov_b32 s{88+i}, s{4+i}')
    if c.rot:
        if c.rot == 1: E(f's_add_u32 {sT2}, {sB}, {sJ}')
        elif c.rot == 2: E(f's_mov_b32 {sT2}, {sB}')
        elif c.rot == 3:
            E(f's_lshr_b32 {sT2}, {sB}, 1'); E(f's_add_u32 {sT2}, {sT2}, {sJ}')
        elif c.rot == 4:
            E(f's_mul_i32 {sT2}, {sB}, 3'); E(f's_add_u32 {sT2}, {sT2}, {sJ}')
        for i in range(8):
            E(f's_add_u32 {sT3}, {sT2}, {i}'); E(f's_and_b32 {sT3}, {sT3}, 7'); E(f's_lshl_b32 s{ROT0+i}, {sT3}, 14')
    if c.tlbwarm:
        def touch(lo, off_code, dst):
            off_code()
            E(f's_add_u32 s86, s{lo}, {sT2}')
            E(f's_addc_u32 s87, s{lo+1}, 0')
            E(f's_load_dword s{dst}, s[86:87], 0')
        touch(20, lambda: E(f's_mul_i32 {sT2}, {sB}, {64*1152}'), 64)
        touch(4, lambda: E(f's_mov_b32 {sT2}, {sKV}'), 65)
        touch(8, lambda: E(f's_mov_b32 {sT2}, {sKV}'), 66)
        for k, off in enumerate((0, 1572864, 3145728, 4718588)):
            touch(12, lambda off=off: E(f's_mov_b32 {sT2}, {off}'), 67)
        touch(16, lambda: E(f's_mov_b32 {sT2}, {sWOO}'), 68)
        touch(16, lambda: E(f's_add_u32 {sT2}, {sWOO}, {4*128*1152-4}'), 68)
        touch(24, lambda: E(f's_mov_b32 {sT2}, {sPB}'), 69)
        touch(28, lambda: E(f's_mul_i32 {sT2}, {sB}, {64*1152}'), 69)
        E('s_load_dword s70, s[32:33], 0')

    def issue_now(kind, idx, nxt):
        for f in g.dma_ops(kind, idx, nxt): f()
    def pf_pieces(srd, n, sbase_code, step):
        sbase_code()
        E(f's_add_u32 m0, {sW4K}, {XBUF}')
        for k in range(n):
            E(f'buffer_load_dwordx4 v{VL16}, {srd}, {sT2} offen {c.pfflags} lds'.replace('  ', ' '))
            if k < n - 1: E(f's_add_u32 {sT2}, {sT2}, {step}')
    if c.pf:
        E(f's_lshl_b32 {sT2}, {sB}, 2'); E(f's_add_u32 {sT2}, {sT2}, {sW}'); E(f's_lshl_b32 {sT2}, {sT2}, 1')
        E(f's_cmp_ge_u32 {sT2}, 144'); E(f's_cselect_b32 {sT3}, 144, 0'); E(f's_sub_u32 {sT2}, {sT2}, {sT3}')
        E(f's_lshl_b32 {sT2}, {sT2}, 15'); E(f's_add_u32 {sT2}, {sT2}, {sWQO}')
        E(f'v_lshrrev_b32 v{X}, 4, v{L}'); E(f'v_lshlrev_b32 v{X}, 13, v{X}'); E(f'v_and_b32 v{Y}, 15, v{L}'); E(f'v_lshl_add_u32 v113, v{Y}, 4, v{X}')
        E(f's_add_u32 m0, {sW4K}, {XBUF}')
        for k in range(2):
            E(f'buffer_load_dwordx4 v113, {sWQ}, {sT2} offen {c.pfflags} lds'.replace('  ', ' '))
            if k == 0: E(f's_add_u32 {sT2}, {sT2}, 32768')
    if c.xdirect:
        E(f's_lshl_b32 {sT2}, {sB}, 6'); E(f's_lshl_b32 {sT3}, {sW}, 4'); E(f's_add_u32 {sT2}, {sT2}, {sT3}'); E(f's_mul_i32 {sT2}, {sT2}, 1152')
        E(f'v_mul_u32_u24 v{X}, 1152, v{C_}')
        E(f'v_lshl_add_u32 v{VX}, v{G_}, 5, v{X}')
        def xl(jj):
            for hs in range(2):
                E(f'buffer_load_dwordx4 {ar(AX + 4*(2*jj+hs), 4)}, v{VX}, {sX}, {sT2} offen offset:{128*jj+16*hs} {c.xflags}'.rstrip())
        order = [('Q', 0), ('x', 0), ('x', 1)] + [('Q', i) for i in range(1, LA)] + [('x', j) for j in range(2, 9)]
        if c.xorder == 1: order = [('x', j) for j in range(9)] + [('Q', i) for i in range(LA)]
        if c.xorder == 2: order = [('x', j) for j in range(5)] + [('Q', 0), ('Q', 1)] + [('x', j) for j in range(5, 9)] + [('Q', i) for i in range(2, LA)]
        sim = []
        for kind, i in order:
            if kind == 'Q':
                issue_now('Q', i, False); sim += [('Q', i)] * 4
            else:
                xl(i); sim += [('x', i)] * 2
        N = 4 * (LA - 1)
        q = list(sim)
        for j in range(9):
            q = q[-N:] if len(q) > N else q
            assert ('x', j) not in q and ('Q', j) not in q, (j, q)
            q += [('n', j)] * 4
        if c.stamps: E('s_memrealtime s[84:85]')
    else:
        E(f's_lshl_b32 {sT2}, {sB}, 6'); E(f's_lshl_b32 {sT3}, {sW}, 4'); E(f's_add_u32 {sT2}, {sT2}, {sT3}'); E(f's_mul_i32 {sT2}, {sT2}, 1152')
        E(f's_mul_i32 {sT3}, {sW}, 18432'); E(f's_add_u32 {sT3}, {sT3}, {XST}')
        for k in range(18):
            if k % 4 == 0:
                E(f's_add_u32 m0, {sT3}, {k*1024}')
                if k: E(f's_add_u32 {sT2}, {sT2}, 4096')
                else: E('s_nop 0')
            off = f' offset:{(k%4)*1024}' if k % 4 else ''
            if not c.xp_nox:
                E(f'buffer_load_dwordx4 v{VL16}, {sX}, {sT2} offen{off} {c.xflags} lds'.replace('  ', ' '))
                g.vm_issue(('X', k))
        for i in range(4): issue_now('Q', i, False)
        g.vm_wait(lambda t: t[0] == 'X')
        if c.stamps: E('s_memrealtime s[84:85]')
        E('s_waitcnt lgkmcnt(0)')
        if not c.skip_compute:
            for jj in range(9):
                for hs in range(2):
                    E(f'ds_read_b128 {ar(AX + 4*(2*jj+hs), 4)}, v{VX} offset:{128*jj+16*hs}')
                    if (2 * jj + hs) % 8 == 7: E('s_waitcnt lgkmcnt(0)')
            E('s_waitcnt lgkmcnt(0)')

    if late:
        E(f's_and_b32 {sT1}, {sW}, 1'); E(f's_lshl_b32 {sT1}, {sT1}, 3')
    for t in late: E(t)
    if c.golines:
        E(f's_cmp_lg_u32 {sW}, 0')
        E('s_cbranch_scc1 L_noinit')
        E(f's_lshl_b32 {sT2}, s2, 7'); E(f's_add_u32 {sT2}, {sT2}, 0x1400000')
        E(f'v_mov_b32 v{TMP+2}, 0')
        E(f'v_lshrrev_b32 v{TMP+3}, 2, v{VL16}')
        E(f'v_cmp_gt_u32 vcc, 256, v{VL16}')
        E('s_and_saveexec_b64 s[54:55], vcc')
        E(f'buffer_store_dword v{TMP+2}, v{TMP+3}, {sWS}, {sT2} offen sc1')
        E('s_mov_b64 exec, s[54:55]')
        E('L_noinit:')
    sid = [0]
    def pool_init(pat, variants, win):
        L_ = []
        for v, xb in enumerate(variants):
            d = POOL + v
            if xb == 0: L_.append(f'v_add_u32 v{d}, {win*65536}, v{pat}' if win else f'v_mov_b32 v{d}, v{pat}')
            else: L_.append(f'v_xor_b32 v{d}, {xb}, v{POOL}')
        for t in L_: E(t)

    def mk_pre(seq, p, my, extra=None, after=None, issue=None, j=None, n_in_phase=None, issue_map=None):
        def pre():
            if c.pairbar and j is not None:
                if j % 2 == 1:
                    if after: after()
                    return
                n = 2 if j + 1 < n_in_phase else 1
                g.flush_dma()
                if issue_map is not None: iss = sum((issue_map[j + i] for i in range(n)), [])
                else: iss = [seq[p + LA + i] for i in range(n) if p + LA + i < len(seq)]
                g.slot_sync(my, seq[p + n - 1], iss, extra)
                if after: after()
                return
            g.flush_dma()
            iss = issue if issue is not None else ([seq[p + LA]] if p + LA < len(seq) else [])
            g.slot_sync(my, seq[p], iss, extra)
            if after: after()
        return pre

    def k_ops(seq, p0, issue_map=None):
        ops = []
        for j in range(8):
            ring = RING['K'][j]; win, inw = ring >> 2, (ring & 3) * SLOT
            my = sid[0]; sid[0] += 1
            for u in range(4):
                T = 4 * j + u
                for s in range(4):
                    fr = {'slot': my, 'ra': c.ra_b, 'reads': [(f'ds_read_b128 {{d}}, v{POOL+s} offset:{inw + u*1024}', 4)]}
                    if u == 0 and s == 0:
                        fr['pre'] = mk_pre(seq, p0 + j, my, j=j, n_in_phase=8, issue_map=issue_map, issue=(issue_map[j] if issue_map else None), after=(lambda win=win: pool_init(KA0, [0, 64, 128, 192], win)) if j % 4 == 0 else None)
                    D = vr(S0 + 4 * T, 4); B = vr(QN + 8 * s, 4)
                    o = {'frag': fr, 'maxr': 1, 'fill': [],
                         'mf': (lambda t, D=D, B=B, s=s: f'{MF} {D}, {vr(t,4)}, {B}, {D if s else 0}')}
                    if (s == 2 and not c.dma_early) or (c.dma_early and u == 2): o['dma'] = 1
                    if T >= 2 and s in (1, 3):
                        a = S0 + 4 * (T - 2) + (0 if s == 1 else 2)
                        o['fill'].append(f'v_max3_f32 v{VM}, v{a}, v{a+1}, v{VM}')
                    ops.append(o)
        return ops
    def q_ops(seq, p0, issue_map=None):
        ops = []
        for j in range(9):
            ring = RING['Q'][j]; win, inw = ring >> 2, (ring & 3) * SLOT
            my = sid[0]; sid[0] += 1
            for hs in range(2):
                for s in range(4):
                    for u in range(2):
                        v = 2 * s + u
                        fr = {'slot': my, 'ra': c.ra_t, 'reads': [(f'ds_read_b64_tr_b16 {{d}}, v{POOL+v} offset:{inw + (8*hs+4*t)*256}', 2) for t in range(2)]}
                        if hs == 0 and v == 0:
                            fr['pre'] = mk_pre(seq, p0 + j, my, j=j, n_in_phase=9, issue=(issue_map.get(j) if issue_map else None),
                                               after=(lambda win=win: pool_init(QC0, [0, 8, 64, 72, 128, 136, 192, 200], win)) if j in (0, 1, 5) else None)
                        D = vr(QN + 4 * v, 4); B = ar(AX + 4 * (2 * j + hs), 4)
                        first = (j == 0 and hs == 0)
                        o = {'frag': fr, 'fill': [], 'mf': (lambda t, D=D, B=B, first=first: f'{MF} {D}, {vr(t,4)}, {B}, {0 if first else D}')}
                        if (v in (1, 5) and not c.dma_early) or (c.dma_early and hs == 0 and v >= 4): o['dma'] = 1
                        ops.append(o)
        return ops
    def v_ops(seq, p0):
        ops = []
        for j in range(8):
            ring = RING['V'][j]; win, inw = ring >> 2, (ring & 3) * SLOT
            my = sid[0]; sid[0] += 1
            for hf in range(2):
                uu = 2 * j + hf
                for td in range(8):
                    fr = {'slot': my, 'ra': c.ra_t, 'reads': [(f'ds_read_b64_tr_b16 {{d}}, v{POOL+td} offset:{inw + (8*hf+4*t)*256}', 2) for t in range(2)]}
                    if hf == 0 and td == 0:
                        fr['pre'] = mk_pre(seq, p0 + j, my, j=j, n_in_phase=8, after=(lambda win=win: pool_init(VB0, [i << 5 for i in range(8)], win)) if j % 4 == 0 else None)
                    D = ar(AO + 4 * td, 4); B = vr(S0 + 8 * uu, 4)
                    o = {'frag': fr, 'fill': [], 'uu': uu, 'mf': (lambda t, D=D, B=B, uu=uu: f'{MF} {D}, {vr(t,4)}, {B}, {D if uu else 0}')}
                    if (td in (2, 5) and not c.dma_early) or (c.dma_early and hf == 0 and td >= 4): o['dma'] = 1
                    ops.append(o)
                DL = ar(AL, 4); B = vr(S0 + 8 * uu, 4)
                ops.append({'frag': None, 'usefrag': True, 'fill': [], 'uu': uu, 'maxr': 2,
                            'mf': (lambda t, B=B, uu=uu, DL=DL: f'{MF} {DL}, {ar(AONE,4)}, {B}, {DL if uu else 0}')})
        return ops
    def o_ops(seq, p0, extra0, after0):
        ops = []
        for j in range(9):
            ring = RING['O'][j]; win, inw = ring >> 2, (ring & 3) * SLOT
            my = sid[0]; sid[0] += 1
            for s in range(4):
                fr = {'slot': my, 'ra': c.ra_o, 'reads': [(f'ds_read_b64_tr_b16 {{d}}, v{VOA} offset:{inw + s*4096 + t*2048}', 2) for t in range(2)]}
                if s == 0:
                    def after(j=j, win=win):
                        if j == 0: after0()
                        if j in (0, 1, 5): E(f'v_add_u32 v{VOA}, {win*65536}, v{OD0}' if win else f'v_mov_b32 v{VOA}, v{OD0}')
                    fr['pre'] = mk_pre(seq, p0 + j, my, j=j, n_in_phase=9, extra=(extra0 if j == 0 else None), after=after)
                for qt in range(4):
                    D = ar(AOUT + 4 * (4 * j + qt), 4); B = vr(S0 + 4 * (4 * s + qt), 4)
                    o = {'frag': fr if qt == 0 else None, 'maxr': 1, 'fill': [], 'mf': (lambda t, D=D, B=B: f'{MF} {D}, {vr(t,4)}, {B}, {D}')}
                    if qt == 2: o['dma'] = 1
                    ops.append(o)
        return ops

    def exp_group(uu):
        b = S0 + 8 * uu
        L_ = [f'v_fma_f32 v{b+i}, v{b+i}, {sC}, -v{VMC}' for i in range(8)]
        L_ += [f'v_exp_f32 v{b+i}, v{b+i}' for i in range(8)]
        L_ += [f'v_cvt_pk_bf16_f32 v{b+i}, v{b+2*i}, v{b+2*i+1}' for i in range(4)]
        return L_
    def max_finish():
        L_ = []
        for T in (30, 31):
            a = S0 + 4 * T
            L_ += [f'v_max3_f32 v{VM}, v{a}, v{a+1}, v{VM}', f'v_max3_f32 v{VM}, v{a+2}, v{a+3}, v{VM}']
        L_ += [f'v_mov_b32 v{TMP}, v{VM}', f'v_permlane32_swap_b32 v{VM}, v{TMP}', f'v_max_f32 v{VM}, v{VM}, v{TMP}',
               f'v_mov_b32 v{TMP}, v{VM}', f'v_permlane16_swap_b32 v{VM}, v{TMP}', f'v_max_f32 v{VM}, v{VM}, v{TMP}',
               f'v_mul_f32 v{VMC}, {sC}, v{VM}']
        return L_
    def q_finalize():
        L_ = []
        for s in range(4):
            a = QN + 8 * s; t = TMP + 4 * (s & 1)
            L_ += [f'v_cvt_pk_bf16_f32 v{t}, v{a}, v{a+1}', f'v_cvt_pk_bf16_f32 v{t+1}, v{a+2}, v{a+3}',
                   f'v_cvt_pk_bf16_f32 v{t+2}, v{a+4}, v{a+5}', f'v_cvt_pk_bf16_f32 v{t+3}, v{a+6}, v{a+7}']
            L_ += [f'v_cndmask_b32 v{a}, v{t}, v{t+2}, {sODD}', f'v_cndmask_b32 v{a+1}, v{t+1}, v{t+3}, {sODD}',
                   f'v_cndmask_b32 v{a+2}, v{t+2}, v{t}, {sODD}', f'v_cndmask_b32 v{a+3}, v{t+3}, v{t+1}, {sODD}']
        return L_
    def distribute(ops, fillers, lo, hi):
        n = hi - lo
        for k, f in enumerate(fillers):
            ops[lo + (k * n) // len(fillers)]['fill'].append(f)

    def gate_arrive():
        E(f's_cmp_lg_u32 {sW}, 0')
        E('s_cbranch_scc1 L_ga_done')
        E(f'v_mov_b32 v{TMP+4}, 1')
        E(f'v_mov_b32 v{TMP+5}, 0')
        E(f's_lshl_b32 {sT2}, {sJ}, 5')
        E(f's_add_u32 {sT2}, {sT2}, 4')
        E(f'v_cmp_eq_u32 vcc, 0, v{VL16}')
        E('s_and_saveexec_b64 s[54:55], vcc')
        E(f'buffer_atomic_add v{TMP+4}, v{TMP+5}, {sDBG}, {sT2} offen sc1')
        E('s_mov_b64 exec, s[54:55]')
        E('L_ga_done:')
    def gate_wait():
        E(f's_cmp_lg_u32 {sW}, 0')
        E('s_cbranch_scc1 L_gw_done')
        E(f'v_lshlrev_b32 v{TMP+5}, 1, v{VL16}')
        E(f'v_add_u32 v{TMP+5}, 4, v{TMP+5}')
        E(f's_mov_b32 {sT3}, 0')
        E('L_gw_poll:')
        E(f'buffer_load_dword v{TMP+4}, v{TMP+5}, {sDBG}, 0 offen sc1')
        E('s_waitcnt vmcnt(0)')
        E(f'v_cmp_le_u32 vcc, 32, v{TMP+4}')
        E(f's_cmp_eq_u32 vcc_lo, 0xff')
        E('s_cbranch_scc1 L_gw_done')
        E(f's_sleep {c.poll_sleep}')
        E(f's_add_u32 {sT3}, {sT3}, 1')
        E(f's_cmp_lt_u32 {sT3}, 0x40000')
        E('s_cbranch_scc1 L_gw_poll')
        E('L_gw_done:')
        E('s_barrier')
        g.vm = []
    def o_finalize():
        tl = 64
        E(f'v_accvgpr_read_b32 v{tl}, a{AL}')
        E(f'v_add_u32 v{TMP}, {XBUF}, v{VPART}')
        E(f'v_rcp_f32 v{tl}, v{tl}')
        for s in range(4):
            t = 72 + 12 * s
            for i in range(8): E(f'v_accvgpr_read_b32 v{t+i}, a{AO + 8*s + i}')
            for i in range(8): E(f'v_mul_f32 v{t+i}, v{t+i}, v{tl}')
            for i in range(4): E(f'v_cvt_pk_bf16_f32 v{t+8+i}, v{t+2*i}, v{t+2*i+1}')
            E(f'ds_write_b128 v{TMP}, {vr(t+8,4)} offset:{s*4096}')
            g.lg_issue()
    def o_load_frags():
        E(f'v_add_u32 v{TMP}, {XBUF}, v{VL16}')
        for i in range(16):
            E(f'ds_read_b128 {vr(S0+4*i,4)}, v{TMP} offset:{i*1024}')
            g.o_frag_last = g.lg_issue()

    if not c.xdirect:
        E('s_barrier')
        for i in range(4, LA): issue_now('Q', i, False)
    if c.pf:
        npc = 9 if c.pf == 1 else c.pf_b
        if c.pf == 2:
            E(f's_and_b32 s58, {sB}, {c.pf_mask}')
            E(f's_cmp_eq_u32 s58, 0'); E('s_cbranch_scc1 L_nopf')
            E(f's_lshr_b32 s59, {sB}, 1')
            E(f's_lshl_b32 s59, s59, 2'); E(f's_add_u32 s59, s59, {sW}'); E(f's_mul_i32 s59, s59, {npc}')
            E(f's_add_u32 s58, s59, {npc}')
        elif c.pf == 3:
            E(f's_and_b32 s57, {sB}, 3')
            E(f's_cmp_eq_u32 s57, 0'); E('s_cbranch_scc1 L_nopf')
            E(f's_lshr_b32 s59, {sB}, 2'); E(f's_mul_i32 s59, s59, 144')
            E(f's_sub_u32 s56, s57, 1'); E(f's_mul_i32 s56, s56, s57'); E(f's_mul_i32 s56, s56, 12')
            E(f's_add_u32 s59, s59, s56')
            E(f's_mul_i32 s57, s57, 6')
            E(f's_mul_i32 s56, s57, {sW}'); E(f's_add_u32 s59, s59, s56')
            E(f's_add_u32 s58, s59, s57')
        elif c.pf == 4:
            E(f's_mul_i32 s56, {sB}, 86'); E(f's_lshr_b32 s56, s56, 8')
            E(f's_mul_i32 s57, s56, 3'); E(f's_sub_u32 s57, {sB}, s57')
            E(f's_cmp_eq_u32 s57, 0'); E('s_cbranch_scc1 L_nopf')
            E(f's_mul_i32 s59, s56, 112')
            E(f's_cmp_eq_u32 s57, 2'); E(f's_cselect_b32 s56, 36, 0'); E(f's_cselect_b32 s57, 19, 9')
            E(f's_add_u32 s59, s59, s56')
            E(f's_mul_i32 s56, s57, {sW}'); E(f's_add_u32 s59, s59, s56')
            E(f's_add_u32 s58, s59, s57')
        else:
            E(f's_mov_b32 s59, {sB}')
            E(f's_lshl_b32 s59, s59, 2'); E(f's_add_u32 s59, s59, {sW}'); E(f's_mul_i32 s59, s59, {npc}')
            E(f's_add_u32 s58, s59, {npc}')
        E(f's_add_u32 m0, {sW4K}, {XBUF}')
        E('L_pf:')
        E(f's_cmp_ge_u32 s59, 576'); E('s_cbranch_scc1 L_pfo')
        E(f's_lshl_b32 s56, s59, 13'); E(f's_lshl_b32 s57, {sJ}, 10'); E(f's_add_u32 s56, s56, s57')
        E(f'buffer_load_dwordx4 v{VL16}, {sWQ}, s56 offen {c.pfflags} lds'.replace('  ', ' '))
        E('s_branch L_pfn')
        E('L_pfo:')
        E(f's_sub_u32 s56, s59, 576'); E(f's_lshl_b32 s56, s56, 10'); E(f's_mul_i32 s57, {sJ}, {4*128*1152}'); E(f's_add_u32 s56, s56, s57')
        E(f'buffer_load_dwordx4 v{VL16}, {sWO}, s56 offen {c.pfflags} lds'.replace('  ', ' '))
        E('L_pfn:')
        if c.pf_depth: E(f's_waitcnt vmcnt({c.pf_depth})')
        E('s_add_u32 s59, s59, 1'); E('s_cmp_lt_u32 s59, s58'); E('s_cbranch_scc1 L_pf')
        if c.pf_wait: E('s_waitcnt vmcnt(0)')
        E('L_nopf:')
    E(f's_mov_b32 {sFIRST}, 1')
    if c.throttle: E(f's_mov_b32 {sTHR}, 0')
    E(f's_mov_b32 {sLOOP}, 0')
    E('s_branch L_Q')
    for _ in range(c.shift): E('s_nop 0')

    seq = [('K', i, False) for i in range(8)] + [('Q', i, False) for i in range(9)] + [('V', i, False) for i in range(8)] + \
          [('O', i, False) for i in range(9)] + [('K', i, True) for i in range(8)]
    def st(i):
        if c.istamps: return
        if c.stamps and not c.fstamps: E(f's_memtime s[{72+2*i}:{73+2*i}]')
        if c.stamps and c.fstamps: E(f's_memrealtime s[{72+2*i}:{73+2*i}]')
    def vpos(vi, uu): return next(i for i, o in enumerate(vi) if o['uu'] == uu)
    groups = [exp_group(uu) if not c.xp_noexp else exp_group(uu)[16:] for uu in range(16)]
    if c.align: E(f'.p2align {c.align}')
    E('L_K:')
    g.vm = [('K', i, False) for i in range(LA) for _ in range(4)] if 'K' not in c.skip_dma else []
    g.lg = []; g.slot_last_read = {}
    st(0)
    E(f'v_mov_b32 v{VM}, 0xff800000')
    g.stream(k_ops(seq, 0))
    g.flush_dma(); g.lg_drain()
    nq = c.q_groups
    if c.sm_in_v and not c.klast:
        E(f's_cmp_eq_u32 {sLOOP}, 3')
        E('s_cbranch_scc1 L_skipq')
    E('L_Q:')
    st(1)
    qi = q_ops(seq, 8)
    fl = max_finish()
    if not c.sm_in_v:
        for k, f in enumerate(fl): qi[3 + k]['fill'].append(f)
        distribute(qi, sum(groups[:nq], []), max(c.sm_lo, 3 + len(fl) + 1), len(qi))
    if c.xp_noq:
        for o in qi:
            o['mf'] = None
            if o.get('frag'): o['frag']['reads'] = [('s_nop 0 ; {d}', 4)]
    g.stream(qi)
    g.flush_dma(); g.lg_drain()
    E(f's_cmp_lg_u32 {sFIRST}, 0')
    E('s_cbranch_scc1 L_first_done')
    E('L_V:')
    st(2)
    vi = v_ops(seq, 17)
    if c.sm_in_v:
        vi[0]['fill'] += fl + groups[0] + groups[1]
        rest = [(None, f) for f in q_finalize()]
        allrest = [(uu, f) for uu in range(2, 16) for f in groups[uu]]
        lo, hi = 1, (c.sm_v_hi or vpos(vi, 15) - 3)
        for k, (uu, f) in enumerate(allrest):
            i = min(lo + (k * (hi - lo)) // len(allrest), vpos(vi, uu) - 2)
            vi[i]['fill'].append(f)
        distribute(vi, q_finalize(), len(vi) - 18, len(vi) - 1)
    else:
        distribute(vi, q_finalize(), 2, 18)
        allrest = [(uu, f) for uu in range(nq, 16) for f in groups[uu]]
        lo, hi = 2, max(c.sm_vhi, 4)
        for k, (uu, f) in enumerate(allrest):
            i = min(lo + (k * (hi - lo)) // len(allrest), vpos(vi, uu) - 2)
            vi[i]['fill'].append(f)
    def drop_next():
        if not c.olast:
            E(f's_cmp_eq_u32 {sLOOP}, 3')
            E('s_cselect_b32 s6, 0, s6')
        if not (c.klast and c.sm_in_v):
            E(f's_cmp_eq_u32 {sLOOP}, 2')
            E('s_cselect_b32 s14, 0, s14')
    vi[20]['fill'].append(drop_next)
    if c.dflags:
        def rdchk():
            E(f's_cmp_lg_u32 {sLOOP}, 3'); E('s_cbranch_scc1 L_nochk')
            E(f's_cmp_lg_u32 {sW}, 0'); E('s_cbranch_scc1 L_nochk')
            E(f's_lshl_b32 {sT2}, {sB}, 3'); E(f's_add_u32 {sT2}, {sT2}, 4')
            E(f'v_mov_b32 v{TMP+7}, 0')
            E(f'buffer_load_dword v{VCHK}, v{TMP+7}, {sDBG}, {sT2} offen sc1')
            E('L_nochk:')
        vi[24]['fill'].append(rdchk)
    g.stream(vi)
    g.flush_dma()
    st(3)
    if not c.skip_compute: o_finalize()
    if c.olast:
        E(f's_cmp_eq_u32 {sLOOP}, 3')
        E('s_cbranch_scc1 L_Olast')
        saved = (list(g.vm), list(g.lg), dict(g.slot_last_read), sid[0], g.tnext)
    oi = o_ops(seq, 25, (lambda: g.lg_drain()), (o_load_frags if not c.skip_compute else (lambda: None)))
    if not c.skip_compute: oi[0]['need'] = lambda: g.lg_wait(g.o_frag_last)
    def preg(j, h):
        k = 2 * j + h
        return 64 + 4 * k if k < 14 else 128 + 4 * (k - 14)
    def conv(j, h):
        t = 120
        L_ = []
        for k in range(2):
            for i in range(4): L_.append(f'v_accvgpr_read_b32 v{t + 4*k + i}, a{AOUT + 4*(4*j + 2*h + k) + i}')
        d = preg(j, h)
        for i in range(4): L_.append(f'v_cvt_pk_bf16_f32 v{d+i}, v{t+2*i}, v{t+2*i+1}')
        return L_
    def mk_store(j, h):
        def f():
            E(f's_add_u32 {sT2}, {sPB}, {(2*j+h)*4096}')
            E(f'buffer_store_dwordx4 {vr(preg(j,h),4)}, v{VPART}, {sWS}, {sT2} offen sc1')
        return f
    post = []
    if not c.skip_compute and not c.olast:
        for j in range(9):
            blk = conv(j, 0) + conv(j, 1)
            pos = 16 * (j + 1) + 4
            if pos < len(oi) and c.conv_inline:
                def cb(blk=blk, j=j):
                    E(f's_cmp_lg_u32 {sLOOP}, 3'); E(f's_cbranch_scc1 L_cv{j}')
                    for t in blk[:12]: E(t)
                    if c.inline_store: mk_store(j, 0)()
                    for t in blk[12:]: E(t)
                    if c.inline_store: mk_store(j, 1)()
                    if c.inline_b:
                        E(f's_bitcmp1_b32 {sB}, 0'); E(f's_cbranch_scc0 L_cv{j}')
                        mk_store(j, 0)(); mk_store(j, 1)()
                    E(f'L_cv{j}:')
                oi[pos]['fill'].append(cb)
            else:
                post += blk
    g.stream(oi)
    g.flush_dma(); g.lg_drain()
    st(4)
    if not c.skip_dma: assert g.vm[-4*LA:] == [('K', i, True) for i in range(LA) for _ in range(4)], g.vm
    E(f's_mov_b32 {sKV}, {sKVN}')
    E(f's_add_u32 {sKVN}, {sKVN}, 131072')
    if not c.wfixed:
        E(f's_add_u32 {sWQO}, {sWQO}, 256')
        E(f's_add_u32 {sWOO}, {sWOO}, {128*1152}')
    E(f's_add_u32 {sLOOP}, {sLOOP}, 1')
    if c.throttle:
        E(f's_and_b32 {sT2}, {sB}, 1'); E(f's_lshl_b32 {sT2}, {sT2}, 4'); E(f's_add_u32 {sT2}, {sT2}, {sLOOP}')
        E(f's_cmp_eq_u32 {sT2}, 3'); E(f's_cselect_b32 {sTHR}, 1, 0')
    if c.stamps:
        E(f's_cmp_eq_u32 {sLOOP}, 3'); E('s_cbranch_scc0 L_ns3'); E('s_memrealtime s[64:65]'); E('L_ns3:')
        if c.istamps:
            for t in range(1, 5):
                E(f's_cmp_eq_u32 {sLOOP}, {t}'); E(f's_cbranch_scc0 L_is{t}'); E(f's_memrealtime s[{72+2*t}:{73+2*t}]'); E(f'L_is{t}:')
    if c.sm_in_v and c.klast:
        E(f's_cmp_lt_u32 {sLOOP}, 3')
        E('s_cbranch_scc1 L_K')
        if c.exit_at != 2:
            E(f's_cmp_eq_u32 {sLOOP}, 3')
            E('s_cbranch_scc1 L_Klast')
    else:
        E(f's_cmp_lt_u32 {sLOOP}, {4 if c.exit_at != 2 else 3}')
        E('s_cbranch_scc1 L_K')
    if c.exit_at == 2: E('s_branch L_stamps')
    E('s_branch L_exit')
    if c.sm_in_v and c.klast:
        E('L_Klast:')
        g.vm = [('K', i, False) for i in range(LA) for _ in range(4)] if 'K' not in c.skip_dma else []
        g.lg = []; g.slot_last_read = {}; g.pending = []
        st(0)
        E(f'v_mov_b32 v{VM}, 0xff800000')
        lst = [('K', i, False) for i in range(LA, 8)] + [('V', i, False) for i in range(LA)]
        g.stream(k_ops(seq, 0, {p: [lst[p]] for p in range(8)}))
        g.flush_dma(); g.lg_drain()
        if not c.skip_dma: assert g.vm[-4*LA:] == [('V', i, False) for i in range(LA) for _ in range(4)], g.vm
        E('s_branch L_V')
    if c.sm_in_v and not c.klast:
        E('L_skipq:')
        E('s_barrier')
        for i in range(LA):
            for f in g.dma_ops('V', i, False): f()
        E('s_branch L_V')
    if c.olast:
        E('L_Olast:')
        if c.wgate == 1:
            late = 2 if c.pf == 4 else 1
            E(f's_cmp_lg_u32 {sLV}, {late}'); E('s_cbranch_scc1 L_nosig')
            E(f's_cmp_lg_u32 {sW}, 0'); E('s_cbranch_scc1 L_nosig')
            E(f's_sub_u32 {sT2}, s2, {8*late}'); E(f's_lshl_b32 {sT2}, {sT2}, 7'); E(f's_add_u32 {sT2}, {sT2}, {0x1400000 + 32}')
            E(f'v_mov_b32 v{TMP+4}, 1'); E(f'v_lshlrev_b32 v{TMP+5}, 6, v{VL16}')
            E(f'v_cmp_gt_u32 vcc, {16*late}, v{VL16}')
            E('s_and_saveexec_b64 s[54:55], vcc')
            E(f'buffer_store_dword v{TMP+4}, v{TMP+5}, {sWS}, {sT2} offen sc1')
            E('s_mov_b64 exec, s[54:55]')
            E('L_nosig:')
        g.vm, g.lg, g.slot_last_read, sid[0], g.tnext = list(saved[0]), list(saved[1]), dict(saved[2]), saved[3], saved[4]
        g.pending = []
        seq_l = seq[:34]
        ol = o_ops(seq_l, 25, (lambda: g.lg_drain()), (o_load_frags if not c.skip_compute else (lambda: None)))
        if not c.skip_compute:
            ol[0]['need'] = lambda: g.lg_wait(g.o_frag_last)
            for j in range(8):
                blk = conv(j, 0) + conv(j, 1)
                lo = 16 * (j + 1) + 2
                distribute(ol, blk, lo, lo + 13)
                def stb(j=j):
                    if c.xp_notail == 2: return
                    if c.inline_store:
                        mk_store(j, 0)(); mk_store(j, 1)()
                    elif c.inline_b:
                        E(f's_bitcmp1_b32 {sB}, 0'); E(f's_cbranch_scc0 L_sb{j}')
                        mk_store(j, 0)(); mk_store(j, 1)()
                        E(f'L_sb{j}:')
                ol[lo + 13]['fill'].append(stb)
            post = conv(8, 0) + conv(8, 1)
        g.stream(ol)
        g.flush_dma(); g.lg_drain()
        st(4)
        E('s_branch L_exit')
    E('L_first_done:')
    E('s_nop 7')
    for t in q_finalize(): E(t)
    E('s_mov_b32 s88, s8'); E('s_mov_b32 s89, s9')
    E(f'v_mov_b32 v{VVS}, v{VV}')
    E(f's_add_u32 {sWQO}, {sWQO}, 256')
    E(f's_add_u32 {sKVN}, {sKVN}, 131072')
    E(f's_mov_b32 {sFIRST}, 0')
    if c.dflags:
        E(f's_cmp_lg_u32 {sW}, 0'); E('s_cbranch_scc1 L_noid')
        E(f's_lshl_b32 {sT2}, {sB}, 3'); E(f's_add_u32 {sT2}, {sT2}, 4')
        E(f'v_mov_b32 v{TMP}, 1'); E(f'v_mov_b32 v{TMP+1}, 0')
        E(f'v_cmp_eq_u32 vcc, 0, v{VL16}')
        E('s_and_saveexec_b64 s[54:55], vcc')
        E(f'buffer_atomic_add v{TMP}, v{TMP+1}, {sDBG}, {sT2} offen sc1')
        E('s_mov_b64 exec, s[54:55]')
        E('L_noid:')
    if c.stamps: E('s_memrealtime s[62:63]')
    if c.istamps: E('s_memrealtime s[72:73]')
    if c.exit_at == 1: E('s_branch L_stamps')
    E('s_branch L_K')
    E('L_exit:')
    E('s_nop 7')
    for t in post: E(t)
    def gate_code():
        E(f's_cmp_lg_u32 {sW}, 0'); E('s_cbranch_scc1 L_gate_ok')
        E(f's_lshl_b32 {sT0}, s2, 7'); E(f's_add_u32 {sT0}, {sT0}, {0x1400000 + 32}')
        E(f'v_mov_b32 v{TMP+5}, 0'); E(f's_mov_b32 {sT1}, 0')
        E('L_gate:')
        E(f'buffer_load_dword v{TMP+4}, v{TMP+5}, {sWS}, {sT0} offen sc1')
        E('s_waitcnt vmcnt(0)')
        E(f'v_readfirstlane_b32 {sT3}, v{TMP+4}')
        E(f's_cmp_eq_u32 {sT3}, 1'); E('s_cbranch_scc1 L_gate_ok')
        E('s_sleep 2')
        E(f's_add_u32 {sT1}, {sT1}, 1'); E(f's_cmp_lt_u32 {sT1}, 48'); E('s_cbranch_scc1 L_gate')
        E('L_gate_ok:')
        E('s_barrier')
    if c.xp_notail == 2:
        pass
    elif c.store_mode == 1 and not c.skip_compute:
        if c.inline_b:
            for h in range(2): mk_store(8, h)()
            E(f's_bitcmp1_b32 {sB}, 0'); E('s_cbranch_scc1 L_stored')
            if c.wgate: gate_code()
            for j in range(8):
                for h in range(2): mk_store(j, h)()
            E('L_stored:')
        else:
            if c.wgate:
                late = 2 if c.pf == 4 else 1
                E(f's_cmp_eq_u32 {sLV}, {late}'); E('s_cbranch_scc1 L_nogate')
                if c.pf == 4:
                    E(f's_cmp_ge_u32 {sB}, 30'); E('s_cbranch_scc1 L_nogate')
                gate_code()
                E('L_nogate:')
            for j in range(9):
                if c.inline_store and c.conv_inline and j < 8: continue
                for h in range(2): mk_store(j, h)()
    return g, E

def reduce_code(E, c):
    E(f's_mul_i32 {sT0}, {sJ}, 9')
    E(f's_add_u32 {sT0}, {sT0}, {sW}')
    E(f's_lshl_b32 {sT1}, {sB}, 3')
    E(f's_mul_i32 {sT1}, {sT1}, {72*1024}')
    fl = '' if c.two_kernel else 'sc1'
    def load_piece(k):
        E(f's_add_u32 {sT2}, {sT0}, {4*k}')
        E(f's_lshl_b32 {sT2}, {sT2}, 10')
        E(f's_add_u32 {sT2}, {sT2}, {sT1}')
        for src in range(8):
            E(f'buffer_load_dwordx4 {vr(32*k + 4*src, 4)}, v{VL16}, {sWS}, {sT2} offen {fl}')
            if src < 7: E(f's_add_u32 {sT2}, {sT2}, {72*1024}')
    def sum_store(k):
        b = 32 * k
        if c.dot_reduce:
            for i in range(8): E(f'v_mov_b32 v{100+i}, 0')
            for src in range(8):
                for d in range(4):
                    E(f'v_dot2c_f32_bf16 v{100+2*d}, v{b+4*src+d}, v112')
                    E(f'v_dot2c_f32_bf16 v{101+2*d}, v{b+4*src+d}, v113')
            E('s_nop 2')
        else:
            for d in range(4):
                E(f'v_lshlrev_b32 v{100+2*d}, 16, v{b+d}')
                E(f'v_and_b32 v{101+2*d}, 0xffff0000, v{b+d}')
            for src in range(1, 8):
                for d in range(4):
                    E(f'v_lshlrev_b32 v{108+2*d}, 16, v{b+4*src+d}')
                    E(f'v_and_b32 v{109+2*d}, 0xffff0000, v{b+4*src+d}')
                for i in range(8): E(f'v_add_f32 v{100+i}, v{100+i}, v{108+i}')
        for d in range(4): E(f'v_cvt_pk_bf16_f32 v{116+4*k+d}, v{100+2*d}, v{101+2*d}')
        E(f's_add_u32 {sT2}, {sT0}, {4*k}')
        E(f's_lshr_b32 {sT3}, {sT2}, 3')
        E(f's_lshl_b32 {sT3}, {sT3}, 2')
        E(f's_and_b32 s56, {sT2}, 3')
        E(f's_add_u32 {sT3}, {sT3}, s56')
        E(f's_lshl_b32 {sT3}, {sT3}, 5')
        E(f's_lshr_b32 s56, {sT2}, 2')
        E(f's_and_b32 s56, s56, 1')
        E(f's_lshl_b32 s56, s56, 5')
        E(f's_lshl_b32 s57, {sB}, 6')
        E(f's_add_u32 s56, s56, s57')
        E(f's_mul_i32 s56, s56, 1152')
        E(f's_add_u32 s56, s56, {sT3}')
        E(f'buffer_store_dwordx2 {vr(116+4*k,2)}, v{VOUT}, {sOUT}, s56 offen {c.outflags}')
        E(f's_add_u32 s56, s56, {16*1152}')
        E(f'buffer_store_dwordx2 {vr(118+4*k,2)}, v{VOUT}, {sOUT}, s56 offen {c.outflags}')
    E('v_mov_b32 v112, 0x00003f80'); E('v_mov_b32 v113, 0x3f800000')
    load_piece(0); load_piece(1)
    E(f's_cmp_lg_u32 {sW}, 0')
    E('s_cbranch_scc1 L_two')
    load_piece(2)
    E('L_two:')
    E('s_waitcnt vmcnt(8)')
    sum_store(0)
    E('s_waitcnt vmcnt(2)')
    sum_store(1)
    E(f's_cmp_lg_u32 {sW}, 0')
    E('s_cbranch_scc1 L_red_done')
    sum_store(2)
    E('L_red_done:')

def reduce_code2(E, c):
    E(f's_lshl_b32 {sT1}, {sB}, 3')
    E(f's_mul_i32 {sT1}, {sT1}, {72*1024}')
    E('v_mov_b32 v112, 0x00003f80'); E('v_mov_b32 v113, 0x3f800000')
    E(f'v_lshrrev_b32 v114, 4, v{VL16}')
    E('v_and_b32 v115, 15, v114')
    E('v_lshrrev_b32 v116, 4, v114')
    E('v_and_b32 v117, 1, v116')
    E('v_lshl_add_u32 v115, v117, 4, v115')
    E('v_lshrrev_b32 v116, 1, v116')
    E(f's_lshl_b32 {sT2}, {sW}, 1')
    E(f'v_add_u32 v116, {sT2}, v116')
    E('v_and_b32 v117, 7, v115')
    E('v_xor_b32 v116, v116, v117')
    E('v_lshlrev_b32 v116, 4, v116')
    E('v_lshl_add_u32 v118, v115, 7, v116')
    E('v_lshrrev_b32 v115, 3, v114')
    E(f's_lshl_b32 {sT2}, {sW}, 3')
    E(f'v_add_u32 v115, {sT2}, v115')
    E('v_and_b32 v116, 7, v114')
    E('v_and_b32 v117, 7, v115')
    E('v_xor_b32 v117, v117, v116')
    E('v_lshlrev_b32 v117, 4, v117')
    E('v_lshl_add_u32 v119, v115, 7, v117')
    E('v_mul_u32_u24 v115, 1152, v115')
    E('v_lshl_add_u32 v120, v116, 4, v115')
    def grp(k):
        if k < 2: E(f's_add_u32 {sT0}, {sJ}, {8*k}')
        else: E(f's_add_u32 {sT0}, {sJ}, 16')
    def load_piece(k):
        grp(k)
        E(f's_lshl_b32 {sT2}, {sT0}, 2'); E(f's_add_u32 {sT2}, {sT2}, {sW}')
        E(f's_lshl_b32 {sT2}, {sT2}, 10')
        E(f's_add_u32 {sT2}, {sT2}, {sT1}')
        for src in range(8):
            E(f'buffer_load_dwordx4 {vr(32*k + 4*src, 4)}, v{VL16}, {sWS}, {sT2} offen sc1')
            if src < 7: E(f's_add_u32 {sT2}, {sT2}, {72*1024}')
    def sum_piece(k):
        b = 32 * k; r = 124 + 0
        for i in range(8): E(f'v_mov_b32 v{100+i}, 0')
        for src in range(8):
            for d in range(4):
                E(f'v_dot2c_f32_bf16 v{100+2*d}, v{b+4*src+d}, v112')
                E(f'v_dot2c_f32_bf16 v{101+2*d}, v{b+4*src+d}, v113')
        E('s_nop 2')
        for d in range(4): E(f'v_cvt_pk_bf16_f32 v{r+d}, v{100+2*d}, v{101+2*d}')
        E(f'v_permlane16_swap_b32 v{r}, v{r+2}')
        E(f'v_permlane16_swap_b32 v{r+1}, v{r+3}')
        E(f'ds_write_b128 v118, {vr(r,4)} offset:{k*4096}')
    def store_rows(k):
        grp(k)
        E(f's_and_b32 {sT3}, {sT0}, 1'); E(f's_lshl_b32 {sT3}, {sT3}, 5')
        E(f's_lshl_b32 s57, {sB}, 6'); E(f's_add_u32 {sT3}, {sT3}, s57'); E(f's_mul_i32 {sT3}, {sT3}, 1152')
        E(f's_lshr_b32 s56, {sT0}, 1'); E(f's_lshl_b32 s56, s56, 7'); E(f's_add_u32 {sT3}, {sT3}, s56')
        E(f'buffer_store_dwordx4 {vr(4*k,4)}, v120, {sOUT}, {sT3} offen {c.outflags}'.rstrip())
    load_piece(0); load_piece(1)
    E(f's_cmp_ge_u32 {sJ}, 2'); E('s_cbranch_scc1 L_r2a')
    load_piece(2)
    E('L_r2a:')
    E('s_waitcnt vmcnt(8)')
    sum_piece(0)
    E('s_waitcnt vmcnt(0)')
    sum_piece(1)
    E(f's_cmp_ge_u32 {sJ}, 2'); E('s_cbranch_scc1 L_r2b')
    sum_piece(2)
    E('L_r2b:')
    E('s_waitcnt lgkmcnt(0)')
    E('s_barrier')
    for k in range(3): E(f'ds_read_b128 {vr(4*k,4)}, v119 offset:{k*4096}')
    E('s_waitcnt lgkmcnt(0)')
    store_rows(0); store_rows(1)
    E(f's_cmp_ge_u32 {sJ}, 2'); E('s_cbranch_scc1 L_r2c')
    store_rows(2)
    E('L_r2c:')

def finish(g, E, c):
    E('s_waitcnt vmcnt(0)')
    if c.stamps: E('s_memrealtime s[66:67]')
    if not c.two_kernel and c.xp_notail != 2:
        E('s_barrier')
        E(f's_lshl_b32 {sT0}, {sB}, 3')
        E(f's_cmp_lg_u32 {sW}, 0')
        E('s_cbranch_scc1 L_wait_done')
        E(f'v_mov_b32 v{TMP}, 1')
        E(f'v_mov_b32 v{TMP+1}, 0')
        if c.dflags:
            E(f's_add_u32 {sT0}, {sT0}, 4')
            E(f's_mov_b32 {sT1}, 0')
            E('L_chk:')
            E(f'v_readfirstlane_b32 {sT2}, v{VCHK}')
            E(f's_cmp_ge_u32 {sT2}, 8'); E('s_cbranch_scc1 L_chk_ok')
            E(f'buffer_load_dword v{VCHK}, v{TMP+1}, {sDBG}, {sT0} offen sc1')
            E('s_waitcnt vmcnt(0)')
            E(f's_add_u32 {sT1}, {sT1}, 1'); E(f's_cmp_lt_u32 {sT1}, 0x40000'); E('s_cbranch_scc1 L_chk')
            E('L_chk_ok:')
            E(f's_lshl_b32 {sT3}, {sB}, 10'); E(f's_lshl_b32 {sT2}, {sJ}, 2'); E(f's_add_u32 {sT3}, {sT3}, {sT2}'); E(f's_add_u32 {sT3}, {sT3}, 0x1400000')
            E(f'v_lshlrev_b32 v{TMP+1}, 3, v{VL16}')
            E(f'v_cmp_gt_u32 vcc, 128, v{VL16}')
            E('s_and_saveexec_b64 s[54:55], vcc')
            E(f'buffer_store_dword v{TMP}, v{TMP+1}, {sWS}, {sT3} offen sc1')
            E('s_mov_b64 exec, s[54:55]')
            E(f's_lshl_b32 {sT0}, s2, 7'); E(f's_add_u32 {sT0}, {sT0}, 0x1400000')
            E(f'v_lshrrev_b32 v{TMP+1}, 2, v{VL16}')
            E(f'v_and_b32 v{TMP+1}, 31, v{TMP+1}')
            E(f's_mov_b32 {sT1}, 0')
            E('L_poll:')
            E(f'buffer_load_dword v{TMP+2}, v{TMP+1}, {sWS}, {sT0} offen sc1')
            E('s_waitcnt vmcnt(0)')
            E(f'v_cmp_eq_u32 vcc, 1, v{TMP+2}')
            E(f's_cmp_eq_u64 vcc, -1')
            E('s_cbranch_scc1 L_wait_done')
            E(f's_sleep 1')
            E(f's_add_u32 {sT1}, {sT1}, 1')
            E(f's_cmp_lt_u32 {sT1}, 0x40000')
            E('s_cbranch_scc1 L_poll')
        elif c.golines:
            E(f'v_cmp_eq_u32 vcc, 0, v{VL16}')
            E('s_and_saveexec_b64 s[54:55], vcc')
            E(f'buffer_atomic_add v{TMP}, v{TMP+1}, {sDBG}, {sT0} offen sc0 sc1')
            E('s_waitcnt vmcnt(0)')
            E('s_mov_b64 exec, s[54:55]')
            E(f'v_readfirstlane_b32 {sT2}, v{TMP}')
            E(f's_and_b32 {sT2}, {sT2}, 7')
            E(f's_cmp_eq_u32 {sT2}, 7')
            E('s_cbranch_scc0 L_notlast')
            E(f's_lshl_b32 {sT3}, {sB}, 10'); E(f's_add_u32 {sT3}, {sT3}, 0x1400000')
            E(f'v_lshlrev_b32 v{TMP+1}, 3, v{VL16}')
            E(f'v_mov_b32 v{TMP}, 1')
            E(f'v_cmp_gt_u32 vcc, 128, v{VL16}')
            E('s_and_saveexec_b64 s[54:55], vcc')
            E(f'buffer_store_dword v{TMP}, v{TMP+1}, {sWS}, {sT3} offen sc1')
            E('s_mov_b64 exec, s[54:55]')
            E('s_branch L_wait_done')
            E('L_notlast:')
            E(f's_lshl_b32 {sT0}, s2, 7'); E(f's_add_u32 {sT0}, {sT0}, 0x1400000')
            E(f'v_mov_b32 v{TMP+1}, 0')
            E(f's_mov_b32 {sT1}, 0')
            E('L_poll:')
            E(f'buffer_load_dword v{TMP+2}, v{TMP+1}, {sWS}, {sT0} offen sc1')
            E('s_waitcnt vmcnt(0)')
            E(f'v_readfirstlane_b32 {sT2}, v{TMP+2}')
            E(f's_cmp_eq_u32 {sT2}, 1')
            E('s_cbranch_scc1 L_wait_done')
            E(f's_sleep 2')
            E(f's_add_u32 {sT1}, {sT1}, 1')
            E(f's_cmp_lt_u32 {sT1}, 0x40000')
            E('s_cbranch_scc1 L_poll')
        else:
            E(f'v_cmp_eq_u32 vcc, 0, v{VL16}')
            E('s_and_saveexec_b64 s[54:55], vcc')
            E(f'buffer_atomic_add v{TMP}, v{TMP+1}, {sDBG}, {sT0} offen sc1')
            E('s_mov_b64 exec, s[54:55]')
            E(f's_mov_b32 {sT1}, 0')
            E('L_poll:')
            E(f'buffer_load_dword v{TMP+2}, v{TMP+1}, {sDBG}, {sT0} offen sc1')
            E('s_waitcnt vmcnt(0)')
            E(f'v_readfirstlane_b32 {sT2}, v{TMP+2}')
            E(f's_cmp_ge_u32 {sT2}, 8')
            E('s_cbranch_scc1 L_wait_done')
            E(f's_sleep {min(c.poll_sleep, 8)}')
            E(f's_add_u32 {sT1}, {sT1}, 1')
            E(f's_cmp_lt_u32 {sT1}, 0x40000')
            E('s_cbranch_scc1 L_poll')
        E('L_wait_done:')
        E('s_barrier')
        if c.stamps: E('s_memrealtime s[68:69]')
        if not c.xp_notail: (reduce_code2 if c.fullline else reduce_code)(E, c)
    if c.stamps:
        E('L_stamps:')
        E('s_waitcnt vmcnt(0)')
        E('s_memrealtime s[70:71]')
        E('s_waitcnt lgkmcnt(0)')
        for i in range(12): E(f'v_mov_b32 v{i}, s{60+i}')
        for i in range(4): E(f'v_mov_b32 v{12+i}, s{72+2*i}')
        E('v_mov_b32 v16, s80'); E('v_mov_b32 v17, s82'); E('v_mov_b32 v18, s84')
        E(f's_lshl_b32 {sT0}, s2, 2'); E(f's_add_u32 {sT0}, {sT0}, {sW}'); E(f's_lshl_b32 {sT0}, {sT0}, 7'); E(f's_add_u32 {sT0}, {sT0}, 0x10000000')
        if c.bstamps:
            E(f's_lshl_b32 {sT1}, s2, 2'); E(f's_add_u32 {sT1}, {sT1}, {sW}'); E(f's_lshl_b32 {sT1}, {sT1}, 9'); E(f's_add_u32 {sT1}, {sT1}, 0x11000000')
            E(f'v_lshrrev_b32 v21, 2, v{VL16}')
            E(f'buffer_store_dword v246, v21, {sWS}, {sT1} offen')
            E(f'buffer_store_dword v247, v21, {sWS}, {sT1} offen offset:256')
        E(f'v_cmp_eq_u32 vcc, 0, v{VL16}')
        E('s_and_saveexec_b64 s[54:55], vcc')
        E('v_mov_b32 v20, 0')
        for i in range(4): E(f'buffer_store_dwordx4 {vr(4*i,4)}, v20, {sWS}, {sT0} offen offset:{16*i}')
        E(f'buffer_store_dwordx3 v[16:18], v20, {sWS}, {sT0} offen offset:64')
    if c.dbgspan:
        E('s_waitcnt vmcnt(0)')
        E('s_memrealtime s[70:71]')
        E('s_waitcnt lgkmcnt(0)')
        E(f's_cmp_lg_u32 {sW}, 0'); E('s_cbranch_scc1 L_done')
        E('s_not_b32 s60, s60')
        E('v_mov_b32 v1, s60'); E('v_mov_b32 v2, s70'); E('v_mov_b32 v3, 0')
        E(f'v_cmp_eq_u32 vcc, 0, v{VL16}')
        E('s_and_saveexec_b64 s[54:55], vcc')
        E(f'buffer_atomic_umax v1, v3, {sDBG}, 0 offen offset:0 sc1')
        E(f'buffer_atomic_umax v2, v3, {sDBG}, 0 offen offset:8 sc1')
    E('L_done:')
    E('s_endpgm')

DESC = '''.section .rodata,"a"
.p2align 6
.amdhsa_kernel {name}
  .amdhsa_next_free_vgpr {vg}
  .amdhsa_next_free_sgpr 100
  .amdhsa_accum_offset {acc}
  .amdhsa_group_segment_fixed_size 0
  .amdhsa_kernarg_size 64
  .amdhsa_user_sgpr_count 2
  .amdhsa_user_sgpr_kernarg_segment_ptr 1
  .amdhsa_system_sgpr_workgroup_id_x 1
.end_amdhsa_kernel
'''
def gen(cfg=None):
    c = cfg or Cfg()
    g, E = build(c)
    finish(g, E, c)
    body = g.a.finalize()
    head = f'''; fused MHA block: q-projection + attention + out-projection, one workgroup per (batch, 4 heads)
; @launch grid=(256,1,1) block=(256,1,1) lds=163840
.amdgcn_target "amdgcn-amd-amdhsa--gfx950"
.text
.globl {KNAME}
.p2align 8
.type {KNAME},@function
{KNAME}:
'''
    return head + body + DESC.format(name=KNAME, vg=512, acc=256), g

if __name__ == '__main__':
    s, g = gen()
    out = sys.argv[1] if len(sys.argv) > 1 else 'standalone__mha_block_cached__near_ridge.s'
    open(out, 'w').write(s)
    print('instructions', len(g.a.ins), 'nops inserted', g.a.nnop, 'bytes', len(s))
```

```python
import sys, struct, math
sys.path.insert(0, 'work')
from asmlib import Asm

KNAME = "standalone__mha_block_cached__near_ridge_kernel"
MF = "v_mfma_f32_16x16x32_bf16"
SLOT = 16384
XBUF = 9 * SLOT

S0 = 0; QN = 128; T0 = 160; NT = 12
VK, VV = 208, 209
VWQ = 210; VWO = 214
POOL = 218
KA0, VB0, QC0, OD0 = 226, 227, 228, 229
VM, VMC = 230, 231
TMP = 232
VL16 = 240; VPART = 241; VOA = 242; VOUT = 243
AOUT = 0; AX = 144; AO = 216; AL = 248; AONE = 252
sK, sV, sWQ, sWO, sX, sWS, sOUT, sDBG = 's[4:7]', 's[8:11]', 's[12:15]', 's[16:19]', 's[20:23]', 's[24:27]', 's[28:31]', 's[32:35]'
sW, sW4K, sB, sJ = 's36', 's37', 's38', 's39'
sKV, sKVN, sWQO, sWOO, sLOOP, sC = 's40', 's41', 's42', 's43', 's44', 's45'
sODD = 's[46:47]'
sT0, sT1, sT2, sT3 = 's48', 's49', 's50', 's51'
sPB = 's52'
sVS = 's[88:91]'
sFIRST = 's53'
VVS = 244
sLV = 's86'
sTHR = 's87'
ROT0 = 92
VCHK = 245

def vr(a, n=1): return f'v{a}' if n == 1 else f'v[{a}:{a+n-1}]'
def ar(a, n=1): return f'a{a}' if n == 1 else f'a[{a}:{a+n-1}]'

class Cfg:
    LA = 5
    kflags = None; vflags = None
    kvflags = 'nt'; wflags = ''; xflags = ''; pfflags = ''
    ra_b = 5; ra_t = 4; ra_o = 2
    pairwait = True
    q_groups = 10
    stamps = False
    skip_dma = ''; skip_compute = False; wfixed = False
    pf = 2; pf_b = 18; pf_mask = 1
    store_mode = 1
    poll_sleep = 16
    exit_at = 0
    k_early = 0
    two_kernel = False
    tlbwarm = False
    conv_inline = True
    codepf = True
    late_setup = True
    fullline = True
    shift = 0
    align = 0
    throttle = 0
    xorder = 1
    xdirect = True
    wgate = 1
    xp_nox = False
    xp_notail = 0
    pairbar = False
    sm_v_hi = 0
    olast = True
    klast = False
    dma_early = False
    bstamps = False
    dbgspan = False
    rot = 0
    xp_noexp = False
    xp_noq = False
    xp_halfv = False
    sm_in_v = True
    inline_store = False
    inline_b = False
    dflags = True
    dot_reduce = True
    outflags = ''
    istamps = False
    pf_first = False
    pf_wait = True
    pf_depth = 0
    golines = True
    fstamps = False
    sm_lo = 48
    sm_vhi = 32

RING = {'K': list(range(8)), 'Q': [8] + list(range(8)), 'V': list(range(8)), 'O': [8] + list(range(8))}

class G:
    def __init__(self, cfg):
        self.c = cfg; self.a = Asm()
        self.vm = []; self.lg = []; self.lgid = 0; self.tnext = 0; self.uid = 0
        self.slot_last_read = {}; self.pending = []; self.bk = 0
    def E(self, t): self.a(t)
    def vm_issue(self, tag): self.vm.append(tag)
    def vm_wait(self, pred):
        idx = [i for i, t in enumerate(self.vm) if pred(t)]
        if not idx: return
        n = min(len(self.vm) - 1 - max(idx), 63)
        self.E(f's_waitcnt vmcnt({n})')
        self.vm = self.vm[len(self.vm) - n:] if n else []
    def lg_issue(self):
        self.lgid += 1; self.lg.append(self.lgid); return self.lgid
    def lg_wait(self, i):
        if i not in self.lg: return
        n = min(len(self.lg) - 1 - self.lg.index(i), 15)
        self.E(f's_waitcnt lgkmcnt({n})')
        self.lg = self.lg[len(self.lg) - n:] if n else []
    def lg_drain(self):
        if self.lg: self.E('s_waitcnt lgkmcnt(0)'); self.lg = []

    def dma_ops(self, kind, idx, nxt, ring=None):
        c = self.c
        if ring is None: ring = RING[kind][idx]
        base = ring * SLOT
        if kind in ('K', 'V'):
            srd = sK if kind == 'K' else sVS
            voff = [VK if kind == 'K' else VVS] * 4
            sb = sKVN if nxt else sKV; so = idx * SLOT; fl = c.kvflags
            if kind == 'K' and c.kflags is not None: fl = c.kflags
            if kind == 'V' and c.vflags is not None: fl = c.vflags
        elif kind == 'Q':
            srd = sWQ; voff = [VWQ + p for p in range(4)]; sb = sWQO; so = idx * 64 * 8192; fl = c.wflags
        else:
            srd = sWO; voff = [VWO + p for p in range(4)]; sb = sWOO; so = idx * 128; fl = c.wflags
        tag = (kind, idx, nxt)
        st = sT0 if (self.uid & 1) == 0 else sT1
        self.uid += 1
        if kind in ('K', 'V') and c.rot: so = f's{64 + 0 + idx}' if False else f's{ROT0 + idx}'
        def piece(p):
            def f():
                if p == 0:
                    self.E(f's_add_u32 m0, {sW4K}, {base}')
                    self.E(f's_add_u32 {st}, {sb}, {so}')
                off = f' offset:{p*1024}' if p else ''
                if kind not in c.skip_dma:
                    self.E(f'buffer_load_dwordx4 {vr(voff[p])}, {srd}, {st} offen{off} {fl} lds'.replace('  ', ' '))
                    self.vm_issue(tag)
            return f
        return [piece(p) for p in range(4)]
    def flush_dma(self, k=99):
        while self.pending and k > 0:
            self.pending.pop(0)(); k -= 1
    def slot_sync(self, sid, tag, issue, extra=None):
        lr = self.slot_last_read.get(sid - 2)
        if lr is not None: self.lg_wait(lr)
        if extra: extra()
        if self.c.bstamps:
            k = self.bk; self.bk += 1
            self.E(f's_memtime s[{92 + 2*(k&1)}:{93 + 2*(k&1)}]')
        self.vm_wait(lambda t: t == tag)
        if self.c.throttle and tag[0] in 'KV':
            self.thr = getattr(self, 'thr', 0) + 1
            self.E(f's_cmp_eq_u32 {sTHR}, 0'); self.E(f's_cbranch_scc1 L_thr{self.thr}')
            self.E(f's_waitcnt vmcnt({self.c.throttle})')
            self.E(f'L_thr{self.thr}:')
        self.E('s_barrier')
        if self.c.bstamps:
            self.E(f's_memtime s[{96 + 2*(k&1)}:{97 + 2*(k&1)}]')
            if k > 0:
                self.E(f'v_writelane_b32 v246, s{92 + 2*((k-1)&1)}, {(k-1) % 64}')
                self.E(f'v_writelane_b32 v247, s{96 + 2*((k-1)&1)}, {(k-1) % 64}')
        for it in issue: self.pending += self.dma_ops(*it)

    def stream(self, ops):
        frags = []
        for i, o in enumerate(ops):
            if o.get('frag'):
                o['fi'] = len(frags); frags.append(o['frag'])
            else:
                o['fi'] = len(frags) - 1 if o.get('mf') and o.get('usefrag', True) else None
        rq = []
        for fi, f in enumerate(frags):
            for k in range(len(f['reads'])): rq.append((fi, k))
        rp = 0
        skip = self.c.skip_compute
        def issue_read():
            nonlocal rp
            fi, k = rq[rp]; f = frags[fi]
            if k == 0:
                if f.get('pre'): f['pre']()
                f['T'] = T0 + 4 * (self.tnext % NT); self.tnext += 1
            tmpl, w = f['reads'][k]
            if not skip:
                d = f['T'] + (2 * k if w == 2 else 0)
                self.E(tmpl.format(d=vr(d, w)))
                f['last'] = self.lg_issue()
                if f.get('slot') is not None: self.slot_last_read[f['slot']] = f['last']
            rp += 1
        for i, o in enumerate(ops):
            cur = o['fi'] if o['fi'] is not None else -1
            if o.get('dma'): self.flush_dma(o['dma'])
            if cur >= 0:
                ra = frags[cur].get('ra', 6)
            else:
                ra = 0
            target = cur + ra
            maxr = o.get('maxr', 2) + 1
            if i == 0: maxr = 99
            n = 0
            while rp < len(rq) and (rq[rp][0] <= cur or (rq[rp][0] <= target and n < maxr and len(self.lg) < 14)):
                issue_read(); n += 1
            if o.get('need'): o['need']()
            if cur >= 0 and o.get('mf') and not skip:
                f = frags[cur]
                if f['last'] in self.lg:
                    tgt = f['last']
                    if self.c.pairwait and cur + 1 < len(frags) and frags[cur + 1].get('last') in self.lg and frags[cur + 1].get('slot') is not None:
                        tgt = frags[cur + 1]['last']
                    self.lg_wait(tgt)
            for f in o.get('fill', []):
                if callable(f): f()
                elif not skip: self.E(f)
            if o.get('mf') and not skip:
                self.E(o['mf'](frags[cur]['T'] if cur >= 0 else None))
        assert rp == len(rq)

def build(cfg):
    g = G(cfg); E = g.E; c = cfg
    LA = c.LA
    if c.stamps or c.dbgspan: E('s_memrealtime s[60:61]')
    E('s_cmp_ge_u32 s2, 256')
    E('s_cbranch_scc1 L_done')
    for dst, off in ((20, 0), (12, 24), (4, 8), (8, 16), (16, 32), (28, 40), (32, 48), (24, 56)):
        E(f's_load_dwordx2 s[{dst}:{dst+1}], s[0:1], {off}')
    if c.codepf:
        E('s_getpc_b64 s[56:57]')
        E('L_pc:')
        E('v_lshlrev_b32 v113, 7, v0')
        E('v_mov_b32 v115, s57')
        E('v_add_co_u32 v114, vcc, s56, v113')
        E('v_addc_co_u32 v115, vcc, 0, v115, vcc')
        E('v_cmp_gt_u32 vcc, L_done-L_pc, v113')
        E('s_and_saveexec_b64 s[54:55], vcc')
        E('s_cbranch_execz L_cpf_skip')
        E('global_load_dword v116, v[114:115], off')
        E('L_cpf_skip:')
        E('s_mov_b64 exec, s[54:55]')
    late = []
    def EL(t):
        if c.late_setup: late.append(t)
        else: E(t)
    L, C_, G_, RR, CC, POS, X, Y = 100, 101, 102, 103, 104, 106, 107, 108
    E(f'v_and_b32 v{L}, 63, v0')
    E(f'v_lshrrev_b32 v{X}, 6, v0')
    E(f'v_readfirstlane_b32 {sW}, v{X}')
    E(f'v_and_b32 v{C_}, 15, v{L}')
    E(f'v_lshrrev_b32 v{G_}, 4, v{L}')
    EL(f'v_lshrrev_b32 v{RR}, 2, v{L}')
    EL(f'v_and_b32 v{RR}, 3, v{RR}')
    EL(f'v_and_b32 v{CC}, 3, v{L}')
    E(f's_lshl_b32 {sW4K}, {sW}, 12')
    E(f's_and_b32 {sJ}, s2, 7')
    E(f's_lshr_b32 {sB}, s2, 3')
    E(f'v_lshlrev_b32 v{VL16}, 4, v{L}')
    EL(f's_lshl_b32 {sT0}, {sW}, 2')
    EL(f'v_add_u32 v{X}, {sT0}, v{G_}')
    EL(f'v_xor_b32 v{X}, v{X}, v{C_}')
    EL(f'v_lshlrev_b32 v{X}, 4, v{X}')
    EL(f'v_lshl_add_u32 v{X}, v{G_}, 8, v{X}')
    EL(f'v_add_u32 v{VK}, {sW4K}, v{X}')
    E(f's_and_b32 {sT1}, {sW}, 1')
    E(f's_lshl_b32 {sT1}, {sT1}, 3')
    EL(f'v_lshlrev_b32 v{X}, 1, v{G_}')
    EL(f'v_or_b32 v{X}, {sT1}, v{X}')
    EL(f'v_xor_b32 v{X}, v{X}, v{C_}')
    EL(f'v_lshlrev_b32 v{X}, 4, v{X}')
    EL(f'v_lshl_add_u32 v{X}, v{G_}, 8, v{X}')
    EL(f'v_add_u32 v{VV}, {sW4K}, v{X}')
    E(f'v_and_b32 v{X}, 1, v{G_}')
    E(f'v_lshrrev_b32 v{Y}, 1, v{G_}')
    E(f'v_lshl_or_b32 v{X}, v{Y}, 2, v{X}')
    E(f'v_or_b32 v{X}, {sT1}, v{X}')
    E(f'v_xor_b32 v{X}, v{X}, v{C_}')
    E(f'v_lshlrev_b32 v{X}, 4, v{X}')
    E(f'v_lshl_add_u32 v{X}, v{G_}, 13, v{X}')
    E(f's_lshl_b32 {sT2}, {sW}, 17')
    E(f'v_add_u32 v{VWQ}, {sT2}, v{X}')
    for p in range(1, 4): E(f'v_add_u32 v{VWQ+p}, {p*(32768-1024)}, v{VWQ}')
    EL(f'v_lshrrev_b32 v{X}, 3, v{L}')
    EL(f'v_and_b32 v{Y}, 6, v{X}')
    EL(f'v_and_b32 v{POS}, 7, v{L}')
    EL(f'v_xor_b32 v{Y}, v{Y}, v{POS}')
    EL(f'v_lshlrev_b32 v{Y}, 4, v{Y}')
    EL(f'v_mul_u32_u24 v{X}, 1152, v{X}')
    EL(f'v_add_u32 v{X}, v{X}, v{Y}')
    EL(f's_mul_i32 {sT2}, {sW}, {32*1152}')
    EL(f'v_add_u32 v{VWO}, {sT2}, v{X}')
    for p in range(1, 4): EL(f'v_add_u32 v{VWO+p}, {p*(8*1152-1024)}, v{VWO}')
    EL(f'v_lshrrev_b32 v{X}, 2, v{C_}')
    EL(f'v_lshlrev_b32 v{X}, 12, v{X}')
    EL(f'v_and_b32 v{Y}, 3, v{C_}')
    EL(f'v_lshl_add_u32 v{X}, v{Y}, 8, v{X}')
    EL(f'v_xor_b32 v{Y}, v{G_}, v{C_}')
    EL(f'v_lshl_add_u32 v{KA0}, v{Y}, 4, v{X}')
    ROWP, G1, C1 = 109, 110, 111
    EL(f'v_lshlrev_b32 v{ROWP}, 4, v{G_}')
    EL(f'v_add_u32 v{ROWP}, v{ROWP}, v{RR}')
    EL(f'v_lshlrev_b32 v{ROWP}, 8, v{ROWP}')
    EL(f'v_and_b32 v{G1}, 1, v{G_}')
    EL(f'v_lshlrev_b32 v{G1}, 3, v{G1}')
    EL(f'v_and_b32 v{C1}, 1, v{CC}')
    EL(f'v_lshlrev_b32 v{C1}, 3, v{C1}')
    EL(f'v_lshl_or_b32 v{X}, v{RR}, 1, v{G1}')
    EL(f'v_lshrrev_b32 v{Y}, 1, v{CC}')
    EL(f'v_xor_b32 v{X}, v{X}, v{Y}')
    EL(f'v_lshl_add_u32 v{X}, v{X}, 4, v{C1}')
    EL(f'v_add_u32 v{VB0}, v{ROWP}, v{X}')
    EL(f'v_and_b32 v{X}, 1, v{RR}')
    EL(f'v_lshrrev_b32 v{Y}, 1, v{RR}')
    EL(f'v_lshl_or_b32 v{X}, v{Y}, 2, v{X}')
    EL(f'v_or_b32 v{X}, v{X}, v{G1}')
    EL(f'v_xor_b32 v{X}, v{X}, v{CC}')
    EL(f'v_lshl_add_u32 v{X}, v{X}, 4, v{C1}')
    EL(f'v_add_u32 v{QC0}, v{ROWP}, v{X}')
    EL(f'v_lshrrev_b32 v{X}, 1, v{RR}')
    EL(f'v_lshlrev_b32 v{X}, 1, v{X}')
    EL(f'v_lshrrev_b32 v{Y}, 1, v{G1}')
    EL(f'v_or_b32 v{X}, v{X}, v{Y}')
    EL(f'v_lshrrev_b32 v{Y}, 1, v{CC}')
    EL(f's_lshl_b32 {sT2}, {sW}, 1')
    EL(f'v_add_u32 v{Y}, {sT2}, v{Y}')
    EL(f'v_xor_b32 v{X}, v{X}, v{Y}')
    EL(f'v_lshl_add_u32 v{X}, v{X}, 4, v{C1}')
    EL(f'v_lshlrev_b32 v{Y}, 2, v{G_}')
    EL(f'v_add_u32 v{Y}, v{Y}, v{RR}')
    EL(f'v_lshl_add_u32 v{OD0}, v{Y}, 7, v{X}')
    EL(f'v_and_b32 v{X}, 1, v{G_}')
    EL(f'v_cmp_eq_u32 {sODD}, 1, v{X}')
    XST = 3 * SLOT
    VX = 112
    if not c.xdirect:
        E(f's_mul_i32 {sT2}, {sW}, {16*1152}')
        E(f'v_mul_u32_u24 v{X}, 1152, v{C_}')
        E(f'v_lshl_add_u32 v{X}, v{G_}, 5, v{X}')
        E(f'v_add_u32 v{VX}, {sT2}, v{X}')
        E(f'v_add_u32 v{VX}, {XST}, v{VX}')
    EL(f's_lshl_b32 {sT2}, {sW}, 10')
    EL(f'v_add_u32 v{VPART}, {sT2}, v{VL16}')
    EL(f'v_mul_u32_u24 v{VOUT}, 1152, v{C_}')
    EL(f'v_lshl_add_u32 v{VOUT}, v{G_}, 3, v{VOUT}')
    EL(f's_lshl_b32 {sKV}, {sB}, 5')
    EL(f's_lshl_b32 {sT2}, {sJ}, 2')
    EL(f's_add_u32 {sKV}, {sKV}, {sT2}')
    EL(f's_lshl_b32 {sKV}, {sKV}, 17')
    EL(f's_mov_b32 {sKVN}, {sKV}')
    E(f's_lshl_b32 {sWQO}, {sJ}, 10')
    EL(f's_mul_i32 {sWOO}, {sJ}, {4*128*1152}')
    cval = struct.unpack('<I', struct.pack('<f', (128 ** -0.5) * math.log2(math.e)))[0]
    EL(f's_mov_b32 {sC}, {hex(cval)}')
    if c.pf == 4:
        EL(f's_mul_i32 {sT2}, {sB}, 86'); EL(f's_lshr_b32 {sT2}, {sT2}, 8'); EL(f's_mul_i32 {sT2}, {sT2}, 3'); EL(f's_sub_u32 {sLV}, {sB}, {sT2}')
    else:
        EL(f's_and_b32 {sLV}, {sB}, 1')
    EL(f's_lshl_b32 {sPB}, {sB}, 3')
    EL(f's_add_u32 {sPB}, {sPB}, {sJ}')
    EL(f's_mul_i32 {sPB}, {sPB}, {72*1024}')
    for i in range(4): EL(f'v_mov_b32 v{TMP+i}, 0')
    EL(f'v_mov_b32 v{TMP+4}, 0x3f803f80')
    for i in range(9): EL(f'v_mfma_f32_32x32x16_bf16 {ar(AOUT+16*i,16)}, {vr(TMP,4)}, {vr(TMP,4)}, 0')
    for i in range(4): EL(f'v_accvgpr_write_b32 a{AONE+i}, v{TMP+4}')
    EL(f'v_mov_b32 v{VVS}, v{VK}')
    EL(f'v_mov_b32 v{VCHK}, 0')
    if c.pf:
        E(f's_lshl_b32 s58, {sB}, 2'); E(f's_add_u32 s58, s58, {sW}'); E(f's_lshl_b32 s58, s58, 1')
        E(f's_cmp_ge_u32 s58, 144'); E(f's_cselect_b32 s59, 144, 0'); E(f's_sub_u32 s58, s58, s59')
        E(f's_lshl_b32 s58, s58, 15'); E(f's_add_u32 s58, s58, {sWQO}')
        E(f'v_lshrrev_b32 v{X}, 4, v{L}'); E(f'v_lshlrev_b32 v{X}, 13, v{X}'); E(f'v_and_b32 v{Y}, 15, v{L}'); E(f'v_lshl_add_u32 v113, v{Y}, 4, v{X}')
        E(f's_add_u32 m0, {sW4K}, {XBUF}')
    if c.xdirect:
        E(f's_lshl_b32 s57, {sB}, 6'); E(f's_lshl_b32 s56, {sW}, 4'); E(f's_add_u32 s57, s57, s56'); E(f's_mul_i32 s57, s57, 1152')
        E(f'v_mul_u32_u24 v{X}, 1152, v{C_}')
        E(f'v_lshl_add_u32 v{VX}, v{G_}, 5, v{X}')
    for base, nrec in ((20, 2359296), (12, 4718592), (4, 0x8000000), (8, 0x8000000), (16, 4718592), (24, 0x1400000 + 256*128), (28, 2359296), (32, 256)):
        emit = E if base in (12, 20) else EL
        emit(f's_mov_b32 s{base+2}, {hex(nrec)}')
        emit(f's_mov_b32 s{base+3}, 0x20000')
    E('s_waitcnt lgkmcnt(0)')
    if c.stamps: E('s_memrealtime s[82:83]')
    if c.stamps: EL('s_mov_b32 s26, 0x20000000')
    for i in range(4): EL(f's_mov_b32 s{88+i}, s{4+i}')
    if c.rot:
        if c.rot == 1: E(f's_add_u32 {sT2}, {sB}, {sJ}')
        elif c.rot == 2: E(f's_mov_b32 {sT2}, {sB}')
        elif c.rot == 3:
            E(f's_lshr_b32 {sT2}, {sB}, 1'); E(f's_add_u32 {sT2}, {sT2}, {sJ}')
        elif c.rot == 4:
            E(f's_mul_i32 {sT2}, {sB}, 3'); E(f's_add_u32 {sT2}, {sT2}, {sJ}')
        for i in range(8):
            E(f's_add_u32 {sT3}, {sT2}, {i}'); E(f's_and_b32 {sT3}, {sT3}, 7'); E(f's_lshl_b32 s{ROT0+i}, {sT3}, 14')
    if c.tlbwarm:
        def touch(lo, off_code, dst):
            off_code()
            E(f's_add_u32 s86, s{lo}, {sT2}')
            E(f's_addc_u32 s87, s{lo+1}, 0')
            E(f's_load_dword s{dst}, s[86:87], 0')
        touch(20, lambda: E(f's_mul_i32 {sT2}, {sB}, {64*1152}'), 64)
        touch(4, lambda: E(f's_mov_b32 {sT2}, {sKV}'), 65)
        touch(8, lambda: E(f's_mov_b32 {sT2}, {sKV}'), 66)
        for k, off in enumerate((0, 1572864, 3145728, 4718588)):
            touch(12, lambda off=off: E(f's_mov_b32 {sT2}, {off}'), 67)
        touch(16, lambda: E(f's_mov_b32 {sT2}, {sWOO}'), 68)
        touch(16, lambda: E(f's_add_u32 {sT2}, {sWOO}, {4*128*1152-4}'), 68)
        touch(24, lambda: E(f's_mov_b32 {sT2}, {sPB}'), 69)
        touch(28, lambda: E(f's_mul_i32 {sT2}, {sB}, {64*1152}'), 69)
        E('s_load_dword s70, s[32:33], 0')

    def issue_now(kind, idx, nxt):
        for f in g.dma_ops(kind, idx, nxt): f()
    def pf_pieces(srd, n, sbase_code, step):
        sbase_code()
        E(f's_add_u32 m0, {sW4K}, {XBUF}')
        for k in range(n):
            E(f'buffer_load_dwordx4 v{VL16}, {srd}, {sT2} offen {c.pfflags} lds'.replace('  ', ' '))
            if k < n - 1: E(f's_add_u32 {sT2}, {sT2}, {step}')
    if c.pf:
        for k in range(2):
            E(f'buffer_load_dwordx4 v113, {sWQ}, s58 offen {c.pfflags} lds'.replace('  ', ' '))
            if k == 0: E(f's_add_u32 s58, s58, 32768')
    if c.xdirect:
        def xl(jj):
            for hs in range(2):
                E(f'buffer_load_dwordx4 {ar(AX + 4*(2*jj+hs), 4)}, v{VX}, {sX}, s57 offen offset:{128*jj+16*hs} {c.xflags}'.rstrip())
        order = [('Q', 0), ('x', 0), ('x', 1)] + [('Q', i) for i in range(1, LA)] + [('x', j) for j in range(2, 9)]
        if c.xorder == 1: order = [('x', j) for j in range(9)] + [('Q', i) for i in range(LA)]
        if c.xorder == 2: order = [('x', j) for j in range(5)] + [('Q', 0), ('Q', 1)] + [('x', j) for j in range(5, 9)] + [('Q', i) for i in range(2, LA)]
        sim = []
        for kind, i in order:
            if kind == 'Q':
                issue_now('Q', i, False); sim += [('Q', i)] * 4
            else:
                xl(i); sim += [('x', i)] * 2
        N = 4 * (LA - 1)
        q = list(sim)
        for j in range(9):
            q = q[-N:] if len(q) > N else q
            assert ('x', j) not in q and ('Q', j) not in q, (j, q)
            q += [('n', j)] * 4
        if c.stamps: E('s_memrealtime s[84:85]')
    else:
        E(f's_lshl_b32 {sT2}, {sB}, 6'); E(f's_lshl_b32 {sT3}, {sW}, 4'); E(f's_add_u32 {sT2}, {sT2}, {sT3}'); E(f's_mul_i32 {sT2}, {sT2}, 1152')
        E(f's_mul_i32 {sT3}, {sW}, 18432'); E(f's_add_u32 {sT3}, {sT3}, {XST}')
        for k in range(18):
            if k % 4 == 0:
                E(f's_add_u32 m0, {sT3}, {k*1024}')
                if k: E(f's_add_u32 {sT2}, {sT2}, 4096')
                else: E('s_nop 0')
            off = f' offset:{(k%4)*1024}' if k % 4 else ''
            if not c.xp_nox:
                E(f'buffer_load_dwordx4 v{VL16}, {sX}, {sT2} offen{off} {c.xflags} lds'.replace('  ', ' '))
                g.vm_issue(('X', k))
        for i in range(4): issue_now('Q', i, False)
        g.vm_wait(lambda t: t[0] == 'X')
        if c.stamps: E('s_memrealtime s[84:85]')
        E('s_waitcnt lgkmcnt(0)')
        if not c.skip_compute:
            for jj in range(9):
                for hs in range(2):
                    E(f'ds_read_b128 {ar(AX + 4*(2*jj+hs), 4)}, v{VX} offset:{128*jj+16*hs}')
                    if (2 * jj + hs) % 8 == 7: E('s_waitcnt lgkmcnt(0)')
            E('s_waitcnt lgkmcnt(0)')

    if late:
        E(f's_and_b32 {sT1}, {sW}, 1'); E(f's_lshl_b32 {sT1}, {sT1}, 3')
    for t in late: E(t)
    if c.golines:
        E(f's_cmp_lg_u32 {sW}, 0')
        E('s_cbranch_scc1 L_noinit')
        E(f's_lshl_b32 {sT2}, s2, 7'); E(f's_add_u32 {sT2}, {sT2}, 0x1400000')
        E(f'v_mov_b32 v{TMP+2}, 0')
        E(f'v_lshrrev_b32 v{TMP+3}, 2, v{VL16}')
        E(f'v_cmp_gt_u32 vcc, 256, v{VL16}')
        E('s_and_saveexec_b64 s[54:55], vcc')
        E(f'buffer_store_dword v{TMP+2}, v{TMP+3}, {sWS}, {sT2} offen sc1')
        E('s_mov_b64 exec, s[54:55]')
        E('L_noinit:')
    sid = [0]
    def pool_init(pat, variants, win):
        L_ = []
        for v, xb in enumerate(variants):
            d = POOL + v
            if xb == 0: L_.append(f'v_add_u32 v{d}, {win*65536}, v{pat}' if win else f'v_mov_b32 v{d}, v{pat}')
            else: L_.append(f'v_xor_b32 v{d}, {xb}, v{POOL}')
        for t in L_: E(t)

    def mk_pre(seq, p, my, extra=None, after=None, issue=None, j=None, n_in_phase=None, issue_map=None):
        def pre():
            if c.pairbar and j is not None:
                if j % 2 == 1:
                    if after: after()
                    return
                n = 2 if j + 1 < n_in_phase else 1
                g.flush_dma()
                if issue_map is not None: iss = sum((issue_map[j + i] for i in range(n)), [])
                else: iss = [seq[p + LA + i] for i in range(n) if p + LA + i < len(seq)]
                g.slot_sync(my, seq[p + n - 1], iss, extra)
                if after: after()
                return
            g.flush_dma()
            iss = issue if issue is not None else ([seq[p + LA]] if p + LA < len(seq) else [])
            g.slot_sync(my, seq[p], iss, extra)
            if after: after()
        return pre

    def k_ops(seq, p0, issue_map=None):
        ops = []
        for j in range(8):
            ring = RING['K'][j]; win, inw = ring >> 2, (ring & 3) * SLOT
            my = sid[0]; sid[0] += 1
            for u in range(4):
                T = 4 * j + u
                for s in range(4):
                    fr = {'slot': my, 'ra': c.ra_b, 'reads': [(f'ds_read_b128 {{d}}, v{POOL+s} offset:{inw + u*1024}', 4)]}
                    if u == 0 and s == 0:
                        fr['pre'] = mk_pre(seq, p0 + j, my, j=j, n_in_phase=8, issue_map=issue_map, issue=(issue_map[j] if issue_map else None), after=(lambda win=win: pool_init(KA0, [0, 64, 128, 192], win)) if j % 4 == 0 else None)
                    D = vr(S0 + 4 * T, 4); B = vr(QN + 8 * s, 4)
                    o = {'frag': fr, 'maxr': 1, 'fill': [],
                         'mf': (lambda t, D=D, B=B, s=s: f'{MF} {D}, {vr(t,4)}, {B}, {D if s else 0}')}
                    if (s == 2 and not c.dma_early) or (c.dma_early and u == 2): o['dma'] = 1
                    if T >= 2 and s in (1, 3):
                        a = S0 + 4 * (T - 2) + (0 if s == 1 else 2)
                        o['fill'].append(f'v_max3_f32 v{VM}, v{a}, v{a+1}, v{VM}')
                    ops.append(o)
        return ops
    def q_ops(seq, p0, issue_map=None):
        ops = []
        for j in range(9):
            ring = RING['Q'][j]; win, inw = ring >> 2, (ring & 3) * SLOT
            my = sid[0]; sid[0] += 1
            for hs in range(2):
                for s in range(4):
                    for u in range(2):
                        v = 2 * s + u
                        fr = {'slot': my, 'ra': c.ra_t, 'reads': [(f'ds_read_b64_tr_b16 {{d}}, v{POOL+v} offset:{inw + (8*hs+4*t)*256}', 2) for t in range(2)]}
                        if hs == 0 and v == 0:
                            fr['pre'] = mk_pre(seq, p0 + j, my, j=j, n_in_phase=9, issue=(issue_map.get(j) if issue_map else None),
                                               after=(lambda win=win: pool_init(QC0, [0, 8, 64, 72, 128, 136, 192, 200], win)) if j in (0, 1, 5) else None)
                        D = vr(QN + 4 * v, 4); B = ar(AX + 4 * (2 * j + hs), 4)
                        first = (j == 0 and hs == 0)
                        o = {'frag': fr, 'fill': [], 'mf': (lambda t, D=D, B=B, first=first: f'{MF} {D}, {vr(t,4)}, {B}, {0 if first else D}')}
                        if (v in (1, 5) and not c.dma_early) or (c.dma_early and hs == 0 and v >= 4): o['dma'] = 1
                        ops.append(o)
        return ops
    def v_ops(seq, p0):
        ops = []
        for j in range(8):
            ring = RING['V'][j]; win, inw = ring >> 2, (ring & 3) * SLOT
            my = sid[0]; sid[0] += 1
            for hf in range(2):
                uu = 2 * j + hf
                for td in range(8):
                    fr = {'slot': my, 'ra': c.ra_t, 'reads': [(f'ds_read_b64_tr_b16 {{d}}, v{POOL+td} offset:{inw + (8*hf+4*t)*256}', 2) for t in range(2)]}
                    if hf == 0 and td == 0:
                        fr['pre'] = mk_pre(seq, p0 + j, my, j=j, n_in_phase=8, after=(lambda win=win: pool_init(VB0, [i << 5 for i in range(8)], win)) if j % 4 == 0 else None)
                    D = ar(AO + 4 * td, 4); B = vr(S0 + 8 * uu, 4)
                    o = {'frag': fr, 'fill': [], 'uu': uu, 'mf': (lambda t, D=D, B=B, uu=uu: f'{MF} {D}, {vr(t,4)}, {B}, {D if uu else 0}')}
                    if (td in (2, 5) and not c.dma_early) or (c.dma_early and hf == 0 and td >= 4): o['dma'] = 1
                    ops.append(o)
                DL = ar(AL, 4); B = vr(S0 + 8 * uu, 4)
                ops.append({'frag': None, 'usefrag': True, 'fill': [], 'uu': uu, 'maxr': 2,
                            'mf': (lambda t, B=B, uu=uu, DL=DL: f'{MF} {DL}, {ar(AONE,4)}, {B}, {DL if uu else 0}')})
        return ops
    def o_ops(seq, p0, extra0, after0):
        ops = []
        for j in range(9):
            ring = RING['O'][j]; win, inw = ring >> 2, (ring & 3) * SLOT
            my = sid[0]; sid[0] += 1
            for s in range(4):
                fr = {'slot': my, 'ra': c.ra_o, 'reads': [(f'ds_read_b64_tr_b16 {{d}}, v{VOA} offset:{inw + s*4096 + t*2048}', 2) for t in range(2)]}
                if s == 0:
                    def after(j=j, win=win):
                        if j == 0: after0()
                        if j in (0, 1, 5): E(f'v_add_u32 v{VOA}, {win*65536}, v{OD0}' if win else f'v_mov_b32 v{VOA}, v{OD0}')
                    fr['pre'] = mk_pre(seq, p0 + j, my, j=j, n_in_phase=9, extra=(extra0 if j == 0 else None), after=after)
                for qt in range(4):
                    D = ar(AOUT + 4 * (4 * j + qt), 4); B = vr(S0 + 4 * (4 * s + qt), 4)
                    o = {'frag': fr if qt == 0 else None, 'maxr': 1, 'fill': [], 'mf': (lambda t, D=D, B=B: f'{MF} {D}, {vr(t,4)}, {B}, {D}')}
                    if qt == 2: o['dma'] = 1
                    ops.append(o)
        return ops

    def exp_group(uu):
        b = S0 + 8 * uu
        L_ = [f'v_fma_f32 v{b+i}, v{b+i}, {sC}, -v{VMC}' for i in range(8)]
        L_ += [f'v_exp_f32 v{b+i}, v{b+i}' for i in range(8)]
        L_ += [f'v_cvt_pk_bf16_f32 v{b+i}, v{b+2*i}, v{b+2*i+1}' for i in range(4)]
        return L_
    def max_finish():
        L_ = []
        for T in (30, 31):
            a = S0 + 4 * T
            L_ += [f'v_max3_f32 v{VM}, v{a}, v{a+1}, v{VM}', f'v_max3_f32 v{VM}, v{a+2}, v{a+3}, v{VM}']
        L_ += [f'v_mov_b32 v{TMP}, v{VM}', f'v_permlane32_swap_b32 v{VM}, v{TMP}', f'v_max_f32 v{VM}, v{VM}, v{TMP}',
               f'v_mov_b32 v{TMP}, v{VM}', f'v_permlane16_swap_b32 v{VM}, v{TMP}', f'v_max_f32 v{VM}, v{VM}, v{TMP}',
               f'v_mul_f32 v{VMC}, {sC}, v{VM}']
        return L_
    def q_finalize():
        L_ = []
        for s in range(4):
            a = QN + 8 * s; t = TMP + 4 * (s & 1)
            L_ += [f'v_cvt_pk_bf16_f32 v{t}, v{a}, v{a+1}', f'v_cvt_pk_bf16_f32 v{t+1}, v{a+2}, v{a+3}',
                   f'v_cvt_pk_bf16_f32 v{t+2}, v{a+4}, v{a+5}', f'v_cvt_pk_bf16_f32 v{t+3}, v{a+6}, v{a+7}']
            L_ += [f'v_cndmask_b32 v{a}, v{t}, v{t+2}, {sODD}', f'v_cndmask_b32 v{a+1}, v{t+1}, v{t+3}, {sODD}',
                   f'v_cndmask_b32 v{a+2}, v{t+2}, v{t}, {sODD}', f'v_cndmask_b32 v{a+3}, v{t+3}, v{t+1}, {sODD}']
        return L_
    def distribute(ops, fillers, lo, hi):
        n = hi - lo
        for k, f in enumerate(fillers):
            ops[lo + (k * n) // len(fillers)]['fill'].append(f)

    def gate_arrive():
        E(f's_cmp_lg_u32 {sW}, 0')
        E('s_cbranch_scc1 L_ga_done')
        E(f'v_mov_b32 v{TMP+4}, 1')
        E(f'v_mov_b32 v{TMP+5}, 0')
        E(f's_lshl_b32 {sT2}, {sJ}, 5')
        E(f's_add_u32 {sT2}, {sT2}, 4')
        E(f'v_cmp_eq_u32 vcc, 0, v{VL16}')
        E('s_and_saveexec_b64 s[54:55], vcc')
        E(f'buffer_atomic_add v{TMP+4}, v{TMP+5}, {sDBG}, {sT2} offen sc1')
        E('s_mov_b64 exec, s[54:55]')
        E('L_ga_done:')
    def gate_wait():
        E(f's_cmp_lg_u32 {sW}, 0')
        E('s_cbranch_scc1 L_gw_done')
        E(f'v_lshlrev_b32 v{TMP+5}, 1, v{VL16}')
        E(f'v_add_u32 v{TMP+5}, 4, v{TMP+5}')
        E(f's_mov_b32 {sT3}, 0')
        E('L_gw_poll:')
        E(f'buffer_load_dword v{TMP+4}, v{TMP+5}, {sDBG}, 0 offen sc1')
        E('s_waitcnt vmcnt(0)')
        E(f'v_cmp_le_u32 vcc, 32, v{TMP+4}')
        E(f's_cmp_eq_u32 vcc_lo, 0xff')
        E('s_cbranch_scc1 L_gw_done')
        E(f's_sleep {c.poll_sleep}')
        E(f's_add_u32 {sT3}, {sT3}, 1')
        E(f's_cmp_lt_u32 {sT3}, 0x40000')
        E('s_cbranch_scc1 L_gw_poll')
        E('L_gw_done:')
        E('s_barrier')
        g.vm = []
    def o_finalize():
        tl = 64
        E(f'v_accvgpr_read_b32 v{tl}, a{AL}')
        E(f'v_add_u32 v{TMP}, {XBUF}, v{VPART}')
        E(f'v_rcp_f32 v{tl}, v{tl}')
        for s in range(4):
            t = 72 + 12 * s
            for i in range(8): E(f'v_accvgpr_read_b32 v{t+i}, a{AO + 8*s + i}')
            for i in range(8): E(f'v_mul_f32 v{t+i}, v{t+i}, v{tl}')
            for i in range(4): E(f'v_cvt_pk_bf16_f32 v{t+8+i}, v{t+2*i}, v{t+2*i+1}')
            E(f'ds_write_b128 v{TMP}, {vr(t+8,4)} offset:{s*4096}')
            g.lg_issue()
    def o_load_frags():
        E(f'v_add_u32 v{TMP}, {XBUF}, v{VL16}')
        for i in range(16):
            E(f'ds_read_b128 {vr(S0+4*i,4)}, v{TMP} offset:{i*1024}')
            g.o_frag_last = g.lg_issue()

    if not c.xdirect:
        E('s_barrier')
        for i in range(4, LA): issue_now('Q', i, False)
    if c.pf:
        npc = 9 if c.pf == 1 else c.pf_b
        if c.pf == 2:
            E(f's_and_b32 s58, {sB}, {c.pf_mask}')
            E(f's_cmp_eq_u32 s58, 0'); E('s_cbranch_scc1 L_nopf')
            E(f's_lshr_b32 s59, {sB}, 1')
            E(f's_lshl_b32 s59, s59, 2'); E(f's_add_u32 s59, s59, {sW}'); E(f's_mul_i32 s59, s59, {npc}')
            E(f's_add_u32 s58, s59, {npc}')
        elif c.pf == 3:
            E(f's_and_b32 s57, {sB}, 3')
            E(f's_cmp_eq_u32 s57, 0'); E('s_cbranch_scc1 L_nopf')
            E(f's_lshr_b32 s59, {sB}, 2'); E(f's_mul_i32 s59, s59, 144')
            E(f's_sub_u32 s56, s57, 1'); E(f's_mul_i32 s56, s56, s57'); E(f's_mul_i32 s56, s56, 12')
            E(f's_add_u32 s59, s59, s56')
            E(f's_mul_i32 s57, s57, 6')
            E(f's_mul_i32 s56, s57, {sW}'); E(f's_add_u32 s59, s59, s56')
            E(f's_add_u32 s58, s59, s57')
        elif c.pf == 4:
            E(f's_mul_i32 s56, {sB}, 86'); E(f's_lshr_b32 s56, s56, 8')
            E(f's_mul_i32 s57, s56, 3'); E(f's_sub_u32 s57, {sB}, s57')
            E(f's_cmp_eq_u32 s57, 0'); E('s_cbranch_scc1 L_nopf')
            E(f's_mul_i32 s59, s56, 112')
            E(f's_cmp_eq_u32 s57, 2'); E(f's_cselect_b32 s56, 36, 0'); E(f's_cselect_b32 s57, 19, 9')
            E(f's_add_u32 s59, s59, s56')
            E(f's_mul_i32 s56, s57, {sW}'); E(f's_add_u32 s59, s59, s56')
            E(f's_add_u32 s58, s59, s57')
        else:
            E(f's_mov_b32 s59, {sB}')
            E(f's_lshl_b32 s59, s59, 2'); E(f's_add_u32 s59, s59, {sW}'); E(f's_mul_i32 s59, s59, {npc}')
            E(f's_add_u32 s58, s59, {npc}')
        E(f's_add_u32 m0, {sW4K}, {XBUF}')
        E('L_pf:')
        E(f's_cmp_ge_u32 s59, 576'); E('s_cbranch_scc1 L_pfo')
        E(f's_lshl_b32 s56, s59, 13'); E(f's_lshl_b32 s57, {sJ}, 10'); E(f's_add_u32 s56, s56, s57')
        E(f'buffer_load_dwordx4 v{VL16}, {sWQ}, s56 offen {c.pfflags} lds'.replace('  ', ' '))
        E('s_branch L_pfn')
        E('L_pfo:')
        E(f's_sub_u32 s56, s59, 576'); E(f's_lshl_b32 s56, s56, 10'); E(f's_mul_i32 s57, {sJ}, {4*128*1152}'); E(f's_add_u32 s56, s56, s57')
        E(f'buffer_load_dwordx4 v{VL16}, {sWO}, s56 offen {c.pfflags} lds'.replace('  ', ' '))
        E('L_pfn:')
        if c.pf_depth: E(f's_waitcnt vmcnt({c.pf_depth})')
        E('s_add_u32 s59, s59, 1'); E('s_cmp_lt_u32 s59, s58'); E('s_cbranch_scc1 L_pf')
        if c.pf_wait: E('s_waitcnt vmcnt(0)')
        E('L_nopf:')
    E(f's_mov_b32 {sFIRST}, 1')
    if c.throttle: E(f's_mov_b32 {sTHR}, 0')
    E(f's_mov_b32 {sLOOP}, 0')
    E('s_branch L_Q')
    for _ in range(c.shift): E('s_nop 0')

    seq = [('K', i, False) for i in range(8)] + [('Q', i, False) for i in range(9)] + [('V', i, False) for i in range(8)] + \
          [('O', i, False) for i in range(9)] + [('K', i, True) for i in range(8)]
    def st(i):
        if c.istamps: return
        if c.stamps and not c.fstamps: E(f's_memtime s[{72+2*i}:{73+2*i}]')
        if c.stamps and c.fstamps: E(f's_memrealtime s[{72+2*i}:{73+2*i}]')
    def vpos(vi, uu): return next(i for i, o in enumerate(vi) if o['uu'] == uu)
    groups = [exp_group(uu) if not c.xp_noexp else exp_group(uu)[16:] for uu in range(16)]
    if c.align: E(f'.p2align {c.align}')
    E('L_K:')
    g.vm = [('K', i, False) for i in range(LA) for _ in range(4)] if 'K' not in c.skip_dma else []
    g.lg = []; g.slot_last_read = {}
    st(0)
    E(f'v_mov_b32 v{VM}, 0xff800000')
    g.stream(k_ops(seq, 0))
    g.flush_dma(); g.lg_drain()
    nq = c.q_groups
    if c.sm_in_v and not c.klast:
        E(f's_cmp_eq_u32 {sLOOP}, 3')
        E('s_cbranch_scc1 L_skipq')
    E('L_Q:')
    st(1)
    qi = q_ops(seq, 8)
    fl = max_finish()
    if not c.sm_in_v:
        for k, f in enumerate(fl): qi[3 + k]['fill'].append(f)
        distribute(qi, sum(groups[:nq], []), max(c.sm_lo, 3 + len(fl) + 1), len(qi))
    if c.xp_noq:
        for o in qi:
            o['mf'] = None
            if o.get('frag'): o['frag']['reads'] = [('s_nop 0 ; {d}', 4)]
    g.stream(qi)
    g.flush_dma(); g.lg_drain()
    E(f's_cmp_lg_u32 {sFIRST}, 0')
    E('s_cbranch_scc1 L_first_done')
    E('L_V:')
    st(2)
    vi = v_ops(seq, 17)
    if c.sm_in_v:
        vi[0]['fill'] += fl + groups[0] + groups[1]
        rest = [(None, f) for f in q_finalize()]
        allrest = [(uu, f) for uu in range(2, 16) for f in groups[uu]]
        lo, hi = 1, (c.sm_v_hi or vpos(vi, 15) - 3)
        for k, (uu, f) in enumerate(allrest):
            i = min(lo + (k * (hi - lo)) // len(allrest), vpos(vi, uu) - 2)
            vi[i]['fill'].append(f)
        distribute(vi, q_finalize(), len(vi) - 18, len(vi) - 1)
    else:
        distribute(vi, q_finalize(), 2, 18)
        allrest = [(uu, f) for uu in range(nq, 16) for f in groups[uu]]
        lo, hi = 2, max(c.sm_vhi, 4)
        for k, (uu, f) in enumerate(allrest):
            i = min(lo + (k * (hi - lo)) // len(allrest), vpos(vi, uu) - 2)
            vi[i]['fill'].append(f)
    def drop_next():
        if not c.olast:
            E(f's_cmp_eq_u32 {sLOOP}, 3')
            E('s_cselect_b32 s6, 0, s6')
        if not (c.klast and c.sm_in_v):
            E(f's_cmp_eq_u32 {sLOOP}, 2')
            E('s_cselect_b32 s14, 0, s14')
    vi[20]['fill'].append(drop_next)
    if c.dflags:
        def rdchk():
            E(f's_cmp_lg_u32 {sLOOP}, 3'); E('s_cbranch_scc1 L_nochk')
            E(f's_cmp_lg_u32 {sW}, 0'); E('s_cbranch_scc1 L_nochk')
            E(f's_lshl_b32 {sT2}, {sB}, 3'); E(f's_add_u32 {sT2}, {sT2}, 4')
            E(f'v_mov_b32 v{TMP+7}, 0')
            E(f'buffer_load_dword v{VCHK}, v{TMP+7}, {sDBG}, {sT2} offen sc1')
            E('L_nochk:')
        vi[24]['fill'].append(rdchk)
    g.stream(vi)
    g.flush_dma()
    st(3)
    if not c.skip_compute: o_finalize()
    if c.olast:
        E(f's_cmp_eq_u32 {sLOOP}, 3')
        E('s_cbranch_scc1 L_Olast')
        saved = (list(g.vm), list(g.lg), dict(g.slot_last_read), sid[0], g.tnext)
    oi = o_ops(seq, 25, (lambda: g.lg_drain()), (o_load_frags if not c.skip_compute else (lambda: None)))
    if not c.skip_compute: oi[0]['need'] = lambda: g.lg_wait(g.o_frag_last)
    def preg(j, h):
        k = 2 * j + h
        return 64 + 4 * k if k < 14 else 128 + 4 * (k - 14)
    def conv(j, h):
        t = 120
        L_ = []
        for k in range(2):
            for i in range(4): L_.append(f'v_accvgpr_read_b32 v{t + 4*k + i}, a{AOUT + 4*(4*j + 2*h + k) + i}')
        d = preg(j, h)
        for i in range(4): L_.append(f'v_cvt_pk_bf16_f32 v{d+i}, v{t+2*i}, v{t+2*i+1}')
        return L_
    def mk_store(j, h):
        def f():
            E(f's_add_u32 {sT2}, {sPB}, {(2*j+h)*4096}')
            E(f'buffer_store_dwordx4 {vr(preg(j,h),4)}, v{VPART}, {sWS}, {sT2} offen sc1')
        return f
    post = []
    if not c.skip_compute and not c.olast:
        for j in range(9):
            blk = conv(j, 0) + conv(j, 1)
            pos = 16 * (j + 1) + 4
            if pos < len(oi) and c.conv_inline:
                def cb(blk=blk, j=j):
                    E(f's_cmp_lg_u32 {sLOOP}, 3'); E(f's_cbranch_scc1 L_cv{j}')
                    for t in blk[:12]: E(t)
                    if c.inline_store: mk_store(j, 0)()
                    for t in blk[12:]: E(t)
                    if c.inline_store: mk_store(j, 1)()
                    if c.inline_b:
                        E(f's_bitcmp1_b32 {sB}, 0'); E(f's_cbranch_scc0 L_cv{j}')
                        mk_store(j, 0)(); mk_store(j, 1)()
                    E(f'L_cv{j}:')
                oi[pos]['fill'].append(cb)
            else:
                post += blk
    g.stream(oi)
    g.flush_dma(); g.lg_drain()
    st(4)
    if not c.skip_dma: assert g.vm[-4*LA:] == [('K', i, True) for i in range(LA) for _ in range(4)], g.vm
    E(f's_mov_b32 {sKV}, {sKVN}')
    E(f's_add_u32 {sKVN}, {sKVN}, 131072')
    if not c.wfixed:
        E(f's_add_u32 {sWQO}, {sWQO}, 256')
        E(f's_add_u32 {sWOO}, {sWOO}, {128*1152}')
    E(f's_add_u32 {sLOOP}, {sLOOP}, 1')
    if c.throttle:
        E(f's_and_b32 {sT2}, {sB}, 1'); E(f's_lshl_b32 {sT2}, {sT2}, 4'); E(f's_add_u32 {sT2}, {sT2}, {sLOOP}')
        E(f's_cmp_eq_u32 {sT2}, 3'); E(f's_cselect_b32 {sTHR}, 1, 0')
    if c.stamps:
        E(f's_cmp_eq_u32 {sLOOP}, 3'); E('s_cbranch_scc0 L_ns3'); E('s_memrealtime s[64:65]'); E('L_ns3:')
        if c.istamps:
            for t in range(1, 5):
                E(f's_cmp_eq_u32 {sLOOP}, {t}'); E(f's_cbranch_scc0 L_is{t}'); E(f's_memrealtime s[{72+2*t}:{73+2*t}]'); E(f'L_is{t}:')
    if c.sm_in_v and c.klast:
        E(f's_cmp_lt_u32 {sLOOP}, 3')
        E('s_cbranch_scc1 L_K')
        if c.exit_at != 2:
            E(f's_cmp_eq_u32 {sLOOP}, 3')
            E('s_cbranch_scc1 L_Klast')
    else:
        E(f's_cmp_lt_u32 {sLOOP}, {4 if c.exit_at != 2 else 3}')
        E('s_cbranch_scc1 L_K')
    if c.exit_at == 2: E('s_branch L_stamps')
    E('s_branch L_exit')
    if c.sm_in_v and c.klast:
        E('L_Klast:')
        g.vm = [('K', i, False) for i in range(LA) for _ in range(4)] if 'K' not in c.skip_dma else []
        g.lg = []; g.slot_last_read = {}; g.pending = []
        st(0)
        E(f'v_mov_b32 v{VM}, 0xff800000')
        lst = [('K', i, False) for i in range(LA, 8)] + [('V', i, False) for i in range(LA)]
        g.stream(k_ops(seq, 0, {p: [lst[p]] for p in range(8)}))
        g.flush_dma(); g.lg_drain()
        if not c.skip_dma: assert g.vm[-4*LA:] == [('V', i, False) for i in range(LA) for _ in range(4)], g.vm
        E('s_branch L_V')
    if c.sm_in_v and not c.klast:
        E('L_skipq:')
        E('s_barrier')
        for i in range(LA):
            for f in g.dma_ops('V', i, False): f()
        E('s_branch L_V')
    if c.olast:
        E('L_Olast:')
        if c.wgate == 1:
            late = 2 if c.pf == 4 else 1
            E(f's_cmp_lg_u32 {sLV}, {late}'); E('s_cbranch_scc1 L_nosig')
            E(f's_cmp_lg_u32 {sW}, 0'); E('s_cbranch_scc1 L_nosig')
            E(f's_sub_u32 {sT2}, s2, {8*late}'); E(f's_lshl_b32 {sT2}, {sT2}, 7'); E(f's_add_u32 {sT2}, {sT2}, {0x1400000 + 32}')
            E(f'v_mov_b32 v{TMP+4}, 1'); E(f'v_lshlrev_b32 v{TMP+5}, 6, v{VL16}')
            E(f'v_cmp_gt_u32 vcc, {16*late}, v{VL16}')
            E('s_and_saveexec_b64 s[54:55], vcc')
            E(f'buffer_store_dword v{TMP+4}, v{TMP+5}, {sWS}, {sT2} offen sc1')
            E('s_mov_b64 exec, s[54:55]')
            E('L_nosig:')
        g.vm, g.lg, g.slot_last_read, sid[0], g.tnext = list(saved[0]), list(saved[1]), dict(saved[2]), saved[3], saved[4]
        g.pending = []
        seq_l = seq[:34]
        ol = o_ops(seq_l, 25, (lambda: g.lg_drain()), (o_load_frags if not c.skip_compute else (lambda: None)))
        if not c.skip_compute:
            ol[0]['need'] = lambda: g.lg_wait(g.o_frag_last)
            for j in range(8):
                blk = conv(j, 0) + conv(j, 1)
                lo = 16 * (j + 1) + 2
                distribute(ol, blk, lo, lo + 13)
                def stb(j=j):
                    if c.xp_notail == 2: return
                    if c.inline_store:
                        mk_store(j, 0)(); mk_store(j, 1)()
                    elif c.inline_b:
                        E(f's_bitcmp1_b32 {sB}, 0'); E(f's_cbranch_scc0 L_sb{j}')
                        mk_store(j, 0)(); mk_store(j, 1)()
                        E(f'L_sb{j}:')
                ol[lo + 13]['fill'].append(stb)
            post = conv(8, 0) + conv(8, 1)
        g.stream(ol)
        g.flush_dma(); g.lg_drain()
        st(4)
        E('s_branch L_exit')
    E('L_first_done:')
    E('s_nop 7')
    for t in q_finalize(): E(t)
    E('s_mov_b32 s88, s8'); E('s_mov_b32 s89, s9')
    E(f'v_mov_b32 v{VVS}, v{VV}')
    E(f's_add_u32 {sWQO}, {sWQO}, 256')
    E(f's_add_u32 {sKVN}, {sKVN}, 131072')
    E(f's_mov_b32 {sFIRST}, 0')
    if c.dflags:
        E(f's_cmp_lg_u32 {sW}, 0'); E('s_cbranch_scc1 L_noid')
        E(f's_lshl_b32 {sT2}, {sB}, 3'); E(f's_add_u32 {sT2}, {sT2}, 4')
        E(f'v_mov_b32 v{TMP}, 1'); E(f'v_mov_b32 v{TMP+1}, 0')
        E(f'v_cmp_eq_u32 vcc, 0, v{VL16}')
        E('s_and_saveexec_b64 s[54:55], vcc')
        E(f'buffer_atomic_add v{TMP}, v{TMP+1}, {sDBG}, {sT2} offen sc1')
        E('s_mov_b64 exec, s[54:55]')
        E('L_noid:')
    if c.stamps: E('s_memrealtime s[62:63]')
    if c.istamps: E('s_memrealtime s[72:73]')
    if c.exit_at == 1: E('s_branch L_stamps')
    E('s_branch L_K')
    E('L_exit:')
    E('s_nop 7')
    for t in post: E(t)
    def gate_code():
        E(f's_cmp_lg_u32 {sW}, 0'); E('s_cbranch_scc1 L_gate_ok')
        E(f's_lshl_b32 {sT0}, s2, 7'); E(f's_add_u32 {sT0}, {sT0}, {0x1400000 + 32}')
        E(f'v_mov_b32 v{TMP+5}, 0'); E(f's_mov_b32 {sT1}, 0')
        E('L_gate:')
        E(f'buffer_load_dword v{TMP+4}, v{TMP+5}, {sWS}, {sT0} offen sc1')
        E('s_waitcnt vmcnt(0)')
        E(f'v_readfirstlane_b32 {sT3}, v{TMP+4}')
        E(f's_cmp_eq_u32 {sT3}, 1'); E('s_cbranch_scc1 L_gate_ok')
        E('s_sleep 2')
        E(f's_add_u32 {sT1}, {sT1}, 1'); E(f's_cmp_lt_u32 {sT1}, 48'); E('s_cbranch_scc1 L_gate')
        E('L_gate_ok:')
        E('s_barrier')
    if c.xp_notail == 2:
        pass
    elif c.store_mode == 1 and not c.skip_compute:
        if c.inline_b:
            for h in range(2): mk_store(8, h)()
            E(f's_bitcmp1_b32 {sB}, 0'); E('s_cbranch_scc1 L_stored')
            if c.wgate: gate_code()
            for j in range(8):
                for h in range(2): mk_store(j, h)()
            E('L_stored:')
        else:
            if c.wgate:
                late = 2 if c.pf == 4 else 1
                E(f's_cmp_eq_u32 {sLV}, {late}'); E('s_cbranch_scc1 L_nogate')
                if c.pf == 4:
                    E(f's_cmp_ge_u32 {sB}, 30'); E('s_cbranch_scc1 L_nogate')
                gate_code()
                E('L_nogate:')
            for j in range(9):
                if c.inline_store and c.conv_inline and j < 8: continue
                for h in range(2): mk_store(j, h)()
    return g, E

def reduce_code(E, c):
    E(f's_mul_i32 {sT0}, {sJ}, 9')
    E(f's_add_u32 {sT0}, {sT0}, {sW}')
    E(f's_lshl_b32 {sT1}, {sB}, 3')
    E(f's_mul_i32 {sT1}, {sT1}, {72*1024}')
    fl = '' if c.two_kernel else 'sc1'
    def load_piece(k):
        E(f's_add_u32 {sT2}, {sT0}, {4*k}')
        E(f's_lshl_b32 {sT2}, {sT2}, 10')
        E(f's_add_u32 {sT2}, {sT2}, {sT1}')
        for src in range(8):
            E(f'buffer_load_dwordx4 {vr(32*k + 4*src, 4)}, v{VL16}, {sWS}, {sT2} offen {fl}')
            if src < 7: E(f's_add_u32 {sT2}, {sT2}, {72*1024}')
    def sum_store(k):
        b = 32 * k
        if c.dot_reduce:
            for i in range(8): E(f'v_mov_b32 v{100+i}, 0')
            for src in range(8):
                for d in range(4):
                    E(f'v_dot2c_f32_bf16 v{100+2*d}, v{b+4*src+d}, v112')
                    E(f'v_dot2c_f32_bf16 v{101+2*d}, v{b+4*src+d}, v113')
            E('s_nop 2')
        else:
            for d in range(4):
                E(f'v_lshlrev_b32 v{100+2*d}, 16, v{b+d}')
                E(f'v_and_b32 v{101+2*d}, 0xffff0000, v{b+d}')
            for src in range(1, 8):
                for d in range(4):
                    E(f'v_lshlrev_b32 v{108+2*d}, 16, v{b+4*src+d}')
                    E(f'v_and_b32 v{109+2*d}, 0xffff0000, v{b+4*src+d}')
                for i in range(8): E(f'v_add_f32 v{100+i}, v{100+i}, v{108+i}')
        for d in range(4): E(f'v_cvt_pk_bf16_f32 v{116+4*k+d}, v{100+2*d}, v{101+2*d}')
        E(f's_add_u32 {sT2}, {sT0}, {4*k}')
        E(f's_lshr_b32 {sT3}, {sT2}, 3')
        E(f's_lshl_b32 {sT3}, {sT3}, 2')
        E(f's_and_b32 s56, {sT2}, 3')
        E(f's_add_u32 {sT3}, {sT3}, s56')
        E(f's_lshl_b32 {sT3}, {sT3}, 5')
        E(f's_lshr_b32 s56, {sT2}, 2')
        E(f's_and_b32 s56, s56, 1')
        E(f's_lshl_b32 s56, s56, 5')
        E(f's_lshl_b32 s57, {sB}, 6')
        E(f's_add_u32 s56, s56, s57')
        E(f's_mul_i32 s56, s56, 1152')
        E(f's_add_u32 s56, s56, {sT3}')
        E(f'buffer_store_dwordx2 {vr(116+4*k,2)}, v{VOUT}, {sOUT}, s56 offen {c.outflags}')
        E(f's_add_u32 s56, s56, {16*1152}')
        E(f'buffer_store_dwordx2 {vr(118+4*k,2)}, v{VOUT}, {sOUT}, s56 offen {c.outflags}')
    E('v_mov_b32 v112, 0x00003f80'); E('v_mov_b32 v113, 0x3f800000')
    load_piece(0); load_piece(1)
    E(f's_cmp_lg_u32 {sW}, 0')
    E('s_cbranch_scc1 L_two')
    load_piece(2)
    E('L_two:')
    E('s_waitcnt vmcnt(8)')
    sum_store(0)
    E('s_waitcnt vmcnt(2)')
    sum_store(1)
    E(f's_cmp_lg_u32 {sW}, 0')
    E('s_cbranch_scc1 L_red_done')
    sum_store(2)
    E('L_red_done:')

def reduce_code2(E, c):
    E(f's_lshl_b32 {sT1}, {sB}, 3')
    E(f's_mul_i32 {sT1}, {sT1}, {72*1024}')
    E('v_mov_b32 v112, 0x00003f80'); E('v_mov_b32 v113, 0x3f800000')
    E(f'v_lshrrev_b32 v114, 4, v{VL16}')
    E('v_and_b32 v115, 15, v114')
    E('v_lshrrev_b32 v116, 4, v114')
    E('v_and_b32 v117, 1, v116')
    E('v_lshl_add_u32 v115, v117, 4, v115')
    E('v_lshrrev_b32 v116, 1, v116')
    E(f's_lshl_b32 {sT2}, {sW}, 1')
    E(f'v_add_u32 v116, {sT2}, v116')
    E('v_and_b32 v117, 7, v115')
    E('v_xor_b32 v116, v116, v117')
    E('v_lshlrev_b32 v116, 4, v116')
    E('v_lshl_add_u32 v118, v115, 7, v116')
    E('v_lshrrev_b32 v115, 3, v114')
    E(f's_lshl_b32 {sT2}, {sW}, 3')
    E(f'v_add_u32 v115, {sT2}, v115')
    E('v_and_b32 v116, 7, v114')
    E('v_and_b32 v117, 7, v115')
    E('v_xor_b32 v117, v117, v116')
    E('v_lshlrev_b32 v117, 4, v117')
    E('v_lshl_add_u32 v119, v115, 7, v117')
    E('v_mul_u32_u24 v115, 1152, v115')
    E('v_lshl_add_u32 v120, v116, 4, v115')
    def grp(k):
        if k < 2: E(f's_add_u32 {sT0}, {sJ}, {8*k}')
        else: E(f's_add_u32 {sT0}, {sJ}, 16')
    def load_piece(k):
        grp(k)
        E(f's_lshl_b32 {sT2}, {sT0}, 2'); E(f's_add_u32 {sT2}, {sT2}, {sW}')
        E(f's_lshl_b32 {sT2}, {sT2}, 10')
        E(f's_add_u32 {sT2}, {sT2}, {sT1}')
        for src in range(8):
            E(f'buffer_load_dwordx4 {vr(32*k + 4*src, 4)}, v{VL16}, {sWS}, {sT2} offen sc1')
            if src < 7: E(f's_add_u32 {sT2}, {sT2}, {72*1024}')
    def sum_piece(k):
        b = 32 * k; r = 124 + 0
        for i in range(8): E(f'v_mov_b32 v{100+i}, 0')
        for src in range(8):
            for d in range(4):
                E(f'v_dot2c_f32_bf16 v{100+2*d}, v{b+4*src+d}, v112')
                E(f'v_dot2c_f32_bf16 v{101+2*d}, v{b+4*src+d}, v113')
        E('s_nop 2')
        for d in range(4): E(f'v_cvt_pk_bf16_f32 v{r+d}, v{100+2*d}, v{101+2*d}')
        E(f'v_permlane16_swap_b32 v{r}, v{r+2}')
        E(f'v_permlane16_swap_b32 v{r+1}, v{r+3}')
        E(f'ds_write_b128 v118, {vr(r,4)} offset:{k*4096}')
    def store_rows(k):
        grp(k)
        E(f's_and_b32 {sT3}, {sT0}, 1'); E(f's_lshl_b32 {sT3}, {sT3}, 5')
        E(f's_lshl_b32 s57, {sB}, 6'); E(f's_add_u32 {sT3}, {sT3}, s57'); E(f's_mul_i32 {sT3}, {sT3}, 1152')
        E(f's_lshr_b32 s56, {sT0}, 1'); E(f's_lshl_b32 s56, s56, 7'); E(f's_add_u32 {sT3}, {sT3}, s56')
        E(f'buffer_store_dwordx4 {vr(4*k,4)}, v120, {sOUT}, {sT3} offen {c.outflags}'.rstrip())
    load_piece(0); load_piece(1)
    E(f's_cmp_ge_u32 {sJ}, 2'); E('s_cbranch_scc1 L_r2a')
    load_piece(2)
    E('L_r2a:')
    E('s_waitcnt vmcnt(8)')
    sum_piece(0)
    E('s_waitcnt vmcnt(0)')
    sum_piece(1)
    E(f's_cmp_ge_u32 {sJ}, 2'); E('s_cbranch_scc1 L_r2b')
    sum_piece(2)
    E('L_r2b:')
    E('s_waitcnt lgkmcnt(0)')
    E('s_barrier')
    for k in range(3): E(f'ds_read_b128 {vr(4*k,4)}, v119 offset:{k*4096}')
    E('s_waitcnt lgkmcnt(0)')
    store_rows(0); store_rows(1)
    E(f's_cmp_ge_u32 {sJ}, 2'); E('s_cbranch_scc1 L_r2c')
    store_rows(2)
    E('L_r2c:')

def finish(g, E, c):
    E('s_waitcnt vmcnt(0)')
    if c.stamps: E('s_memrealtime s[66:67]')
    if not c.two_kernel and c.xp_notail != 2:
        E('s_barrier')
        E(f's_lshl_b32 {sT0}, {sB}, 3')
        E(f's_cmp_lg_u32 {sW}, 0')
        E('s_cbranch_scc1 L_wait_done')
        E(f'v_mov_b32 v{TMP}, 1')
        E(f'v_mov_b32 v{TMP+1}, 0')
        if c.dflags:
            E(f's_add_u32 {sT0}, {sT0}, 4')
            E(f's_mov_b32 {sT1}, 0')
            E('L_chk:')
            E(f'v_readfirstlane_b32 {sT2}, v{VCHK}')
            E(f's_cmp_ge_u32 {sT2}, 8'); E('s_cbranch_scc1 L_chk_ok')
            E(f'buffer_load_dword v{VCHK}, v{TMP+1}, {sDBG}, {sT0} offen sc1')
            E('s_waitcnt vmcnt(0)')
            E(f's_add_u32 {sT1}, {sT1}, 1'); E(f's_cmp_lt_u32 {sT1}, 0x40000'); E('s_cbranch_scc1 L_chk')
            E('L_chk_ok:')
            E(f's_lshl_b32 {sT3}, {sB}, 10'); E(f's_lshl_b32 {sT2}, {sJ}, 2'); E(f's_add_u32 {sT3}, {sT3}, {sT2}'); E(f's_add_u32 {sT3}, {sT3}, 0x1400000')
            E(f'v_lshlrev_b32 v{TMP+1}, 3, v{VL16}')
            E(f'v_cmp_gt_u32 vcc, 128, v{VL16}')
            E('s_and_saveexec_b64 s[54:55], vcc')
            E(f'buffer_store_dword v{TMP}, v{TMP+1}, {sWS}, {sT3} offen sc1')
            E('s_mov_b64 exec, s[54:55]')
            E(f's_lshl_b32 {sT0}, s2, 7'); E(f's_add_u32 {sT0}, {sT0}, 0x1400000')
            E(f'v_lshrrev_b32 v{TMP+1}, 2, v{VL16}')
            E(f'v_and_b32 v{TMP+1}, 31, v{TMP+1}')
            E(f's_mov_b32 {sT1}, 0')
            E('L_poll:')
            E(f'buffer_load_dword v{TMP+2}, v{TMP+1}, {sWS}, {sT0} offen sc1')
            E('s_waitcnt vmcnt(0)')
            E(f'v_cmp_eq_u32 vcc, 1, v{TMP+2}')
            E(f's_cmp_eq_u64 vcc, -1')
            E('s_cbranch_scc1 L_wait_done')
            E(f's_sleep 1')
            E(f's_add_u32 {sT1}, {sT1}, 1')
            E(f's_cmp_lt_u32 {sT1}, 0x40000')
            E('s_cbranch_scc1 L_poll')
        elif c.golines:
            E(f'v_cmp_eq_u32 vcc, 0, v{VL16}')
            E('s_and_saveexec_b64 s[54:55], vcc')
            E(f'buffer_atomic_add v{TMP}, v{TMP+1}, {sDBG}, {sT0} offen sc0 sc1')
            E('s_waitcnt vmcnt(0)')
            E('s_mov_b64 exec, s[54:55]')
            E(f'v_readfirstlane_b32 {sT2}, v{TMP}')
            E(f's_and_b32 {sT2}, {sT2}, 7')
            E(f's_cmp_eq_u32 {sT2}, 7')
            E('s_cbranch_scc0 L_notlast')
            E(f's_lshl_b32 {sT3}, {sB}, 10'); E(f's_add_u32 {sT3}, {sT3}, 0x1400000')
            E(f'v_lshlrev_b32 v{TMP+1}, 3, v{VL16}')
            E(f'v_mov_b32 v{TMP}, 1')
            E(f'v_cmp_gt_u32 vcc, 128, v{VL16}')
            E('s_and_saveexec_b64 s[54:55], vcc')
            E(f'buffer_store_dword v{TMP}, v{TMP+1}, {sWS}, {sT3} offen sc1')
            E('s_mov_b64 exec, s[54:55]')
            E('s_branch L_wait_done')
            E('L_notlast:')
            E(f's_lshl_b32 {sT0}, s2, 7'); E(f's_add_u32 {sT0}, {sT0}, 0x1400000')
            E(f'v_mov_b32 v{TMP+1}, 0')
            E(f's_mov_b32 {sT1}, 0')
            E('L_poll:')
            E(f'buffer_load_dword v{TMP+2}, v{TMP+1}, {sWS}, {sT0} offen sc1')
            E('s_waitcnt vmcnt(0)')
            E(f'v_readfirstlane_b32 {sT2}, v{TMP+2}')
            E(f's_cmp_eq_u32 {sT2}, 1')
            E('s_cbranch_scc1 L_wait_done')
            E(f's_sleep 2')
            E(f's_add_u32 {sT1}, {sT1}, 1')
            E(f's_cmp_lt_u32 {sT1}, 0x40000')
            E('s_cbranch_scc1 L_poll')
        else:
            E(f'v_cmp_eq_u32 vcc, 0, v{VL16}')
            E('s_and_saveexec_b64 s[54:55], vcc')
            E(f'buffer_atomic_add v{TMP}, v{TMP+1}, {sDBG}, {sT0} offen sc1')
            E('s_mov_b64 exec, s[54:55]')
            E(f's_mov_b32 {sT1}, 0')
            E('L_poll:')
            E(f'buffer_load_dword v{TMP+2}, v{TMP+1}, {sDBG}, {sT0} offen sc1')
            E('s_waitcnt vmcnt(0)')
            E(f'v_readfirstlane_b32 {sT2}, v{TMP+2}')
            E(f's_cmp_ge_u32 {sT2}, 8')
            E('s_cbranch_scc1 L_wait_done')
            E(f's_sleep {min(c.poll_sleep, 8)}')
            E(f's_add_u32 {sT1}, {sT1}, 1')
            E(f's_cmp_lt_u32 {sT1}, 0x40000')
            E('s_cbranch_scc1 L_poll')
        E('L_wait_done:')
        E('s_barrier')
        if c.stamps: E('s_memrealtime s[68:69]')
        if not c.xp_notail: (reduce_code2 if c.fullline else reduce_code)(E, c)
    if c.stamps:
        E('L_stamps:')
        E('s_waitcnt vmcnt(0)')
        E('s_memrealtime s[70:71]')
        E('s_waitcnt lgkmcnt(0)')
        for i in range(12): E(f'v_mov_b32 v{i}, s{60+i}')
        for i in range(4): E(f'v_mov_b32 v{12+i}, s{72+2*i}')
        E('v_mov_b32 v16, s80'); E('v_mov_b32 v17, s82'); E('v_mov_b32 v18, s84')
        E(f's_lshl_b32 {sT0}, s2, 2'); E(f's_add_u32 {sT0}, {sT0}, {sW}'); E(f's_lshl_b32 {sT0}, {sT0}, 7'); E(f's_add_u32 {sT0}, {sT0}, 0x10000000')
        if c.bstamps:
            E(f's_lshl_b32 {sT1}, s2, 2'); E(f's_add_u32 {sT1}, {sT1}, {sW}'); E(f's_lshl_b32 {sT1}, {sT1}, 9'); E(f's_add_u32 {sT1}, {sT1}, 0x11000000')
            E(f'v_lshrrev_b32 v21, 2, v{VL16}')
            E(f'buffer_store_dword v246, v21, {sWS}, {sT1} offen')
            E(f'buffer_store_dword v247, v21, {sWS}, {sT1} offen offset:256')
        E(f'v_cmp_eq_u32 vcc, 0, v{VL16}')
        E('s_and_saveexec_b64 s[54:55], vcc')
        E('v_mov_b32 v20, 0')
        for i in range(4): E(f'buffer_store_dwordx4 {vr(4*i,4)}, v20, {sWS}, {sT0} offen offset:{16*i}')
        E(f'buffer_store_dwordx3 v[16:18], v20, {sWS}, {sT0} offen offset:64')
    if c.dbgspan:
        E('s_waitcnt vmcnt(0)')
        E('s_memrealtime s[70:71]')
        E('s_waitcnt lgkmcnt(0)')
        E(f's_cmp_lg_u32 {sW}, 0'); E('s_cbranch_scc1 L_done')
        E('s_not_b32 s60, s60')
        E('v_mov_b32 v1, s60'); E('v_mov_b32 v2, s70'); E('v_mov_b32 v3, 0')
        E(f'v_cmp_eq_u32 vcc, 0, v{VL16}')
        E('s_and_saveexec_b64 s[54:55], vcc')
        E(f'buffer_atomic_umax v1, v3, {sDBG}, 0 offen offset:0 sc1')
        E(f'buffer_atomic_umax v2, v3, {sDBG}, 0 offen offset:8 sc1')
    E('L_done:')
    E('s_endpgm')

DESC = '''.section .rodata,"a"
.p2align 6
.amdhsa_kernel {name}
  .amdhsa_next_free_vgpr {vg}
  .amdhsa_next_free_sgpr 100
  .amdhsa_accum_offset {acc}
  .amdhsa_group_segment_fixed_size 0
  .amdhsa_kernarg_size 64
  .amdhsa_user_sgpr_count 2
  .amdhsa_user_sgpr_kernarg_segment_ptr 1
  .amdhsa_system_sgpr_workgroup_id_x 1
.end_amdhsa_kernel
'''
def gen(cfg=None):
    c = cfg or Cfg()
    g, E = build(c)
    finish(g, E, c)
    body = g.a.finalize()
    head = f'''; fused MHA block: q-projection + attention + out-projection, one workgroup per (batch, 4 heads)
; @launch grid=(256,1,1) block=(256,1,1) lds=163840
.amdgcn_target "amdgcn-amd-amdhsa--gfx950"
.text
.globl {KNAME}
.p2align 8
.type {KNAME},@function
{KNAME}:
'''
    return head + body + DESC.format(name=KNAME, vg=512, acc=256), g

if __name__ == '__main__':
    s, g = gen()
    out = sys.argv[1] if len(sys.argv) > 1 else 'standalone__mha_block_cached__near_ridge.s'
    open(out, 'w').write(s)
    print('instructions', len(g.a.ins), 'nops inserted', g.a.nnop, 'bytes', len(s))
```

```python
import sys, struct, math
sys.path.insert(0, 'work')
from asmlib import Asm

KNAME = "standalone__mha_block_cached__near_ridge_kernel"
MF = "v_mfma_f32_16x16x32_bf16"
SLOT = 16384
XBUF = 9 * SLOT

S0 = 0; QN = 128; T0 = 160; NT = 12
VK, VV = 208, 209
VWQ = 210; VWO = 214
POOL = 218
KA0, VB0, QC0, OD0 = 226, 227, 228, 229
VM, VMC = 230, 231
TMP = 232
VL16 = 240; VPART = 241; VOA = 242; VOUT = 243
AOUT = 0; AX = 144; AO = 216; AL = 248; AONE = 252
sK, sV, sWQ, sWO, sX, sWS, sOUT, sDBG = 's[4:7]', 's[8:11]', 's[12:15]', 's[16:19]', 's[20:23]', 's[24:27]', 's[28:31]', 's[32:35]'
sW, sW4K, sB, sJ = 's36', 's37', 's38', 's39'
sKV, sKVN, sWQO, sWOO, sLOOP, sC = 's40', 's41', 's42', 's43', 's44', 's45'
sODD = 's[46:47]'
sT0, sT1, sT2, sT3 = 's48', 's49', 's50', 's51'
sPB = 's52'
sVS = 's[88:91]'
sFIRST = 's53'
VVS = 244
sLV = 's86'
sTHR = 's87'
ROT0 = 92
VCHK = 245

def vr(a, n=1): return f'v{a}' if n == 1 else f'v[{a}:{a+n-1}]'
def ar(a, n=1): return f'a{a}' if n == 1 else f'a[{a}:{a+n-1}]'

class Cfg:
    LA = 5
    kflags = None; vflags = None
    kvflags = 'nt'; wflags = ''; xflags = ''; pfflags = ''
    ra_b = 5; ra_t = 4; ra_o = 2
    pairwait = True
    q_groups = 10
    stamps = False
    skip_dma = ''; skip_compute = False; wfixed = False
    pf = 2; pf_b = 18; pf_mask = 1
    store_mode = 1
    poll_sleep = 16
    exit_at = 0
    k_early = 0
    two_kernel = False
    tlbwarm = False
    conv_inline = True
    codepf = True
    strict_reads = True
    pstflags = 'sc1'; pldflags = 'sc1'
    tailpf = False
    late_setup = True
    fullline = True
    shift = 0
    align = 0
    throttle = 0
    xorder = 1
    xdirect = True
    wgate = 1
    xp_nox = False
    xp_notail = 0
    pairbar = False
    sm_v_hi = 0
    olast = True
    klast = False
    dma_early = False
    bstamps = False
    dbgspan = False
    rot = 0
    xp_noexp = False
    xp_noq = False
    xp_halfv = False
    sm_in_v = True
    inline_store = False
    inline_b = False
    dflags = True
    dot_reduce = True
    outflags = ''
    istamps = False
    pf_first = False
    pf_wait = True
    pf_depth = 0
    golines = True
    fstamps = False
    sm_lo = 48
    sm_vhi = 32

RING = {'K': list(range(8)), 'Q': [8] + list(range(8)), 'V': list(range(8)), 'O': [8] + list(range(8))}

class G:
    def __init__(self, cfg):
        self.c = cfg; self.a = Asm()
        self.vm = []; self.lg = []; self.lgid = 0; self.tnext = 0; self.uid = 0
        self.slot_last_read = {}; self.pending = []; self.bk = 0
    def E(self, t): self.a(t)
    def vm_issue(self, tag): self.vm.append(tag)
    def vm_wait(self, pred):
        idx = [i for i, t in enumerate(self.vm) if pred(t)]
        if not idx: return
        n = min(len(self.vm) - 1 - max(idx), 63)
        self.E(f's_waitcnt vmcnt({n})')
        self.vm = self.vm[len(self.vm) - n:] if n else []
    def lg_issue(self):
        self.lgid += 1; self.lg.append(self.lgid); return self.lgid
    def lg_wait(self, i):
        if i not in self.lg: return
        n = min(len(self.lg) - 1 - self.lg.index(i), 15)
        self.E(f's_waitcnt lgkmcnt({n})')
        self.lg = self.lg[len(self.lg) - n:] if n else []
    def lg_drain(self):
        if self.lg: self.E('s_waitcnt lgkmcnt(0)'); self.lg = []

    def dma_ops(self, kind, idx, nxt, ring=None):
        c = self.c
        if ring is None: ring = RING[kind][idx]
        base = ring * SLOT
        if kind in ('K', 'V'):
            srd = sK if kind == 'K' else sVS
            voff = [VK if kind == 'K' else VVS] * 4
            sb = sKVN if nxt else sKV; so = idx * SLOT; fl = c.kvflags
            if kind == 'K' and c.kflags is not None: fl = c.kflags
            if kind == 'V' and c.vflags is not None: fl = c.vflags
        elif kind == 'Q':
            srd = sWQ; voff = [VWQ + p for p in range(4)]; sb = sWQO; so = idx * 64 * 8192; fl = c.wflags
        else:
            srd = sWO; voff = [VWO + p for p in range(4)]; sb = sWOO; so = idx * 128; fl = c.wflags
        tag = (kind, idx, nxt)
        st = sT0 if (self.uid & 1) == 0 else sT1
        self.uid += 1
        if kind in ('K', 'V') and c.rot: so = f's{64 + 0 + idx}' if False else f's{ROT0 + idx}'
        def piece(p):
            def f():
                if p == 0:
                    self.E(f's_add_u32 m0, {sW4K}, {base}')
                    self.E(f's_add_u32 {st}, {sb}, {so}')
                off = f' offset:{p*1024}' if p else ''
                if kind not in c.skip_dma:
                    self.E(f'buffer_load_dwordx4 {vr(voff[p])}, {srd}, {st} offen{off} {fl} lds'.replace('  ', ' '))
                    self.vm_issue(tag)
            return f
        return [piece(p) for p in range(4)]
    def flush_dma(self, k=99):
        while self.pending and k > 0:
            self.pending.pop(0)(); k -= 1
    def slot_sync(self, sid, tag, issue, extra=None):
        lr = self.slot_last_read.get(sid - 2)
        if lr is not None: self.lg_wait(lr)
        if extra: extra()
        if self.c.bstamps:
            k = self.bk; self.bk += 1
            self.E(f's_memtime s[{92 + 2*(k&1)}:{93 + 2*(k&1)}]')
        self.vm_wait(lambda t: t == tag)
        if self.c.throttle and tag[0] in 'KV':
            self.thr = getattr(self, 'thr', 0) + 1
            self.E(f's_cmp_eq_u32 {sTHR}, 0'); self.E(f's_cbranch_scc1 L_thr{self.thr}')
            self.E(f's_waitcnt vmcnt({self.c.throttle})')
            self.E(f'L_thr{self.thr}:')
        self.E('s_barrier')
        if self.c.bstamps:
            self.E(f's_memtime s[{96 + 2*(k&1)}:{97 + 2*(k&1)}]')
            if k > 0:
                self.E(f'v_writelane_b32 v246, s{92 + 2*((k-1)&1)}, {(k-1) % 64}')
                self.E(f'v_writelane_b32 v247, s{96 + 2*((k-1)&1)}, {(k-1) % 64}')
        for it in issue: self.pending += self.dma_ops(*it)

    def stream(self, ops):
        frags = []
        for i, o in enumerate(ops):
            if o.get('frag'):
                o['fi'] = len(frags); frags.append(o['frag'])
            else:
                o['fi'] = len(frags) - 1 if o.get('mf') and o.get('usefrag', True) else None
        rq = []
        for fi, f in enumerate(frags):
            for k in range(len(f['reads'])): rq.append((fi, k))
        rp = 0
        skip = self.c.skip_compute
        def issue_read():
            nonlocal rp
            fi, k = rq[rp]; f = frags[fi]
            if k == 0:
                if f.get('pre'): f['pre']()
                f['T'] = T0 + 4 * (self.tnext % NT); self.tnext += 1
            tmpl, w = f['reads'][k]
            if not skip:
                d = f['T'] + (2 * k if w == 2 else 0)
                self.E(tmpl.format(d=vr(d, w)))
                f['last'] = self.lg_issue()
                if f.get('slot') is not None: self.slot_last_read[f['slot']] = f['last']
            rp += 1
        for i, o in enumerate(ops):
            cur = o['fi'] if o['fi'] is not None else -1
            if o.get('dma'): self.flush_dma(o['dma'])
            if cur >= 0:
                ra = frags[cur].get('ra', 6)
            else:
                ra = 0
            target = cur + ra
            base = o.get('maxr', 2)
            n = 0
            while rp < len(rq) and (rq[rp][0] <= cur or (rq[rp][0] <= target and len(self.lg) < 14 and
                                    (i == 0 or n < base or (n < base + 1 and (not self.c.strict_reads or rq[rp][0] < target - 1)) ))):
                issue_read(); n += 1
            if o.get('need'): o['need']()
            if cur >= 0 and o.get('mf') and not skip:
                f = frags[cur]
                if f['last'] in self.lg:
                    tgt = f['last']
                    if self.c.pairwait and cur + 1 < len(frags) and frags[cur + 1].get('last') in self.lg and frags[cur + 1].get('slot') is not None:
                        tgt = frags[cur + 1]['last']
                    self.lg_wait(tgt)
            for f in o.get('fill', []):
                if callable(f): f()
                elif not skip: self.E(f)
            if o.get('mf') and not skip:
                self.E(o['mf'](frags[cur]['T'] if cur >= 0 else None))
        assert rp == len(rq)

def build(cfg):
    g = G(cfg); E = g.E; c = cfg
    LA = c.LA
    if c.stamps or c.dbgspan: E('s_memrealtime s[60:61]')
    E('s_cmp_ge_u32 s2, 256')
    E('s_cbranch_scc1 L_done')
    for dst, off in ((20, 0), (12, 24), (4, 8), (8, 16), (16, 32), (28, 40), (32, 48), (24, 56)):
        E(f's_load_dwordx2 s[{dst}:{dst+1}], s[0:1], {off}')
    if c.codepf:
        E('s_getpc_b64 s[56:57]')
        E('L_pc:')
        E('v_lshlrev_b32 v113, 7, v0')
        E('v_mov_b32 v115, s57')
        E('v_add_co_u32 v114, vcc, s56, v113')
        E('v_addc_co_u32 v115, vcc, 0, v115, vcc')
        E('v_cmp_gt_u32 vcc, L_done-L_pc, v113')
        E('s_and_saveexec_b64 s[54:55], vcc')
        E('s_cbranch_execz L_cpf_skip')
        E('global_load_dword v116, v[114:115], off')
        E('L_cpf_skip:')
        E('s_mov_b64 exec, s[54:55]')
    late = []
    def EL(t):
        if c.late_setup: late.append(t)
        else: E(t)
    L, C_, G_, RR, CC, POS, X, Y = 100, 101, 102, 103, 104, 106, 107, 108
    E(f'v_and_b32 v{L}, 63, v0')
    E(f'v_lshrrev_b32 v{X}, 6, v0')
    E(f'v_readfirstlane_b32 {sW}, v{X}')
    E(f'v_and_b32 v{C_}, 15, v{L}')
    E(f'v_lshrrev_b32 v{G_}, 4, v{L}')
    EL(f'v_lshrrev_b32 v{RR}, 2, v{L}')
    EL(f'v_and_b32 v{RR}, 3, v{RR}')
    EL(f'v_and_b32 v{CC}, 3, v{L}')
    E(f's_lshl_b32 {sW4K}, {sW}, 12')
    E(f's_and_b32 {sJ}, s2, 7')
    E(f's_lshr_b32 {sB}, s2, 3')
    E(f'v_lshlrev_b32 v{VL16}, 4, v{L}')
    EL(f's_lshl_b32 {sT0}, {sW}, 2')
    EL(f'v_add_u32 v{X}, {sT0}, v{G_}')
    EL(f'v_xor_b32 v{X}, v{X}, v{C_}')
    EL(f'v_lshlrev_b32 v{X}, 4, v{X}')
    EL(f'v_lshl_add_u32 v{X}, v{G_}, 8, v{X}')
    EL(f'v_add_u32 v{VK}, {sW4K}, v{X}')
    E(f's_and_b32 {sT1}, {sW}, 1')
    E(f's_lshl_b32 {sT1}, {sT1}, 3')
    EL(f'v_lshlrev_b32 v{X}, 1, v{G_}')
    EL(f'v_or_b32 v{X}, {sT1}, v{X}')
    EL(f'v_xor_b32 v{X}, v{X}, v{C_}')
    EL(f'v_lshlrev_b32 v{X}, 4, v{X}')
    EL(f'v_lshl_add_u32 v{X}, v{G_}, 8, v{X}')
    EL(f'v_add_u32 v{VV}, {sW4K}, v{X}')
    E(f'v_and_b32 v{X}, 1, v{G_}')
    E(f'v_lshrrev_b32 v{Y}, 1, v{G_}')
    E(f'v_lshl_or_b32 v{X}, v{Y}, 2, v{X}')
    E(f'v_or_b32 v{X}, {sT1}, v{X}')
    E(f'v_xor_b32 v{X}, v{X}, v{C_}')
    E(f'v_lshlrev_b32 v{X}, 4, v{X}')
    E(f'v_lshl_add_u32 v{X}, v{G_}, 13, v{X}')
    E(f's_lshl_b32 {sT2}, {sW}, 17')
    E(f'v_add_u32 v{VWQ}, {sT2}, v{X}')
    for p in range(1, 4): E(f'v_add_u32 v{VWQ+p}, {p*(32768-1024)}, v{VWQ}')
    EL(f'v_lshrrev_b32 v{X}, 3, v{L}')
    EL(f'v_and_b32 v{Y}, 6, v{X}')
    EL(f'v_and_b32 v{POS}, 7, v{L}')
    EL(f'v_xor_b32 v{Y}, v{Y}, v{POS}')
    EL(f'v_lshlrev_b32 v{Y}, 4, v{Y}')
    EL(f'v_mul_u32_u24 v{X}, 1152, v{X}')
    EL(f'v_add_u32 v{X}, v{X}, v{Y}')
    EL(f's_mul_i32 {sT2}, {sW}, {32*1152}')
    EL(f'v_add_u32 v{VWO}, {sT2}, v{X}')
    for p in range(1, 4): EL(f'v_add_u32 v{VWO+p}, {p*(8*1152-1024)}, v{VWO}')
    EL(f'v_lshrrev_b32 v{X}, 2, v{C_}')
    EL(f'v_lshlrev_b32 v{X}, 12, v{X}')
    EL(f'v_and_b32 v{Y}, 3, v{C_}')
    EL(f'v_lshl_add_u32 v{X}, v{Y}, 8, v{X}')
    EL(f'v_xor_b32 v{Y}, v{G_}, v{C_}')
    EL(f'v_lshl_add_u32 v{KA0}, v{Y}, 4, v{X}')
    ROWP, G1, C1 = 109, 110, 111
    EL(f'v_lshlrev_b32 v{ROWP}, 4, v{G_}')
    EL(f'v_add_u32 v{ROWP}, v{ROWP}, v{RR}')
    EL(f'v_lshlrev_b32 v{ROWP}, 8, v{ROWP}')
    EL(f'v_and_b32 v{G1}, 1, v{G_}')
    EL(f'v_lshlrev_b32 v{G1}, 3, v{G1}')
    EL(f'v_and_b32 v{C1}, 1, v{CC}')
    EL(f'v_lshlrev_b32 v{C1}, 3, v{C1}')
    EL(f'v_lshl_or_b32 v{X}, v{RR}, 1, v{G1}')
    EL(f'v_lshrrev_b32 v{Y}, 1, v{CC}')
    EL(f'v_xor_b32 v{X}, v{X}, v{Y}')
    EL(f'v_lshl_add_u32 v{X}, v{X}, 4, v{C1}')
    EL(f'v_add_u32 v{VB0}, v{ROWP}, v{X}')
    EL(f'v_and_b32 v{X}, 1, v{RR}')
    EL(f'v_lshrrev_b32 v{Y}, 1, v{RR}')
    EL(f'v_lshl_or_b32 v{X}, v{Y}, 2, v{X}')
    EL(f'v_or_b32 v{X}, v{X}, v{G1}')
    EL(f'v_xor_b32 v{X}, v{X}, v{CC}')
    EL(f'v_lshl_add_u32 v{X}, v{X}, 4, v{C1}')
    EL(f'v_add_u32 v{QC0}, v{ROWP}, v{X}')
    EL(f'v_lshrrev_b32 v{X}, 1, v{RR}')
    EL(f'v_lshlrev_b32 v{X}, 1, v{X}')
    EL(f'v_lshrrev_b32 v{Y}, 1, v{G1}')
    EL(f'v_or_b32 v{X}, v{X}, v{Y}')
    EL(f'v_lshrrev_b32 v{Y}, 1, v{CC}')
    EL(f's_lshl_b32 {sT2}, {sW}, 1')
    EL(f'v_add_u32 v{Y}, {sT2}, v{Y}')
    EL(f'v_xor_b32 v{X}, v{X}, v{Y}')
    EL(f'v_lshl_add_u32 v{X}, v{X}, 4, v{C1}')
    EL(f'v_lshlrev_b32 v{Y}, 2, v{G_}')
    EL(f'v_add_u32 v{Y}, v{Y}, v{RR}')
    EL(f'v_lshl_add_u32 v{OD0}, v{Y}, 7, v{X}')
    EL(f'v_and_b32 v{X}, 1, v{G_}')
    EL(f'v_cmp_eq_u32 {sODD}, 1, v{X}')
    XST = 3 * SLOT
    VX = 112
    if not c.xdirect:
        E(f's_mul_i32 {sT2}, {sW}, {16*1152}')
        E(f'v_mul_u32_u24 v{X}, 1152, v{C_}')
        E(f'v_lshl_add_u32 v{X}, v{G_}, 5, v{X}')
        E(f'v_add_u32 v{VX}, {sT2}, v{X}')
        E(f'v_add_u32 v{VX}, {XST}, v{VX}')
    EL(f's_lshl_b32 {sT2}, {sW}, 10')
    EL(f'v_add_u32 v{VPART}, {sT2}, v{VL16}')
    EL(f'v_mul_u32_u24 v{VOUT}, 1152, v{C_}')
    EL(f'v_lshl_add_u32 v{VOUT}, v{G_}, 3, v{VOUT}')
    EL(f's_lshl_b32 {sKV}, {sB}, 5')
    EL(f's_lshl_b32 {sT2}, {sJ}, 2')
    EL(f's_add_u32 {sKV}, {sKV}, {sT2}')
    EL(f's_lshl_b32 {sKV}, {sKV}, 17')
    EL(f's_mov_b32 {sKVN}, {sKV}')
    E(f's_lshl_b32 {sWQO}, {sJ}, 10')
    EL(f's_mul_i32 {sWOO}, {sJ}, {4*128*1152}')
    cval = struct.unpack('<I', struct.pack('<f', (128 ** -0.5) * math.log2(math.e)))[0]
    EL(f's_mov_b32 {sC}, {hex(cval)}')
    if c.pf == 4:
        EL(f's_mul_i32 {sT2}, {sB}, 86'); EL(f's_lshr_b32 {sT2}, {sT2}, 8'); EL(f's_mul_i32 {sT2}, {sT2}, 3'); EL(f's_sub_u32 {sLV}, {sB}, {sT2}')
    else:
        EL(f's_and_b32 {sLV}, {sB}, 1')
    EL(f's_lshl_b32 {sPB}, {sB}, 3')
    EL(f's_add_u32 {sPB}, {sPB}, {sJ}')
    EL(f's_mul_i32 {sPB}, {sPB}, {72*1024}')
    for i in range(4): EL(f'v_mov_b32 v{TMP+i}, 0')
    EL(f'v_mov_b32 v{TMP+4}, 0x3f803f80')
    for i in range(9): EL(f'v_mfma_f32_32x32x16_bf16 {ar(AOUT+16*i,16)}, {vr(TMP,4)}, {vr(TMP,4)}, 0')
    for i in range(4): EL(f'v_accvgpr_write_b32 a{AONE+i}, v{TMP+4}')
    EL(f'v_mov_b32 v{VVS}, v{VK}')
    EL(f'v_mov_b32 v{VCHK}, 0')
    if c.pf:
        E(f's_lshl_b32 s58, {sB}, 2'); E(f's_add_u32 s58, s58, {sW}'); E(f's_lshl_b32 s58, s58, 1')
        E(f's_cmp_ge_u32 s58, 144'); E(f's_cselect_b32 s59, 144, 0'); E(f's_sub_u32 s58, s58, s59')
        E(f's_lshl_b32 s58, s58, 15'); E(f's_add_u32 s58, s58, {sWQO}')
        E(f'v_lshrrev_b32 v{X}, 4, v{L}'); E(f'v_lshlrev_b32 v{X}, 13, v{X}'); E(f'v_and_b32 v{Y}, 15, v{L}'); E(f'v_lshl_add_u32 v113, v{Y}, 4, v{X}')
        E(f's_add_u32 m0, {sW4K}, {XBUF}')
    if c.xdirect:
        E(f's_lshl_b32 s57, {sB}, 6'); E(f's_lshl_b32 s56, {sW}, 4'); E(f's_add_u32 s57, s57, s56'); E(f's_mul_i32 s57, s57, 1152')
        E(f'v_mul_u32_u24 v{X}, 1152, v{C_}')
        E(f'v_lshl_add_u32 v{VX}, v{G_}, 5, v{X}')
    for base, nrec in ((20, 2359296), (12, 4718592), (4, 0x8000000), (8, 0x8000000), (16, 4718592), (24, 0x1400000 + 256*128), (28, 2359296), (32, 256)):
        emit = E if base in (12, 20) else EL
        emit(f's_mov_b32 s{base+2}, {hex(nrec)}')
        emit(f's_mov_b32 s{base+3}, 0x20000')
    E('s_waitcnt lgkmcnt(0)')
    if c.stamps: E('s_memrealtime s[82:83]')
    if c.stamps: EL('s_mov_b32 s26, 0x20000000')
    for i in range(4): EL(f's_mov_b32 s{88+i}, s{4+i}')
    if c.rot:
        if c.rot == 1: E(f's_add_u32 {sT2}, {sB}, {sJ}')
        elif c.rot == 2: E(f's_mov_b32 {sT2}, {sB}')
        elif c.rot == 3:
            E(f's_lshr_b32 {sT2}, {sB}, 1'); E(f's_add_u32 {sT2}, {sT2}, {sJ}')
        elif c.rot == 4:
            E(f's_mul_i32 {sT2}, {sB}, 3'); E(f's_add_u32 {sT2}, {sT2}, {sJ}')
        for i in range(8):
            E(f's_add_u32 {sT3}, {sT2}, {i}'); E(f's_and_b32 {sT3}, {sT3}, 7'); E(f's_lshl_b32 s{ROT0+i}, {sT3}, 14')
    if c.tlbwarm:
        def touch(lo, off_code, dst):
            off_code()
            E(f's_add_u32 s86, s{lo}, {sT2}')
            E(f's_addc_u32 s87, s{lo+1}, 0')
            E(f's_load_dword s{dst}, s[86:87], 0')
        touch(20, lambda: E(f's_mul_i32 {sT2}, {sB}, {64*1152}'), 64)
        touch(4, lambda: E(f's_mov_b32 {sT2}, {sKV}'), 65)
        touch(8, lambda: E(f's_mov_b32 {sT2}, {sKV}'), 66)
        for k, off in enumerate((0, 1572864, 3145728, 4718588)):
            touch(12, lambda off=off: E(f's_mov_b32 {sT2}, {off}'), 67)
        touch(16, lambda: E(f's_mov_b32 {sT2}, {sWOO}'), 68)
        touch(16, lambda: E(f's_add_u32 {sT2}, {sWOO}, {4*128*1152-4}'), 68)
        touch(24, lambda: E(f's_mov_b32 {sT2}, {sPB}'), 69)
        touch(28, lambda: E(f's_mul_i32 {sT2}, {sB}, {64*1152}'), 69)
        E('s_load_dword s70, s[32:33], 0')

    def issue_now(kind, idx, nxt):
        for f in g.dma_ops(kind, idx, nxt): f()
    def pf_pieces(srd, n, sbase_code, step):
        sbase_code()
        E(f's_add_u32 m0, {sW4K}, {XBUF}')
        for k in range(n):
            E(f'buffer_load_dwordx4 v{VL16}, {srd}, {sT2} offen {c.pfflags} lds'.replace('  ', ' '))
            if k < n - 1: E(f's_add_u32 {sT2}, {sT2}, {step}')
    if c.pf:
        for k in range(2):
            E(f'buffer_load_dwordx4 v113, {sWQ}, s58 offen {c.pfflags} lds'.replace('  ', ' '))
            if k == 0: E(f's_add_u32 s58, s58, 32768')
    if c.xdirect:
        def xl(jj):
            for hs in range(2):
                E(f'buffer_load_dwordx4 {ar(AX + 4*(2*jj+hs), 4)}, v{VX}, {sX}, s57 offen offset:{128*jj+16*hs} {c.xflags}'.rstrip())
        order = [('Q', 0), ('x', 0), ('x', 1)] + [('Q', i) for i in range(1, LA)] + [('x', j) for j in range(2, 9)]
        if c.xorder == 1: order = [('x', j) for j in range(9)] + [('Q', i) for i in range(LA)]
        if c.xorder == 2: order = [('x', j) for j in range(5)] + [('Q', 0), ('Q', 1)] + [('x', j) for j in range(5, 9)] + [('Q', i) for i in range(2, LA)]
        sim = []
        for kind, i in order:
            if kind == 'Q':
                issue_now('Q', i, False); sim += [('Q', i)] * 4
            else:
                xl(i); sim += [('x', i)] * 2
        N = 4 * (LA - 1)
        q = list(sim)
        for j in range(9):
            q = q[-N:] if len(q) > N else q
            assert ('x', j) not in q and ('Q', j) not in q, (j, q)
            q += [('n', j)] * 4
        if c.stamps: E('s_memrealtime s[84:85]')
    else:
        E(f's_lshl_b32 {sT2}, {sB}, 6'); E(f's_lshl_b32 {sT3}, {sW}, 4'); E(f's_add_u32 {sT2}, {sT2}, {sT3}'); E(f's_mul_i32 {sT2}, {sT2}, 1152')
        E(f's_mul_i32 {sT3}, {sW}, 18432'); E(f's_add_u32 {sT3}, {sT3}, {XST}')
        for k in range(18):
            if k % 4 == 0:
                E(f's_add_u32 m0, {sT3}, {k*1024}')
                if k: E(f's_add_u32 {sT2}, {sT2}, 4096')
                else: E('s_nop 0')
            off = f' offset:{(k%4)*1024}' if k % 4 else ''
            if not c.xp_nox:
                E(f'buffer_load_dwordx4 v{VL16}, {sX}, {sT2} offen{off} {c.xflags} lds'.replace('  ', ' '))
                g.vm_issue(('X', k))
        for i in range(4): issue_now('Q', i, False)
        g.vm_wait(lambda t: t[0] == 'X')
        if c.stamps: E('s_memrealtime s[84:85]')
        E('s_waitcnt lgkmcnt(0)')
        if not c.skip_compute:
            for jj in range(9):
                for hs in range(2):
                    E(f'ds_read_b128 {ar(AX + 4*(2*jj+hs), 4)}, v{VX} offset:{128*jj+16*hs}')
                    if (2 * jj + hs) % 8 == 7: E('s_waitcnt lgkmcnt(0)')
            E('s_waitcnt lgkmcnt(0)')

    if late:
        E(f's_and_b32 {sT1}, {sW}, 1'); E(f's_lshl_b32 {sT1}, {sT1}, 3')
    for t in late: E(t)
    if c.golines:
        E(f's_cmp_lg_u32 {sW}, 0')
        E('s_cbranch_scc1 L_noinit')
        E(f's_lshl_b32 {sT2}, s2, 7'); E(f's_add_u32 {sT2}, {sT2}, 0x1400000')
        E(f'v_mov_b32 v{TMP+2}, 0')
        E(f'v_lshrrev_b32 v{TMP+3}, 2, v{VL16}')
        E(f'v_cmp_gt_u32 vcc, 256, v{VL16}')
        E('s_and_saveexec_b64 s[54:55], vcc')
        E(f'buffer_store_dword v{TMP+2}, v{TMP+3}, {sWS}, {sT2} offen sc1')
        E('s_mov_b64 exec, s[54:55]')
        E('L_noinit:')
    sid = [0]
    def pool_init(pat, variants, win):
        L_ = []
        for v, xb in enumerate(variants):
            d = POOL + v
            if xb == 0: L_.append(f'v_add_u32 v{d}, {win*65536}, v{pat}' if win else f'v_mov_b32 v{d}, v{pat}')
            else: L_.append(f'v_xor_b32 v{d}, {xb}, v{POOL}')
        for t in L_: E(t)

    def mk_pre(seq, p, my, extra=None, after=None, issue=None, j=None, n_in_phase=None, issue_map=None):
        def pre():
            if c.pairbar and j is not None:
                if j % 2 == 1:
                    if after: after()
                    return
                n = 2 if j + 1 < n_in_phase else 1
                g.flush_dma()
                if issue_map is not None: iss = sum((issue_map[j + i] for i in range(n)), [])
                else: iss = [seq[p + LA + i] for i in range(n) if p + LA + i < len(seq)]
                g.slot_sync(my, seq[p + n - 1], iss, extra)
                if after: after()
                return
            g.flush_dma()
            iss = issue if issue is not None else ([seq[p + LA]] if p + LA < len(seq) else [])
            g.slot_sync(my, seq[p], iss, extra)
            if after: after()
        return pre

    def k_ops(seq, p0, issue_map=None):
        ops = []
        for j in range(8):
            ring = RING['K'][j]; win, inw = ring >> 2, (ring & 3) * SLOT
            my = sid[0]; sid[0] += 1
            for u in range(4):
                T = 4 * j + u
                for s in range(4):
                    fr = {'slot': my, 'ra': c.ra_b, 'reads': [(f'ds_read_b128 {{d}}, v{POOL+s} offset:{inw + u*1024}', 4)]}
                    if u == 0 and s == 0:
                        fr['pre'] = mk_pre(seq, p0 + j, my, j=j, n_in_phase=8, issue_map=issue_map, issue=(issue_map[j] if issue_map else None), after=(lambda win=win: pool_init(KA0, [0, 64, 128, 192], win)) if j % 4 == 0 else None)
                    D = vr(S0 + 4 * T, 4); B = vr(QN + 8 * s, 4)
                    o = {'frag': fr, 'maxr': 1, 'fill': [],
                         'mf': (lambda t, D=D, B=B, s=s: f'{MF} {D}, {vr(t,4)}, {B}, {D if s else 0}')}
                    if (s == 2 and not c.dma_early) or (c.dma_early and u == 2): o['dma'] = 1
                    if T >= 2 and s in (1, 3):
                        a = S0 + 4 * (T - 2) + (0 if s == 1 else 2)
                        o['fill'].append(f'v_max3_f32 v{VM}, v{a}, v{a+1}, v{VM}')
                    ops.append(o)
        return ops
    def q_ops(seq, p0, issue_map=None):
        ops = []
        for j in range(9):
            ring = RING['Q'][j]; win, inw = ring >> 2, (ring & 3) * SLOT
            my = sid[0]; sid[0] += 1
            for hs in range(2):
                for s in range(4):
                    for u in range(2):
                        v = 2 * s + u
                        fr = {'slot': my, 'ra': c.ra_t, 'reads': [(f'ds_read_b64_tr_b16 {{d}}, v{POOL+v} offset:{inw + (8*hs+4*t)*256}', 2) for t in range(2)]}
                        if hs == 0 and v == 0:
                            fr['pre'] = mk_pre(seq, p0 + j, my, j=j, n_in_phase=9, issue=(issue_map.get(j) if issue_map else None),
                                               after=(lambda win=win: pool_init(QC0, [0, 8, 64, 72, 128, 136, 192, 200], win)) if j in (0, 1, 5) else None)
                        D = vr(QN + 4 * v, 4); B = ar(AX + 4 * (2 * j + hs), 4)
                        first = (j == 0 and hs == 0)
                        o = {'frag': fr, 'fill': [], 'mf': (lambda t, D=D, B=B, first=first: f'{MF} {D}, {vr(t,4)}, {B}, {0 if first else D}')}
                        if (v in (1, 5) and not c.dma_early) or (c.dma_early and hs == 0 and v >= 4): o['dma'] = 1
                        ops.append(o)
        return ops
    def v_ops(seq, p0):
        ops = []
        for j in range(8):
            ring = RING['V'][j]; win, inw = ring >> 2, (ring & 3) * SLOT
            my = sid[0]; sid[0] += 1
            for hf in range(2):
                uu = 2 * j + hf
                for td in range(8):
                    fr = {'slot': my, 'ra': c.ra_t, 'reads': [(f'ds_read_b64_tr_b16 {{d}}, v{POOL+td} offset:{inw + (8*hf+4*t)*256}', 2) for t in range(2)]}
                    if hf == 0 and td == 0:
                        fr['pre'] = mk_pre(seq, p0 + j, my, j=j, n_in_phase=8, after=(lambda win=win: pool_init(VB0, [i << 5 for i in range(8)], win)) if j % 4 == 0 else None)
                    D = ar(AO + 4 * td, 4); B = vr(S0 + 8 * uu, 4)
                    o = {'frag': fr, 'fill': [], 'uu': uu, 'mf': (lambda t, D=D, B=B, uu=uu: f'{MF} {D}, {vr(t,4)}, {B}, {D if uu else 0}')}
                    if (td in (2, 5) and not c.dma_early) or (c.dma_early and hf == 0 and td >= 4): o['dma'] = 1
                    ops.append(o)
                DL = ar(AL, 4); B = vr(S0 + 8 * uu, 4)
                ops.append({'frag': None, 'usefrag': True, 'fill': [], 'uu': uu, 'maxr': 2,
                            'mf': (lambda t, B=B, uu=uu, DL=DL: f'{MF} {DL}, {ar(AONE,4)}, {B}, {DL if uu else 0}')})
        return ops
    def o_ops(seq, p0, extra0, after0):
        ops = []
        for j in range(9):
            ring = RING['O'][j]; win, inw = ring >> 2, (ring & 3) * SLOT
            my = sid[0]; sid[0] += 1
            for s in range(4):
                fr = {'slot': my, 'ra': c.ra_o, 'reads': [(f'ds_read_b64_tr_b16 {{d}}, v{VOA} offset:{inw + s*4096 + t*2048}', 2) for t in range(2)]}
                if s == 0:
                    def after(j=j, win=win):
                        if j == 0: after0()
                        if j in (0, 1, 5): E(f'v_add_u32 v{VOA}, {win*65536}, v{OD0}' if win else f'v_mov_b32 v{VOA}, v{OD0}')
                    fr['pre'] = mk_pre(seq, p0 + j, my, j=j, n_in_phase=9, extra=(extra0 if j == 0 else None), after=after)
                for qt in range(4):
                    D = ar(AOUT + 4 * (4 * j + qt), 4); B = vr(S0 + 4 * (4 * s + qt), 4)
                    o = {'frag': fr if qt == 0 else None, 'maxr': 1, 'fill': [], 'mf': (lambda t, D=D, B=B: f'{MF} {D}, {vr(t,4)}, {B}, {D}')}
                    if qt == 2: o['dma'] = 1
                    ops.append(o)
        return ops

    def exp_group(uu):
        b = S0 + 8 * uu
        L_ = [f'v_fma_f32 v{b+i}, v{b+i}, {sC}, -v{VMC}' for i in range(8)]
        L_ += [f'v_exp_f32 v{b+i}, v{b+i}' for i in range(8)]
        L_ += [f'v_cvt_pk_bf16_f32 v{b+i}, v{b+2*i}, v{b+2*i+1}' for i in range(4)]
        return L_
    def max_finish():
        L_ = []
        for T in (30, 31):
            a = S0 + 4 * T
            L_ += [f'v_max3_f32 v{VM}, v{a}, v{a+1}, v{VM}', f'v_max3_f32 v{VM}, v{a+2}, v{a+3}, v{VM}']
        L_ += [f'v_mov_b32 v{TMP}, v{VM}', f'v_permlane32_swap_b32 v{VM}, v{TMP}', f'v_max_f32 v{VM}, v{VM}, v{TMP}',
               f'v_mov_b32 v{TMP}, v{VM}', f'v_permlane16_swap_b32 v{VM}, v{TMP}', f'v_max_f32 v{VM}, v{VM}, v{TMP}',
               f'v_mul_f32 v{VMC}, {sC}, v{VM}']
        return L_
    def q_finalize():
        L_ = []
        for s in range(4):
            a = QN + 8 * s; t = TMP + 4 * (s & 1)
            L_ += [f'v_cvt_pk_bf16_f32 v{t}, v{a}, v{a+1}', f'v_cvt_pk_bf16_f32 v{t+1}, v{a+2}, v{a+3}',
                   f'v_cvt_pk_bf16_f32 v{t+2}, v{a+4}, v{a+5}', f'v_cvt_pk_bf16_f32 v{t+3}, v{a+6}, v{a+7}']
            L_ += [f'v_cndmask_b32 v{a}, v{t}, v{t+2}, {sODD}', f'v_cndmask_b32 v{a+1}, v{t+1}, v{t+3}, {sODD}',
                   f'v_cndmask_b32 v{a+2}, v{t+2}, v{t}, {sODD}', f'v_cndmask_b32 v{a+3}, v{t+3}, v{t+1}, {sODD}']
        return L_
    def distribute(ops, fillers, lo, hi):
        n = hi - lo
        for k, f in enumerate(fillers):
            ops[lo + (k * n) // len(fillers)]['fill'].append(f)

    def gate_arrive():
        E(f's_cmp_lg_u32 {sW}, 0')
        E('s_cbranch_scc1 L_ga_done')
        E(f'v_mov_b32 v{TMP+4}, 1')
        E(f'v_mov_b32 v{TMP+5}, 0')
        E(f's_lshl_b32 {sT2}, {sJ}, 5')
        E(f's_add_u32 {sT2}, {sT2}, 4')
        E(f'v_cmp_eq_u32 vcc, 0, v{VL16}')
        E('s_and_saveexec_b64 s[54:55], vcc')
        E(f'buffer_atomic_add v{TMP+4}, v{TMP+5}, {sDBG}, {sT2} offen sc1')
        E('s_mov_b64 exec, s[54:55]')
        E('L_ga_done:')
    def gate_wait():
        E(f's_cmp_lg_u32 {sW}, 0')
        E('s_cbranch_scc1 L_gw_done')
        E(f'v_lshlrev_b32 v{TMP+5}, 1, v{VL16}')
        E(f'v_add_u32 v{TMP+5}, 4, v{TMP+5}')
        E(f's_mov_b32 {sT3}, 0')
        E('L_gw_poll:')
        E(f'buffer_load_dword v{TMP+4}, v{TMP+5}, {sDBG}, 0 offen sc1')
        E('s_waitcnt vmcnt(0)')
        E(f'v_cmp_le_u32 vcc, 32, v{TMP+4}')
        E(f's_cmp_eq_u32 vcc_lo, 0xff')
        E('s_cbranch_scc1 L_gw_done')
        E(f's_sleep {c.poll_sleep}')
        E(f's_add_u32 {sT3}, {sT3}, 1')
        E(f's_cmp_lt_u32 {sT3}, 0x40000')
        E('s_cbranch_scc1 L_gw_poll')
        E('L_gw_done:')
        E('s_barrier')
        g.vm = []
    def o_finalize():
        tl = 64
        E(f'v_accvgpr_read_b32 v{tl}, a{AL}')
        E(f'v_add_u32 v{TMP}, {XBUF}, v{VPART}')
        E(f'v_rcp_f32 v{tl}, v{tl}')
        for s in range(4):
            t = 72 + 12 * s
            for i in range(8): E(f'v_accvgpr_read_b32 v{t+i}, a{AO + 8*s + i}')
            for i in range(8): E(f'v_mul_f32 v{t+i}, v{t+i}, v{tl}')
            for i in range(4): E(f'v_cvt_pk_bf16_f32 v{t+8+i}, v{t+2*i}, v{t+2*i+1}')
            E(f'ds_write_b128 v{TMP}, {vr(t+8,4)} offset:{s*4096}')
            g.lg_issue()
    def o_load_frags():
        E(f'v_add_u32 v{TMP}, {XBUF}, v{VL16}')
        for i in range(16):
            E(f'ds_read_b128 {vr(S0+4*i,4)}, v{TMP} offset:{i*1024}')
            g.o_frag_last = g.lg_issue()

    if not c.xdirect:
        E('s_barrier')
        for i in range(4, LA): issue_now('Q', i, False)
    if c.pf:
        npc = 9 if c.pf == 1 else c.pf_b
        if c.pf == 2:
            E(f's_and_b32 s58, {sB}, {c.pf_mask}')
            E(f's_cmp_eq_u32 s58, 0'); E('s_cbranch_scc1 L_nopf')
            E(f's_lshr_b32 s59, {sB}, 1')
            E(f's_lshl_b32 s59, s59, 2'); E(f's_add_u32 s59, s59, {sW}'); E(f's_mul_i32 s59, s59, {npc}')
            E(f's_add_u32 s58, s59, {npc}')
        elif c.pf == 3:
            E(f's_and_b32 s57, {sB}, 3')
            E(f's_cmp_eq_u32 s57, 0'); E('s_cbranch_scc1 L_nopf')
            E(f's_lshr_b32 s59, {sB}, 2'); E(f's_mul_i32 s59, s59, 144')
            E(f's_sub_u32 s56, s57, 1'); E(f's_mul_i32 s56, s56, s57'); E(f's_mul_i32 s56, s56, 12')
            E(f's_add_u32 s59, s59, s56')
            E(f's_mul_i32 s57, s57, 6')
            E(f's_mul_i32 s56, s57, {sW}'); E(f's_add_u32 s59, s59, s56')
            E(f's_add_u32 s58, s59, s57')
        elif c.pf == 4:
            E(f's_mul_i32 s56, {sB}, 86'); E(f's_lshr_b32 s56, s56, 8')
            E(f's_mul_i32 s57, s56, 3'); E(f's_sub_u32 s57, {sB}, s57')
            E(f's_cmp_eq_u32 s57, 0'); E('s_cbranch_scc1 L_nopf')
            E(f's_mul_i32 s59, s56, 112')
            E(f's_cmp_eq_u32 s57, 2'); E(f's_cselect_b32 s56, 36, 0'); E(f's_cselect_b32 s57, 19, 9')
            E(f's_add_u32 s59, s59, s56')
            E(f's_mul_i32 s56, s57, {sW}'); E(f's_add_u32 s59, s59, s56')
            E(f's_add_u32 s58, s59, s57')
        else:
            E(f's_mov_b32 s59, {sB}')
            E(f's_lshl_b32 s59, s59, 2'); E(f's_add_u32 s59, s59, {sW}'); E(f's_mul_i32 s59, s59, {npc}')
            E(f's_add_u32 s58, s59, {npc}')
        E(f's_add_u32 m0, {sW4K}, {XBUF}')
        E('L_pf:')
        E(f's_cmp_ge_u32 s59, 576'); E('s_cbranch_scc1 L_pfo')
        E(f's_lshl_b32 s56, s59, 13'); E(f's_lshl_b32 s57, {sJ}, 10'); E(f's_add_u32 s56, s56, s57')
        E(f'buffer_load_dwordx4 v{VL16}, {sWQ}, s56 offen {c.pfflags} lds'.replace('  ', ' '))
        E('s_branch L_pfn')
        E('L_pfo:')
        E(f's_sub_u32 s56, s59, 576'); E(f's_lshl_b32 s56, s56, 10'); E(f's_mul_i32 s57, {sJ}, {4*128*1152}'); E(f's_add_u32 s56, s56, s57')
        E(f'buffer_load_dwordx4 v{VL16}, {sWO}, s56 offen {c.pfflags} lds'.replace('  ', ' '))
        E('L_pfn:')
        if c.pf_depth: E(f's_waitcnt vmcnt({c.pf_depth})')
        E('s_add_u32 s59, s59, 1'); E('s_cmp_lt_u32 s59, s58'); E('s_cbranch_scc1 L_pf')
        if c.pf_wait: E('s_waitcnt vmcnt(0)')
        E('L_nopf:')
    E(f's_mov_b32 {sFIRST}, 1')
    if c.throttle: E(f's_mov_b32 {sTHR}, 0')
    E(f's_mov_b32 {sLOOP}, 0')
    E('s_branch L_Q')
    for _ in range(c.shift): E('s_nop 0')

    seq = [('K', i, False) for i in range(8)] + [('Q', i, False) for i in range(9)] + [('V', i, False) for i in range(8)] + \
          [('O', i, False) for i in range(9)] + [('K', i, True) for i in range(8)]
    def st(i):
        if c.istamps: return
        if c.stamps and not c.fstamps: E(f's_memtime s[{72+2*i}:{73+2*i}]')
        if c.stamps and c.fstamps: E(f's_memrealtime s[{72+2*i}:{73+2*i}]')
    def vpos(vi, uu): return next(i for i, o in enumerate(vi) if o['uu'] == uu)
    groups = [exp_group(uu) if not c.xp_noexp else exp_group(uu)[16:] for uu in range(16)]
    if c.align: E(f'.p2align {c.align}')
    E('L_K:')
    g.vm = [('K', i, False) for i in range(LA) for _ in range(4)] if 'K' not in c.skip_dma else []
    g.lg = []; g.slot_last_read = {}
    st(0)
    E(f'v_mov_b32 v{VM}, 0xff800000')
    g.stream(k_ops(seq, 0))
    g.flush_dma(); g.lg_drain()
    nq = c.q_groups
    if c.sm_in_v and not c.klast:
        E(f's_cmp_eq_u32 {sLOOP}, 3')
        E('s_cbranch_scc1 L_skipq')
    E('L_Q:')
    st(1)
    qi = q_ops(seq, 8)
    fl = max_finish()
    if not c.sm_in_v:
        for k, f in enumerate(fl): qi[3 + k]['fill'].append(f)
        distribute(qi, sum(groups[:nq], []), max(c.sm_lo, 3 + len(fl) + 1), len(qi))
    if c.xp_noq:
        for o in qi:
            o['mf'] = None
            if o.get('frag'): o['frag']['reads'] = [('s_nop 0 ; {d}', 4)]
    g.stream(qi)
    g.flush_dma(); g.lg_drain()
    E(f's_cmp_lg_u32 {sFIRST}, 0')
    E('s_cbranch_scc1 L_first_done')
    E('L_V:')
    st(2)
    vi = v_ops(seq, 17)
    if c.sm_in_v:
        vi[0]['fill'] += fl + groups[0] + groups[1]
        rest = [(None, f) for f in q_finalize()]
        allrest = [(uu, f) for uu in range(2, 16) for f in groups[uu]]
        lo, hi = 1, (c.sm_v_hi or vpos(vi, 15) - 3)
        for k, (uu, f) in enumerate(allrest):
            i = min(lo + (k * (hi - lo)) // len(allrest), vpos(vi, uu) - 2)
            vi[i]['fill'].append(f)
        distribute(vi, q_finalize(), len(vi) - 18, len(vi) - 1)
    else:
        distribute(vi, q_finalize(), 2, 18)
        allrest = [(uu, f) for uu in range(nq, 16) for f in groups[uu]]
        lo, hi = 2, max(c.sm_vhi, 4)
        for k, (uu, f) in enumerate(allrest):
            i = min(lo + (k * (hi - lo)) // len(allrest), vpos(vi, uu) - 2)
            vi[i]['fill'].append(f)
    def drop_next():
        if not c.olast:
            E(f's_cmp_eq_u32 {sLOOP}, 3')
            E('s_cselect_b32 s6, 0, s6')
        if not (c.klast and c.sm_in_v):
            E(f's_cmp_eq_u32 {sLOOP}, 2')
            E('s_cselect_b32 s14, 0, s14')
    vi[20]['fill'].append(drop_next)
    if c.dflags:
        def rdchk():
            E(f's_cmp_lg_u32 {sLOOP}, 3'); E('s_cbranch_scc1 L_nochk')
            E(f's_cmp_lg_u32 {sW}, 0'); E('s_cbranch_scc1 L_nochk')
            E(f's_lshl_b32 {sT2}, {sB}, 3'); E(f's_add_u32 {sT2}, {sT2}, 4')
            E(f'v_mov_b32 v{TMP+7}, 0')
            E(f'buffer_load_dword v{VCHK}, v{TMP+7}, {sDBG}, {sT2} offen sc1')
            if c.tailpf:
                E('s_getpc_b64 s[56:57]')
                E('L_pc2:')
                E(f'v_lshlrev_b32 v248, 3, v{VL16}')
                E(f'v_add_u32 v248, L_Olast-L_pc2, v248')
                E('v_mov_b32 v250, s57')
                E('v_add_co_u32 v249, vcc, s56, v248')
                E('v_addc_co_u32 v250, vcc, 0, v250, vcc')
                E('v_cmp_gt_u32 vcc, L_done-L_pc2, v248')
                E('s_and_saveexec_b64 s[54:55], vcc')
                E('s_cbranch_execz L_tpf_skip')
                E('v_mov_b32 v248, v249'); E('v_mov_b32 v249, v250')
                E('global_load_dword v250, v[248:249], off')
                E('L_tpf_skip:')
                E('s_mov_b64 exec, s[54:55]')
            E('L_nochk:')
        vi[24]['fill'].append(rdchk)
    g.stream(vi)
    g.flush_dma()
    st(3)
    if not c.skip_compute: o_finalize()
    if c.olast:
        E(f's_cmp_eq_u32 {sLOOP}, 3')
        E('s_cbranch_scc1 L_Olast')
        saved = (list(g.vm), list(g.lg), dict(g.slot_last_read), sid[0], g.tnext)
    oi = o_ops(seq, 25, (lambda: g.lg_drain()), (o_load_frags if not c.skip_compute else (lambda: None)))
    if not c.skip_compute: oi[0]['need'] = lambda: g.lg_wait(g.o_frag_last)
    def preg(j, h):
        k = 2 * j + h
        return 64 + 4 * k if k < 14 else 128 + 4 * (k - 14)
    def conv(j, h):
        t = 120
        L_ = []
        for k in range(2):
            for i in range(4): L_.append(f'v_accvgpr_read_b32 v{t + 4*k + i}, a{AOUT + 4*(4*j + 2*h + k) + i}')
        d = preg(j, h)
        for i in range(4): L_.append(f'v_cvt_pk_bf16_f32 v{d+i}, v{t+2*i}, v{t+2*i+1}')
        return L_
    def mk_store(j, h):
        def f():
            E(f's_add_u32 {sT2}, {sPB}, {(2*j+h)*4096}')
            E(f'buffer_store_dwordx4 {vr(preg(j,h),4)}, v{VPART}, {sWS}, {sT2} offen {c.pstflags}')
        return f
    post = []
    if not c.skip_compute and not c.olast:
        for j in range(9):
            blk = conv(j, 0) + conv(j, 1)
            pos = 16 * (j + 1) + 4
            if pos < len(oi) and c.conv_inline:
                def cb(blk=blk, j=j):
                    E(f's_cmp_lg_u32 {sLOOP}, 3'); E(f's_cbranch_scc1 L_cv{j}')
                    for t in blk[:12]: E(t)
                    if c.inline_store: mk_store(j, 0)()
                    for t in blk[12:]: E(t)
                    if c.inline_store: mk_store(j, 1)()
                    if c.inline_b:
                        E(f's_bitcmp1_b32 {sB}, 0'); E(f's_cbranch_scc0 L_cv{j}')
                        mk_store(j, 0)(); mk_store(j, 1)()
                    E(f'L_cv{j}:')
                oi[pos]['fill'].append(cb)
            else:
                post += blk
    g.stream(oi)
    g.flush_dma(); g.lg_drain()
    st(4)
    if not c.skip_dma: assert g.vm[-4*LA:] == [('K', i, True) for i in range(LA) for _ in range(4)], g.vm
    E(f's_mov_b32 {sKV}, {sKVN}')
    E(f's_add_u32 {sKVN}, {sKVN}, 131072')
    if not c.wfixed:
        E(f's_add_u32 {sWQO}, {sWQO}, 256')
        E(f's_add_u32 {sWOO}, {sWOO}, {128*1152}')
    E(f's_add_u32 {sLOOP}, {sLOOP}, 1')
    if c.throttle:
        E(f's_and_b32 {sT2}, {sB}, 1'); E(f's_lshl_b32 {sT2}, {sT2}, 4'); E(f's_add_u32 {sT2}, {sT2}, {sLOOP}')
        E(f's_cmp_eq_u32 {sT2}, 3'); E(f's_cselect_b32 {sTHR}, 1, 0')
    if c.stamps:
        E(f's_cmp_eq_u32 {sLOOP}, 3'); E('s_cbranch_scc0 L_ns3'); E('s_memrealtime s[64:65]'); E('L_ns3:')
        if c.istamps:
            for t in range(1, 5):
                E(f's_cmp_eq_u32 {sLOOP}, {t}'); E(f's_cbranch_scc0 L_is{t}'); E(f's_memrealtime s[{72+2*t}:{73+2*t}]'); E(f'L_is{t}:')
    if c.sm_in_v and c.klast:
        E(f's_cmp_lt_u32 {sLOOP}, 3')
        E('s_cbranch_scc1 L_K')
        if c.exit_at != 2:
            E(f's_cmp_eq_u32 {sLOOP}, 3')
            E('s_cbranch_scc1 L_Klast')
    else:
        E(f's_cmp_lt_u32 {sLOOP}, {4 if c.exit_at != 2 else 3}')
        E('s_cbranch_scc1 L_K')
    if c.exit_at == 2: E('s_branch L_stamps')
    E('s_branch L_exit')
    if c.sm_in_v and c.klast:
        E('L_Klast:')
        g.vm = [('K', i, False) for i in range(LA) for _ in range(4)] if 'K' not in c.skip_dma else []
        g.lg = []; g.slot_last_read = {}; g.pending = []
        st(0)
        E(f'v_mov_b32 v{VM}, 0xff800000')
        lst = [('K', i, False) for i in range(LA, 8)] + [('V', i, False) for i in range(LA)]
        g.stream(k_ops(seq, 0, {p: [lst[p]] for p in range(8)}))
        g.flush_dma(); g.lg_drain()
        if not c.skip_dma: assert g.vm[-4*LA:] == [('V', i, False) for i in range(LA) for _ in range(4)], g.vm
        E('s_branch L_V')
    if c.sm_in_v and not c.klast:
        E('L_skipq:')
        E('s_barrier')
        for i in range(LA):
            for f in g.dma_ops('V', i, False): f()
        E('s_branch L_V')
    if c.olast:
        E('L_Olast:')
        if c.wgate == 1:
            late = 2 if c.pf == 4 else 1
            E(f's_cmp_lg_u32 {sLV}, {late}'); E('s_cbranch_scc1 L_nosig')
            E(f's_cmp_lg_u32 {sW}, 0'); E('s_cbranch_scc1 L_nosig')
            E(f's_sub_u32 {sT2}, s2, {8*late}'); E(f's_lshl_b32 {sT2}, {sT2}, 7'); E(f's_add_u32 {sT2}, {sT2}, {0x1400000 + 32}')
            E(f'v_mov_b32 v{TMP+4}, 1'); E(f'v_lshlrev_b32 v{TMP+5}, 6, v{VL16}')
            E(f'v_cmp_gt_u32 vcc, {16*late}, v{VL16}')
            E('s_and_saveexec_b64 s[54:55], vcc')
            E(f'buffer_store_dword v{TMP+4}, v{TMP+5}, {sWS}, {sT2} offen sc1')
            E('s_mov_b64 exec, s[54:55]')
            E('L_nosig:')
        g.vm, g.lg, g.slot_last_read, sid[0], g.tnext = list(saved[0]), list(saved[1]), dict(saved[2]), saved[3], saved[4]
        g.pending = []
        seq_l = seq[:34]
        ol = o_ops(seq_l, 25, (lambda: g.lg_drain()), (o_load_frags if not c.skip_compute else (lambda: None)))
        if not c.skip_compute:
            ol[0]['need'] = lambda: g.lg_wait(g.o_frag_last)
            for j in range(8):
                blk = conv(j, 0) + conv(j, 1)
                lo = 16 * (j + 1) + 2
                distribute(ol, blk, lo, lo + 13)
                def stb(j=j):
                    if c.xp_notail == 2: return
                    if c.inline_store:
                        mk_store(j, 0)(); mk_store(j, 1)()
                    elif c.inline_b:
                        E(f's_bitcmp1_b32 {sB}, 0'); E(f's_cbranch_scc0 L_sb{j}')
                        mk_store(j, 0)(); mk_store(j, 1)()
                        E(f'L_sb{j}:')
                ol[lo + 13]['fill'].append(stb)
            post = conv(8, 0) + conv(8, 1)
        g.stream(ol)
        g.flush_dma(); g.lg_drain()
        st(4)
        E('s_branch L_exit')
    E('L_first_done:')
    E('s_nop 7')
    for t in q_finalize(): E(t)
    E('s_mov_b32 s88, s8'); E('s_mov_b32 s89, s9')
    E(f'v_mov_b32 v{VVS}, v{VV}')
    E(f's_add_u32 {sWQO}, {sWQO}, 256')
    E(f's_add_u32 {sKVN}, {sKVN}, 131072')
    E(f's_mov_b32 {sFIRST}, 0')
    if c.dflags:
        E(f's_cmp_lg_u32 {sW}, 0'); E('s_cbranch_scc1 L_noid')
        E(f's_lshl_b32 {sT2}, {sB}, 3'); E(f's_add_u32 {sT2}, {sT2}, 4')
        E(f'v_mov_b32 v{TMP}, 1'); E(f'v_mov_b32 v{TMP+1}, 0')
        E(f'v_cmp_eq_u32 vcc, 0, v{VL16}')
        E('s_and_saveexec_b64 s[54:55], vcc')
        E(f'buffer_atomic_add v{TMP}, v{TMP+1}, {sDBG}, {sT2} offen sc1')
        E('s_mov_b64 exec, s[54:55]')
        E('L_noid:')
    if c.stamps: E('s_memrealtime s[62:63]')
    if c.istamps: E('s_memrealtime s[72:73]')
    if c.exit_at == 1: E('s_branch L_stamps')
    E('s_branch L_K')
    E('L_exit:')
    E('s_nop 7')
    for t in post: E(t)
    def gate_code():
        E(f's_cmp_lg_u32 {sW}, 0'); E('s_cbranch_scc1 L_gate_ok')
        E(f's_lshl_b32 {sT0}, s2, 7'); E(f's_add_u32 {sT0}, {sT0}, {0x1400000 + 32}')
        E(f'v_mov_b32 v{TMP+5}, 0'); E(f's_mov_b32 {sT1}, 0')
        E('L_gate:')
        E(f'buffer_load_dword v{TMP+4}, v{TMP+5}, {sWS}, {sT0} offen sc1')
        E('s_waitcnt vmcnt(0)')
        E(f'v_readfirstlane_b32 {sT3}, v{TMP+4}')
        E(f's_cmp_eq_u32 {sT3}, 1'); E('s_cbranch_scc1 L_gate_ok')
        E('s_sleep 2')
        E(f's_add_u32 {sT1}, {sT1}, 1'); E(f's_cmp_lt_u32 {sT1}, 48'); E('s_cbranch_scc1 L_gate')
        E('L_gate_ok:')
        E('s_barrier')
    if c.xp_notail == 2:
        pass
    elif c.store_mode == 1 and not c.skip_compute:
        if c.inline_b:
            for h in range(2): mk_store(8, h)()
            E(f's_bitcmp1_b32 {sB}, 0'); E('s_cbranch_scc1 L_stored')
            if c.wgate: gate_code()
            for j in range(8):
                for h in range(2): mk_store(j, h)()
            E('L_stored:')
        else:
            if c.wgate:
                late = 2 if c.pf == 4 else 1
                E(f's_cmp_eq_u32 {sLV}, {late}'); E('s_cbranch_scc1 L_nogate')
                if c.pf == 4:
                    E(f's_cmp_ge_u32 {sB}, 30'); E('s_cbranch_scc1 L_nogate')
                gate_code()
                E('L_nogate:')
            for j in range(9):
                if c.inline_store and c.conv_inline and j < 8: continue
                for h in range(2): mk_store(j, h)()
    return g, E

def reduce_code(E, c):
    E(f's_mul_i32 {sT0}, {sJ}, 9')
    E(f's_add_u32 {sT0}, {sT0}, {sW}')
    E(f's_lshl_b32 {sT1}, {sB}, 3')
    E(f's_mul_i32 {sT1}, {sT1}, {72*1024}')
    fl = '' if c.two_kernel else 'sc1'
    def load_piece(k):
        E(f's_add_u32 {sT2}, {sT0}, {4*k}')
        E(f's_lshl_b32 {sT2}, {sT2}, 10')
        E(f's_add_u32 {sT2}, {sT2}, {sT1}')
        for src in range(8):
            E(f'buffer_load_dwordx4 {vr(32*k + 4*src, 4)}, v{VL16}, {sWS}, {sT2} offen {fl}')
            if src < 7: E(f's_add_u32 {sT2}, {sT2}, {72*1024}')
    def sum_store(k):
        b = 32 * k
        if c.dot_reduce:
            for i in range(8): E(f'v_mov_b32 v{100+i}, 0')
            for src in range(8):
                for d in range(4):
                    E(f'v_dot2c_f32_bf16 v{100+2*d}, v{b+4*src+d}, v112')
                    E(f'v_dot2c_f32_bf16 v{101+2*d}, v{b+4*src+d}, v113')
            E('s_nop 2')
        else:
            for d in range(4):
                E(f'v_lshlrev_b32 v{100+2*d}, 16, v{b+d}')
                E(f'v_and_b32 v{101+2*d}, 0xffff0000, v{b+d}')
            for src in range(1, 8):
                for d in range(4):
                    E(f'v_lshlrev_b32 v{108+2*d}, 16, v{b+4*src+d}')
                    E(f'v_and_b32 v{109+2*d}, 0xffff0000, v{b+4*src+d}')
                for i in range(8): E(f'v_add_f32 v{100+i}, v{100+i}, v{108+i}')
        for d in range(4): E(f'v_cvt_pk_bf16_f32 v{116+4*k+d}, v{100+2*d}, v{101+2*d}')
        E(f's_add_u32 {sT2}, {sT0}, {4*k}')
        E(f's_lshr_b32 {sT3}, {sT2}, 3')
        E(f's_lshl_b32 {sT3}, {sT3}, 2')
        E(f's_and_b32 s56, {sT2}, 3')
        E(f's_add_u32 {sT3}, {sT3}, s56')
        E(f's_lshl_b32 {sT3}, {sT3}, 5')
        E(f's_lshr_b32 s56, {sT2}, 2')
        E(f's_and_b32 s56, s56, 1')
        E(f's_lshl_b32 s56, s56, 5')
        E(f's_lshl_b32 s57, {sB}, 6')
        E(f's_add_u32 s56, s56, s57')
        E(f's_mul_i32 s56, s56, 1152')
        E(f's_add_u32 s56, s56, {sT3}')
        E(f'buffer_store_dwordx2 {vr(116+4*k,2)}, v{VOUT}, {sOUT}, s56 offen {c.outflags}')
        E(f's_add_u32 s56, s56, {16*1152}')
        E(f'buffer_store_dwordx2 {vr(118+4*k,2)}, v{VOUT}, {sOUT}, s56 offen {c.outflags}')
    E('v_mov_b32 v112, 0x00003f80'); E('v_mov_b32 v113, 0x3f800000')
    load_piece(0); load_piece(1)
    E(f's_cmp_lg_u32 {sW}, 0')
    E('s_cbranch_scc1 L_two')
    load_piece(2)
    E('L_two:')
    E('s_waitcnt vmcnt(8)')
    sum_store(0)
    E('s_waitcnt vmcnt(2)')
    sum_store(1)
    E(f's_cmp_lg_u32 {sW}, 0')
    E('s_cbranch_scc1 L_red_done')
    sum_store(2)
    E('L_red_done:')

def reduce_code2(E, c):
    E(f's_lshl_b32 {sT1}, {sB}, 3')
    E(f's_mul_i32 {sT1}, {sT1}, {72*1024}')
    E('v_mov_b32 v112, 0x00003f80'); E('v_mov_b32 v113, 0x3f800000')
    E(f'v_lshrrev_b32 v114, 4, v{VL16}')
    E('v_and_b32 v115, 15, v114')
    E('v_lshrrev_b32 v116, 4, v114')
    E('v_and_b32 v117, 1, v116')
    E('v_lshl_add_u32 v115, v117, 4, v115')
    E('v_lshrrev_b32 v116, 1, v116')
    E(f's_lshl_b32 {sT2}, {sW}, 1')
    E(f'v_add_u32 v116, {sT2}, v116')
    E('v_and_b32 v117, 7, v115')
    E('v_xor_b32 v116, v116, v117')
    E('v_lshlrev_b32 v116, 4, v116')
    E('v_lshl_add_u32 v118, v115, 7, v116')
    E('v_lshrrev_b32 v115, 3, v114')
    E(f's_lshl_b32 {sT2}, {sW}, 3')
    E(f'v_add_u32 v115, {sT2}, v115')
    E('v_and_b32 v116, 7, v114')
    E('v_and_b32 v117, 7, v115')
    E('v_xor_b32 v117, v117, v116')
    E('v_lshlrev_b32 v117, 4, v117')
    E('v_lshl_add_u32 v119, v115, 7, v117')
    E('v_mul_u32_u24 v115, 1152, v115')
    E('v_lshl_add_u32 v120, v116, 4, v115')
    def grp(k):
        if k < 2: E(f's_add_u32 {sT0}, {sJ}, {8*k}')
        else: E(f's_add_u32 {sT0}, {sJ}, 16')
    def load_piece(k):
        grp(k)
        E(f's_lshl_b32 {sT2}, {sT0}, 2'); E(f's_add_u32 {sT2}, {sT2}, {sW}')
        E(f's_lshl_b32 {sT2}, {sT2}, 10')
        E(f's_add_u32 {sT2}, {sT2}, {sT1}')
        for src in range(8):
            E(f'buffer_load_dwordx4 {vr(32*k + 4*src, 4)}, v{VL16}, {sWS}, {sT2} offen {c.pldflags}')
            if src < 7: E(f's_add_u32 {sT2}, {sT2}, {72*1024}')
    def sum_piece(k):
        b = 32 * k; r = 124 + 0
        for i in range(8): E(f'v_mov_b32 v{100+i}, 0')
        for src in range(8):
            for d in range(4):
                E(f'v_dot2c_f32_bf16 v{100+2*d}, v{b+4*src+d}, v112')
                E(f'v_dot2c_f32_bf16 v{101+2*d}, v{b+4*src+d}, v113')
        E('s_nop 2')
        for d in range(4): E(f'v_cvt_pk_bf16_f32 v{r+d}, v{100+2*d}, v{101+2*d}')
        E(f'v_permlane16_swap_b32 v{r}, v{r+2}')
        E(f'v_permlane16_swap_b32 v{r+1}, v{r+3}')
        E(f'ds_write_b128 v118, {vr(r,4)} offset:{k*4096}')
    def store_rows(k):
        grp(k)
        E(f's_and_b32 {sT3}, {sT0}, 1'); E(f's_lshl_b32 {sT3}, {sT3}, 5')
        E(f's_lshl_b32 s57, {sB}, 6'); E(f's_add_u32 {sT3}, {sT3}, s57'); E(f's_mul_i32 {sT3}, {sT3}, 1152')
        E(f's_lshr_b32 s56, {sT0}, 1'); E(f's_lshl_b32 s56, s56, 7'); E(f's_add_u32 {sT3}, {sT3}, s56')
        E(f'buffer_store_dwordx4 {vr(4*k,4)}, v120, {sOUT}, {sT3} offen {c.outflags}'.rstrip())
    load_piece(0); load_piece(1)
    E(f's_cmp_ge_u32 {sJ}, 2'); E('s_cbranch_scc1 L_r2a')
    load_piece(2)
    E('L_r2a:')
    E('s_waitcnt vmcnt(8)')
    sum_piece(0)
    E('s_waitcnt vmcnt(0)')
    sum_piece(1)
    E(f's_cmp_ge_u32 {sJ}, 2'); E('s_cbranch_scc1 L_r2b')
    sum_piece(2)
    E('L_r2b:')
    E('s_waitcnt lgkmcnt(0)')
    E('s_barrier')
    for k in range(3): E(f'ds_read_b128 {vr(4*k,4)}, v119 offset:{k*4096}')
    E('s_waitcnt lgkmcnt(0)')
    store_rows(0); store_rows(1)
    E(f's_cmp_ge_u32 {sJ}, 2'); E('s_cbranch_scc1 L_r2c')
    store_rows(2)
    E('L_r2c:')

def finish(g, E, c):
    E('s_waitcnt vmcnt(0)')
    if c.stamps: E('s_memrealtime s[66:67]')
    if not c.two_kernel and c.xp_notail != 2:
        E('s_barrier')
        E(f's_lshl_b32 {sT0}, {sB}, 3')
        E(f's_cmp_lg_u32 {sW}, 0')
        E('s_cbranch_scc1 L_wait_done')
        E(f'v_mov_b32 v{TMP}, 1')
        E(f'v_mov_b32 v{TMP+1}, 0')
        if c.dflags:
            E(f's_add_u32 {sT0}, {sT0}, 4')
            E(f's_mov_b32 {sT1}, 0')
            E('L_chk:')
            E(f'v_readfirstlane_b32 {sT2}, v{VCHK}')
            E(f's_cmp_ge_u32 {sT2}, 8'); E('s_cbranch_scc1 L_chk_ok')
            E(f'buffer_load_dword v{VCHK}, v{TMP+1}, {sDBG}, {sT0} offen sc1')
            E('s_waitcnt vmcnt(0)')
            E(f's_add_u32 {sT1}, {sT1}, 1'); E(f's_cmp_lt_u32 {sT1}, 0x40000'); E('s_cbranch_scc1 L_chk')
            E('L_chk_ok:')
            E(f's_lshl_b32 {sT3}, {sB}, 10'); E(f's_lshl_b32 {sT2}, {sJ}, 2'); E(f's_add_u32 {sT3}, {sT3}, {sT2}'); E(f's_add_u32 {sT3}, {sT3}, 0x1400000')
            E(f'v_lshlrev_b32 v{TMP+1}, 3, v{VL16}')
            E(f'v_cmp_gt_u32 vcc, 128, v{VL16}')
            E('s_and_saveexec_b64 s[54:55], vcc')
            E(f'buffer_store_dword v{TMP}, v{TMP+1}, {sWS}, {sT3} offen sc1')
            E('s_mov_b64 exec, s[54:55]')
            E(f's_lshl_b32 {sT0}, s2, 7'); E(f's_add_u32 {sT0}, {sT0}, 0x1400000')
            E(f'v_lshrrev_b32 v{TMP+1}, 2, v{VL16}')
            E(f'v_and_b32 v{TMP+1}, 31, v{TMP+1}')
            E(f's_mov_b32 {sT1}, 0')
            E('L_poll:')
            E(f'buffer_load_dword v{TMP+2}, v{TMP+1}, {sWS}, {sT0} offen sc1')
            E('s_waitcnt vmcnt(0)')
            E(f'v_cmp_eq_u32 vcc, 1, v{TMP+2}')
            E(f's_cmp_eq_u64 vcc, -1')
            E('s_cbranch_scc1 L_wait_done')
            E(f's_sleep 1')
            E(f's_add_u32 {sT1}, {sT1}, 1')
            E(f's_cmp_lt_u32 {sT1}, 0x40000')
            E('s_cbranch_scc1 L_poll')
        elif c.golines:
            E(f'v_cmp_eq_u32 vcc, 0, v{VL16}')
            E('s_and_saveexec_b64 s[54:55], vcc')
            E(f'buffer_atomic_add v{TMP}, v{TMP+1}, {sDBG}, {sT0} offen sc0 sc1')
            E('s_waitcnt vmcnt(0)')
            E('s_mov_b64 exec, s[54:55]')
            E(f'v_readfirstlane_b32 {sT2}, v{TMP}')
            E(f's_and_b32 {sT2}, {sT2}, 7')
            E(f's_cmp_eq_u32 {sT2}, 7')
            E('s_cbranch_scc0 L_notlast')
            E(f's_lshl_b32 {sT3}, {sB}, 10'); E(f's_add_u32 {sT3}, {sT3}, 0x1400000')
            E(f'v_lshlrev_b32 v{TMP+1}, 3, v{VL16}')
            E(f'v_mov_b32 v{TMP}, 1')
            E(f'v_cmp_gt_u32 vcc, 128, v{VL16}')
            E('s_and_saveexec_b64 s[54:55], vcc')
            E(f'buffer_store_dword v{TMP}, v{TMP+1}, {sWS}, {sT3} offen sc1')
            E('s_mov_b64 exec, s[54:55]')
            E('s_branch L_wait_done')
            E('L_notlast:')
            E(f's_lshl_b32 {sT0}, s2, 7'); E(f's_add_u32 {sT0}, {sT0}, 0x1400000')
            E(f'v_mov_b32 v{TMP+1}, 0')
            E(f's_mov_b32 {sT1}, 0')
            E('L_poll:')
            E(f'buffer_load_dword v{TMP+2}, v{TMP+1}, {sWS}, {sT0} offen sc1')
            E('s_waitcnt vmcnt(0)')
            E(f'v_readfirstlane_b32 {sT2}, v{TMP+2}')
            E(f's_cmp_eq_u32 {sT2}, 1')
            E('s_cbranch_scc1 L_wait_done')
            E(f's_sleep 2')
            E(f's_add_u32 {sT1}, {sT1}, 1')
            E(f's_cmp_lt_u32 {sT1}, 0x40000')
            E('s_cbranch_scc1 L_poll')
        else:
            E(f'v_cmp_eq_u32 vcc, 0, v{VL16}')
            E('s_and_saveexec_b64 s[54:55], vcc')
            E(f'buffer_atomic_add v{TMP}, v{TMP+1}, {sDBG}, {sT0} offen sc1')
            E('s_mov_b64 exec, s[54:55]')
            E(f's_mov_b32 {sT1}, 0')
            E('L_poll:')
            E(f'buffer_load_dword v{TMP+2}, v{TMP+1}, {sDBG}, {sT0} offen sc1')
            E('s_waitcnt vmcnt(0)')
            E(f'v_readfirstlane_b32 {sT2}, v{TMP+2}')
            E(f's_cmp_ge_u32 {sT2}, 8')
            E('s_cbranch_scc1 L_wait_done')
            E(f's_sleep {min(c.poll_sleep, 8)}')
            E(f's_add_u32 {sT1}, {sT1}, 1')
            E(f's_cmp_lt_u32 {sT1}, 0x40000')
            E('s_cbranch_scc1 L_poll')
        E('L_wait_done:')
        E('s_barrier')
        if c.stamps: E('s_memrealtime s[68:69]')
        if not c.xp_notail: (reduce_code2 if c.fullline else reduce_code)(E, c)
    if c.stamps:
        E('L_stamps:')
        E('s_waitcnt vmcnt(0)')
        E('s_memrealtime s[70:71]')
        E('s_waitcnt lgkmcnt(0)')
        for i in range(12): E(f'v_mov_b32 v{i}, s{60+i}')
        for i in range(4): E(f'v_mov_b32 v{12+i}, s{72+2*i}')
        E('v_mov_b32 v16, s80'); E('v_mov_b32 v17, s82'); E('v_mov_b32 v18, s84')
        E(f's_lshl_b32 {sT0}, s2, 2'); E(f's_add_u32 {sT0}, {sT0}, {sW}'); E(f's_lshl_b32 {sT0}, {sT0}, 7'); E(f's_add_u32 {sT0}, {sT0}, 0x10000000')
        if c.bstamps:
            E(f's_lshl_b32 {sT1}, s2, 2'); E(f's_add_u32 {sT1}, {sT1}, {sW}'); E(f's_lshl_b32 {sT1}, {sT1}, 9'); E(f's_add_u32 {sT1}, {sT1}, 0x11000000')
            E(f'v_lshrrev_b32 v21, 2, v{VL16}')
            E(f'buffer_store_dword v246, v21, {sWS}, {sT1} offen')
            E(f'buffer_store_dword v247, v21, {sWS}, {sT1} offen offset:256')
        E(f'v_cmp_eq_u32 vcc, 0, v{VL16}')
        E('s_and_saveexec_b64 s[54:55], vcc')
        E('v_mov_b32 v20, 0')
        for i in range(4): E(f'buffer_store_dwordx4 {vr(4*i,4)}, v20, {sWS}, {sT0} offen offset:{16*i}')
        E(f'buffer_store_dwordx3 v[16:18], v20, {sWS}, {sT0} offen offset:64')
    if c.dbgspan:
        E('s_waitcnt vmcnt(0)')
        E('s_memrealtime s[70:71]')
        E('s_waitcnt lgkmcnt(0)')
        E(f's_cmp_lg_u32 {sW}, 0'); E('s_cbranch_scc1 L_done')
        E('s_not_b32 s60, s60')
        E('v_mov_b32 v1, s60'); E('v_mov_b32 v2, s70'); E('v_mov_b32 v3, 0')
        E(f'v_cmp_eq_u32 vcc, 0, v{VL16}')
        E('s_and_saveexec_b64 s[54:55], vcc')
        E(f'buffer_atomic_umax v1, v3, {sDBG}, 0 offen offset:0 sc1')
        E(f'buffer_atomic_umax v2, v3, {sDBG}, 0 offen offset:8 sc1')
    E('L_done:')
    E('s_endpgm')

DESC = '''.section .rodata,"a"
.p2align 6
.amdhsa_kernel {name}
  .amdhsa_next_free_vgpr {vg}
  .amdhsa_next_free_sgpr 100
  .amdhsa_accum_offset {acc}
  .amdhsa_group_segment_fixed_size 0
  .amdhsa_kernarg_size 64
  .amdhsa_user_sgpr_count 2
  .amdhsa_user_sgpr_kernarg_segment_ptr 1
  .amdhsa_system_sgpr_workgroup_id_x 1
.end_amdhsa_kernel
'''
def gen(cfg=None):
    c = cfg or Cfg()
    g, E = build(c)
    finish(g, E, c)
    body = g.a.finalize()
    head = f'''; Fused MHA block for gfx950: q-projection + attention over the cached K/V + out-projection, one launch.
; Everything streamed goes through a 9-slot x 16 KB LDS ring filled by LDS-DMA (buffer_load ... lds), five slots ahead, one
; barrier per slot; bank-conflict swizzles are applied on the source addresses.  Per head:
; @launch grid=(256,1,1) block=(256,1,1) lds=163840
.amdgcn_target "amdgcn-amd-amdhsa--gfx950"
.text
.globl {KNAME}
.p2align 8
.type {KNAME},@function
{KNAME}:
'''
    return head + body + DESC.format(name=KNAME, vg=512, acc=256), g

if __name__ == '__main__':
    s, g = gen()
    out = sys.argv[1] if len(sys.argv) > 1 else 'standalone__mha_block_cached__near_ridge.s'
    open(out, 'w').write(s)
    print('instructions', len(g.a.ins), 'nops inserted', g.a.nnop, 'bytes', len(s))
```

```python
import sys, struct, math
sys.path.insert(0, 'work')
from asmlib import Asm

KNAME = "standalone__mha_block_cached__near_ridge_kernel"
MF = "v_mfma_f32_16x16x32_bf16"
SLOT = 16384
XBUF = 9 * SLOT

S0 = 0; QN = 128; T0 = 160; NT = 12
VK, VV = 208, 209
VWQ = 210; VWO = 214
POOL = 218
KA0, VB0, QC0, OD0 = 226, 227, 228, 229
VM, VMC = 230, 231
TMP = 232
VL16 = 240; VPART = 241; VOA = 242; VOUT = 243
AOUT = 0; AX = 144; AO = 216; AL = 248; AONE = 252
sK, sV, sWQ, sWO, sX, sWS, sOUT, sDBG = 's[4:7]', 's[8:11]', 's[12:15]', 's[16:19]', 's[20:23]', 's[24:27]', 's[28:31]', 's[32:35]'
sW, sW4K, sB, sJ = 's36', 's37', 's38', 's39'
sKV, sKVN, sWQO, sWOO, sLOOP, sC = 's40', 's41', 's42', 's43', 's44', 's45'
sODD = 's[46:47]'
sT0, sT1, sT2, sT3 = 's48', 's49', 's50', 's51'
sPB = 's52'
sVS = 's[88:91]'
sFIRST = 's53'
VVS = 244
sLV = 's86'
sTHR = 's87'
ROT0 = 92
VCHK = 245

def vr(a, n=1): return f'v{a}' if n == 1 else f'v[{a}:{a+n-1}]'
def ar(a, n=1): return f'a{a}' if n == 1 else f'a[{a}:{a+n-1}]'

class Cfg:
    LA = 5
    kflags = None; vflags = None
    kvflags = 'nt'; wflags = ''; xflags = ''; pfflags = ''
    ra_b = 5; ra_t = 4; ra_o = 2
    pairwait = True
    q_groups = 10
    stamps = False
    skip_dma = ''; skip_compute = False; wfixed = False
    pf = 2; pf_b = 20; pf_mask = 1
    store_mode = 1
    poll_sleep = 16
    exit_at = 0
    k_early = 0
    two_kernel = False
    tlbwarm = False
    conv_inline = True
    codepf = True
    pf_first = False
    pf_late = False
    order = 'KVOQ'
    allpoll = False
    strict_reads = True
    pstflags = 'sc1'; pldflags = 'sc1'
    tailpf = False
    late_setup = True
    fullline = True
    shift = 0
    align = 0
    throttle = 0
    xorder = 1
    xdirect = True
    wgate = 1
    xp_nox = False
    xp_notail = 0
    pairbar = False
    sm_v_hi = 0
    olast = True
    klast = False
    dma_early = False
    bstamps = False
    dbgspan = False
    rot = 0
    xp_noexp = False
    xp_noq = False
    xp_halfv = False
    sm_in_v = True
    inline_store = False
    inline_b = False
    dflags = True
    dot_reduce = True
    outflags = ''
    istamps = False
    pf_first = False
    pf_wait = True
    pf_depth = 2
    golines = True
    fstamps = False
    sm_lo = 48
    sm_vhi = 32

RING_A = {'K': list(range(8)), 'Q': [8] + list(range(8)), 'V': list(range(8)), 'O': [8] + list(range(8))}
RING_B = {'K': list(range(8)), 'V': [8] + list(range(7)), 'O': [7, 8] + list(range(7)), 'Q': [7, 8] + list(range(7))}
RING = dict(RING_A)

class G:
    def __init__(self, cfg):
        self.c = cfg; self.a = Asm()
        self.vm = []; self.lg = []; self.lgid = 0; self.tnext = 0; self.uid = 0
        self.slot_last_read = {}; self.pending = []; self.bk = 0
    def E(self, t): self.a(t)
    def vm_issue(self, tag): self.vm.append(tag)
    def vm_wait(self, pred):
        idx = [i for i, t in enumerate(self.vm) if pred(t)]
        if not idx: return
        n = min(len(self.vm) - 1 - max(idx), 63)
        self.E(f's_waitcnt vmcnt({n})')
        self.vm = self.vm[len(self.vm) - n:] if n else []
    def lg_issue(self):
        self.lgid += 1; self.lg.append(self.lgid); return self.lgid
    def lg_wait(self, i):
        if i not in self.lg: return
        n = min(len(self.lg) - 1 - self.lg.index(i), 15)
        self.E(f's_waitcnt lgkmcnt({n})')
        self.lg = self.lg[len(self.lg) - n:] if n else []
    def lg_drain(self):
        if self.lg: self.E('s_waitcnt lgkmcnt(0)'); self.lg = []

    def dma_ops(self, kind, idx, nxt, ring=None):
        c = self.c
        if ring is None: ring = RING[kind][idx]
        base = ring * SLOT
        if kind in ('K', 'V'):
            srd = sK if kind == 'K' else sVS
            voff = [VK if kind == 'K' else VVS] * 4
            sb = sKVN if nxt else sKV; so = idx * SLOT; fl = c.kvflags
            if kind == 'K' and c.kflags is not None: fl = c.kflags
            if kind == 'V' and c.vflags is not None: fl = c.vflags
        elif kind == 'Q':
            srd = sWQ; voff = [VWQ + p for p in range(4)]; sb = sWQO; so = idx * 64 * 8192; fl = c.wflags
        else:
            srd = sWO; voff = [VWO + p for p in range(4)]; sb = sWOO; so = idx * 128; fl = c.wflags
        tag = (kind, idx, nxt)
        st = sT0 if (self.uid & 1) == 0 else sT1
        self.uid += 1
        if kind in ('K', 'V') and c.rot: so = f's{64 + 0 + idx}' if False else f's{ROT0 + idx}'
        def piece(p):
            def f():
                if p == 0:
                    self.E(f's_add_u32 m0, {sW4K}, {base}')
                    self.E(f's_add_u32 {st}, {sb}, {so}')
                off = f' offset:{p*1024}' if p else ''
                if kind not in c.skip_dma:
                    self.E(f'buffer_load_dwordx4 {vr(voff[p])}, {srd}, {st} offen{off} {fl} lds'.replace('  ', ' '))
                    self.vm_issue(tag)
            return f
        return [piece(p) for p in range(4)]
    def flush_dma(self, k=99):
        while self.pending and k > 0:
            self.pending.pop(0)(); k -= 1
    def slot_sync(self, sid, tag, issue, extra=None):
        lr = self.slot_last_read.get(sid - 2)
        if lr is not None: self.lg_wait(lr)
        if extra: extra()
        if self.c.bstamps:
            k = self.bk; self.bk += 1
            self.E(f's_memtime s[{92 + 2*(k&1)}:{93 + 2*(k&1)}]')
        self.vm_wait(lambda t: t == tag)
        if self.c.throttle and tag[0] in 'KV':
            self.thr = getattr(self, 'thr', 0) + 1
            self.E(f's_cmp_eq_u32 {sTHR}, 0'); self.E(f's_cbranch_scc1 L_thr{self.thr}')
            self.E(f's_waitcnt vmcnt({self.c.throttle})')
            self.E(f'L_thr{self.thr}:')
        self.E('s_barrier')
        if self.c.bstamps:
            self.E(f's_memtime s[{96 + 2*(k&1)}:{97 + 2*(k&1)}]')
            if k > 0:
                self.E(f'v_writelane_b32 v246, s{92 + 2*((k-1)&1)}, {(k-1) % 64}')
                self.E(f'v_writelane_b32 v247, s{96 + 2*((k-1)&1)}, {(k-1) % 64}')
        for it in issue: self.pending += self.dma_ops(*it)

    def stream(self, ops):
        frags = []
        for i, o in enumerate(ops):
            if o.get('frag'):
                o['fi'] = len(frags); frags.append(o['frag'])
            else:
                o['fi'] = len(frags) - 1 if o.get('mf') and o.get('usefrag', True) else None
        rq = []
        for fi, f in enumerate(frags):
            for k in range(len(f['reads'])): rq.append((fi, k))
        rp = 0
        skip = self.c.skip_compute
        def issue_read():
            nonlocal rp
            fi, k = rq[rp]; f = frags[fi]
            if k == 0:
                if f.get('pre'): f['pre']()
                f['T'] = T0 + 4 * (self.tnext % NT); self.tnext += 1
            tmpl, w = f['reads'][k]
            if not skip:
                d = f['T'] + (2 * k if w == 2 else 0)
                self.E(tmpl.format(d=vr(d, w)))
                f['last'] = self.lg_issue()
                if f.get('slot') is not None: self.slot_last_read[f['slot']] = f['last']
            rp += 1
        for i, o in enumerate(ops):
            cur = o['fi'] if o['fi'] is not None else -1
            if o.get('dma'): self.flush_dma(o['dma'])
            if cur >= 0:
                ra = frags[cur].get('ra', 6)
            else:
                ra = 0
            target = cur + ra
            base = o.get('maxr', 2)
            n = 0
            while rp < len(rq) and (rq[rp][0] <= cur or (rq[rp][0] <= target and len(self.lg) < 14 and
                                    (i == 0 or n < base or (n < base + 1 and (not self.c.strict_reads or rq[rp][0] < target - 1)) ))):
                issue_read(); n += 1
            if o.get('need'): o['need']()
            if cur >= 0 and o.get('mf') and not skip:
                f = frags[cur]
                if f['last'] in self.lg:
                    tgt = f['last']
                    if self.c.pairwait and cur + 1 < len(frags) and frags[cur + 1].get('last') in self.lg and frags[cur + 1].get('slot') is not None:
                        tgt = frags[cur + 1]['last']
                    self.lg_wait(tgt)
            for f in o.get('fill', []):
                if callable(f): f()
                elif not skip: self.E(f)
            if o.get('mf') and not skip:
                self.E(o['mf'](frags[cur]['T'] if cur >= 0 else None))
        assert rp == len(rq)

def build(cfg):
    RING.clear(); RING.update(RING_B if cfg.order == 'KVOQ' else RING_A)
    g = G(cfg); E = g.E; c = cfg
    LA = c.LA
    if c.stamps or c.dbgspan: E('s_memrealtime s[60:61]')
    E('s_cmp_ge_u32 s2, 256')
    E('s_cbranch_scc1 L_done')
    for dst, off in ((20, 0), (12, 24), (4, 8), (8, 16), (16, 32), (28, 40), (32, 48), (24, 56)):
        E(f's_load_dwordx2 s[{dst}:{dst+1}], s[0:1], {off}')
    if c.codepf:
        E('s_getpc_b64 s[56:57]')
        E('L_pc:')
        E('v_lshlrev_b32 v113, 7, v0')
        E('v_mov_b32 v115, s57')
        E('v_add_co_u32 v114, vcc, s56, v113')
        E('v_addc_co_u32 v115, vcc, 0, v115, vcc')
        E('v_cmp_gt_u32 vcc, L_done-L_pc, v113')
        E('s_and_saveexec_b64 s[54:55], vcc')
        E('s_cbranch_execz L_cpf_skip')
        E('global_load_dword v116, v[114:115], off')
        E('L_cpf_skip:')
        E('s_mov_b64 exec, s[54:55]')
    late = []
    def EL(t):
        if c.late_setup: late.append(t)
        else: E(t)
    L, C_, G_, RR, CC, POS, X, Y = 100, 101, 102, 103, 104, 106, 107, 108
    E(f'v_and_b32 v{L}, 63, v0')
    E(f'v_lshrrev_b32 v{X}, 6, v0')
    E(f'v_readfirstlane_b32 {sW}, v{X}')
    E(f'v_and_b32 v{C_}, 15, v{L}')
    E(f'v_lshrrev_b32 v{G_}, 4, v{L}')
    EL(f'v_lshrrev_b32 v{RR}, 2, v{L}')
    EL(f'v_and_b32 v{RR}, 3, v{RR}')
    EL(f'v_and_b32 v{CC}, 3, v{L}')
    E(f's_lshl_b32 {sW4K}, {sW}, 12')
    E(f's_and_b32 {sJ}, s2, 7')
    E(f's_lshr_b32 {sB}, s2, 3')
    E(f'v_lshlrev_b32 v{VL16}, 4, v{L}')
    EL(f's_lshl_b32 {sT0}, {sW}, 2')
    EL(f'v_add_u32 v{X}, {sT0}, v{G_}')
    EL(f'v_xor_b32 v{X}, v{X}, v{C_}')
    EL(f'v_lshlrev_b32 v{X}, 4, v{X}')
    EL(f'v_lshl_add_u32 v{X}, v{G_}, 8, v{X}')
    EL(f'v_add_u32 v{VK}, {sW4K}, v{X}')
    E(f's_and_b32 {sT1}, {sW}, 1')
    E(f's_lshl_b32 {sT1}, {sT1}, 3')
    EL(f'v_lshlrev_b32 v{X}, 1, v{G_}')
    EL(f'v_or_b32 v{X}, {sT1}, v{X}')
    EL(f'v_xor_b32 v{X}, v{X}, v{C_}')
    EL(f'v_lshlrev_b32 v{X}, 4, v{X}')
    EL(f'v_lshl_add_u32 v{X}, v{G_}, 8, v{X}')
    EL(f'v_add_u32 v{VV}, {sW4K}, v{X}')
    E(f'v_and_b32 v{X}, 1, v{G_}')
    E(f'v_lshrrev_b32 v{Y}, 1, v{G_}')
    E(f'v_lshl_or_b32 v{X}, v{Y}, 2, v{X}')
    E(f'v_or_b32 v{X}, {sT1}, v{X}')
    E(f'v_xor_b32 v{X}, v{X}, v{C_}')
    E(f'v_lshlrev_b32 v{X}, 4, v{X}')
    E(f'v_lshl_add_u32 v{X}, v{G_}, 13, v{X}')
    E(f's_lshl_b32 {sT2}, {sW}, 17')
    E(f'v_add_u32 v{VWQ}, {sT2}, v{X}')
    for p in range(1, 4): E(f'v_add_u32 v{VWQ+p}, {p*(32768-1024)}, v{VWQ}')
    EL(f'v_lshrrev_b32 v{X}, 3, v{L}')
    EL(f'v_and_b32 v{Y}, 6, v{X}')
    EL(f'v_and_b32 v{POS}, 7, v{L}')
    EL(f'v_xor_b32 v{Y}, v{Y}, v{POS}')
    EL(f'v_lshlrev_b32 v{Y}, 4, v{Y}')
    EL(f'v_mul_u32_u24 v{X}, 1152, v{X}')
    EL(f'v_add_u32 v{X}, v{X}, v{Y}')
    EL(f's_mul_i32 {sT2}, {sW}, {32*1152}')
    EL(f'v_add_u32 v{VWO}, {sT2}, v{X}')
    for p in range(1, 4): EL(f'v_add_u32 v{VWO+p}, {p*(8*1152-1024)}, v{VWO}')
    EL(f'v_lshrrev_b32 v{X}, 2, v{C_}')
    EL(f'v_lshlrev_b32 v{X}, 12, v{X}')
    EL(f'v_and_b32 v{Y}, 3, v{C_}')
    EL(f'v_lshl_add_u32 v{X}, v{Y}, 8, v{X}')
    EL(f'v_xor_b32 v{Y}, v{G_}, v{C_}')
    EL(f'v_lshl_add_u32 v{KA0}, v{Y}, 4, v{X}')
    ROWP, G1, C1 = 109, 110, 111
    EL(f'v_lshlrev_b32 v{ROWP}, 4, v{G_}')
    EL(f'v_add_u32 v{ROWP}, v{ROWP}, v{RR}')
    EL(f'v_lshlrev_b32 v{ROWP}, 8, v{ROWP}')
    EL(f'v_and_b32 v{G1}, 1, v{G_}')
    EL(f'v_lshlrev_b32 v{G1}, 3, v{G1}')
    EL(f'v_and_b32 v{C1}, 1, v{CC}')
    EL(f'v_lshlrev_b32 v{C1}, 3, v{C1}')
    EL(f'v_lshl_or_b32 v{X}, v{RR}, 1, v{G1}')
    EL(f'v_lshrrev_b32 v{Y}, 1, v{CC}')
    EL(f'v_xor_b32 v{X}, v{X}, v{Y}')
    EL(f'v_lshl_add_u32 v{X}, v{X}, 4, v{C1}')
    EL(f'v_add_u32 v{VB0}, v{ROWP}, v{X}')
    EL(f'v_and_b32 v{X}, 1, v{RR}')
    EL(f'v_lshrrev_b32 v{Y}, 1, v{RR}')
    EL(f'v_lshl_or_b32 v{X}, v{Y}, 2, v{X}')
    EL(f'v_or_b32 v{X}, v{X}, v{G1}')
    EL(f'v_xor_b32 v{X}, v{X}, v{CC}')
    EL(f'v_lshl_add_u32 v{X}, v{X}, 4, v{C1}')
    EL(f'v_add_u32 v{QC0}, v{ROWP}, v{X}')
    EL(f'v_lshrrev_b32 v{X}, 1, v{RR}')
    EL(f'v_lshlrev_b32 v{X}, 1, v{X}')
    EL(f'v_lshrrev_b32 v{Y}, 1, v{G1}')
    EL(f'v_or_b32 v{X}, v{X}, v{Y}')
    EL(f'v_lshrrev_b32 v{Y}, 1, v{CC}')
    EL(f's_lshl_b32 {sT2}, {sW}, 1')
    EL(f'v_add_u32 v{Y}, {sT2}, v{Y}')
    EL(f'v_xor_b32 v{X}, v{X}, v{Y}')
    EL(f'v_lshl_add_u32 v{X}, v{X}, 4, v{C1}')
    EL(f'v_lshlrev_b32 v{Y}, 2, v{G_}')
    EL(f'v_add_u32 v{Y}, v{Y}, v{RR}')
    EL(f'v_lshl_add_u32 v{OD0}, v{Y}, 7, v{X}')
    EL(f'v_and_b32 v{X}, 1, v{G_}')
    EL(f'v_cmp_eq_u32 {sODD}, 1, v{X}')
    XST = 3 * SLOT
    VX = 112
    if not c.xdirect:
        E(f's_mul_i32 {sT2}, {sW}, {16*1152}')
        E(f'v_mul_u32_u24 v{X}, 1152, v{C_}')
        E(f'v_lshl_add_u32 v{X}, v{G_}, 5, v{X}')
        E(f'v_add_u32 v{VX}, {sT2}, v{X}')
        E(f'v_add_u32 v{VX}, {XST}, v{VX}')
    EL(f's_lshl_b32 {sT2}, {sW}, 10')
    EL(f'v_add_u32 v{VPART}, {sT2}, v{VL16}')
    EL(f'v_mul_u32_u24 v{VOUT}, 1152, v{C_}')
    EL(f'v_lshl_add_u32 v{VOUT}, v{G_}, 3, v{VOUT}')
    EL(f's_lshl_b32 {sKV}, {sB}, 5')
    EL(f's_lshl_b32 {sT2}, {sJ}, 2')
    EL(f's_add_u32 {sKV}, {sKV}, {sT2}')
    EL(f's_lshl_b32 {sKV}, {sKV}, 17')
    EL(f's_mov_b32 {sKVN}, {sKV}')
    E(f's_lshl_b32 {sWQO}, {sJ}, 10')
    EL(f's_mul_i32 {sWOO}, {sJ}, {4*128*1152}')
    cval = struct.unpack('<I', struct.pack('<f', (128 ** -0.5) * math.log2(math.e)))[0]
    EL(f's_mov_b32 {sC}, {hex(cval)}')
    if c.pf == 4:
        EL(f's_mul_i32 {sT2}, {sB}, 86'); EL(f's_lshr_b32 {sT2}, {sT2}, 8'); EL(f's_mul_i32 {sT2}, {sT2}, 3'); EL(f's_sub_u32 {sLV}, {sB}, {sT2}')
    else:
        EL(f's_and_b32 {sLV}, {sB}, 1')
    EL(f's_lshl_b32 {sPB}, {sB}, 3')
    EL(f's_add_u32 {sPB}, {sPB}, {sJ}')
    EL(f's_mul_i32 {sPB}, {sPB}, {72*1024}')
    for i in range(4): EL(f'v_mov_b32 v{TMP+i}, 0')
    EL(f'v_mov_b32 v{TMP+4}, 0x3f803f80')
    for i in range(9): EL(f'v_mfma_f32_32x32x16_bf16 {ar(AOUT+16*i,16)}, {vr(TMP,4)}, {vr(TMP,4)}, 0')
    for i in range(4): EL(f'v_accvgpr_write_b32 a{AONE+i}, v{TMP+4}')
    EL('v_mov_b32 v%d, v%d' % (VVS, VV if c.order == 'KVOQ' else VK))
    EL(f'v_mov_b32 v{VCHK}, 0')
    if c.pf:
        E(f's_lshl_b32 s58, {sB}, 2'); E(f's_add_u32 s58, s58, {sW}'); E(f's_lshl_b32 s58, s58, 1')
        E(f's_cmp_ge_u32 s58, 144'); E(f's_cselect_b32 s59, 144, 0'); E(f's_sub_u32 s58, s58, s59')
        E(f's_lshl_b32 s58, s58, 15'); E(f's_add_u32 s58, s58, {sWQO}')
        E(f'v_lshrrev_b32 v{X}, 4, v{L}'); E(f'v_lshlrev_b32 v{X}, 13, v{X}'); E(f'v_and_b32 v{Y}, 15, v{L}'); E(f'v_lshl_add_u32 v113, v{Y}, 4, v{X}')
        E(f's_add_u32 m0, {sW4K}, {XBUF}')
    if c.xdirect:
        E(f's_lshl_b32 s53, {sB}, 6'); E(f's_lshl_b32 s56, {sW}, 4'); E(f's_add_u32 s53, s53, s56'); E(f's_mul_i32 s53, s53, 1152')
        E(f'v_mul_u32_u24 v{X}, 1152, v{C_}')
        E(f'v_lshl_add_u32 v{VX}, v{G_}, 5, v{X}')
    for base, nrec in ((20, 2359296), (12, 4718592), (4, 0x8000000), (8, 0x8000000), (16, 4718592), (24, 0x1400000 + 256*128), (28, 2359296), (32, 256)):
        emit = E if base in (12, 20) or (c.pf_first and base == 16) else EL
        emit(f's_mov_b32 s{base+2}, {hex(nrec)}')
        emit(f's_mov_b32 s{base+3}, 0x20000')
    E('s_waitcnt lgkmcnt(0)')
    if c.stamps: E('s_memrealtime s[82:83]')
    if c.stamps: EL('s_mov_b32 s26, 0x20000000')
    vsel0 = 8 if c.order == 'KVOQ' else 4
    for i in range(4): EL(f's_mov_b32 s{88+i}, s{vsel0+i}')
    if c.rot:
        if c.rot == 1: E(f's_add_u32 {sT2}, {sB}, {sJ}')
        elif c.rot == 2: E(f's_mov_b32 {sT2}, {sB}')
        elif c.rot == 3:
            E(f's_lshr_b32 {sT2}, {sB}, 1'); E(f's_add_u32 {sT2}, {sT2}, {sJ}')
        elif c.rot == 4:
            E(f's_mul_i32 {sT2}, {sB}, 3'); E(f's_add_u32 {sT2}, {sT2}, {sJ}')
        for i in range(8):
            E(f's_add_u32 {sT3}, {sT2}, {i}'); E(f's_and_b32 {sT3}, {sT3}, 7'); E(f's_lshl_b32 s{ROT0+i}, {sT3}, 14')
    if c.tlbwarm:
        def touch(lo, off_code, dst):
            off_code()
            E(f's_add_u32 s86, s{lo}, {sT2}')
            E(f's_addc_u32 s87, s{lo+1}, 0')
            E(f's_load_dword s{dst}, s[86:87], 0')
        touch(20, lambda: E(f's_mul_i32 {sT2}, {sB}, {64*1152}'), 64)
        touch(4, lambda: E(f's_mov_b32 {sT2}, {sKV}'), 65)
        touch(8, lambda: E(f's_mov_b32 {sT2}, {sKV}'), 66)
        for k, off in enumerate((0, 1572864, 3145728, 4718588)):
            touch(12, lambda off=off: E(f's_mov_b32 {sT2}, {off}'), 67)
        touch(16, lambda: E(f's_mov_b32 {sT2}, {sWOO}'), 68)
        touch(16, lambda: E(f's_add_u32 {sT2}, {sWOO}, {4*128*1152-4}'), 68)
        touch(24, lambda: E(f's_mov_b32 {sT2}, {sPB}'), 69)
        touch(28, lambda: E(f's_mul_i32 {sT2}, {sB}, {64*1152}'), 69)
        E('s_load_dword s70, s[32:33], 0')

    def issue_now(kind, idx, nxt):
        for f in g.dma_ops(kind, idx, nxt): f()
    def pf_pieces(srd, n, sbase_code, step):
        sbase_code()
        E(f's_add_u32 m0, {sW4K}, {XBUF}')
        for k in range(n):
            E(f'buffer_load_dwordx4 v{VL16}, {srd}, {sT2} offen {c.pfflags} lds'.replace('  ', ' '))
            if k < n - 1: E(f's_add_u32 {sT2}, {sT2}, {step}')
    if c.pf:
        for k in range(2):
            E(f'buffer_load_dwordx4 v113, {sWQ}, s58 offen {c.pfflags} lds'.replace('  ', ' '))
            if k == 0: E(f's_add_u32 s58, s58, 32768')
    def pf_duty():
        if c.pf:
            npc = 9 if c.pf == 1 else c.pf_b
            if c.pf == 2:
                E(f's_and_b32 s58, {sB}, {c.pf_mask}')
                E(f's_cmp_eq_u32 s58, 0'); E('s_cbranch_scc1 L_nopf')
                E(f's_lshr_b32 s59, {sB}, 1')
                E(f's_lshl_b32 s59, s59, 2'); E(f's_add_u32 s59, s59, {sW}'); E(f's_mul_i32 s59, s59, {npc}')
                E(f's_add_u32 s58, s59, {npc}')
            elif c.pf == 3:
                E(f's_and_b32 s57, {sB}, 3')
                E(f's_cmp_eq_u32 s57, 0'); E('s_cbranch_scc1 L_nopf')
                E(f's_lshr_b32 s59, {sB}, 2'); E(f's_mul_i32 s59, s59, 144')
                E(f's_sub_u32 s56, s57, 1'); E(f's_mul_i32 s56, s56, s57'); E(f's_mul_i32 s56, s56, 12')
                E(f's_add_u32 s59, s59, s56')
                E(f's_mul_i32 s57, s57, 6')
                E(f's_mul_i32 s56, s57, {sW}'); E(f's_add_u32 s59, s59, s56')
                E(f's_add_u32 s58, s59, s57')
            elif c.pf == 4:
                E(f's_mul_i32 s56, {sB}, 86'); E(f's_lshr_b32 s56, s56, 8')
                E(f's_mul_i32 s57, s56, 3'); E(f's_sub_u32 s57, {sB}, s57')
                E(f's_cmp_eq_u32 s57, 0'); E('s_cbranch_scc1 L_nopf')
                E(f's_mul_i32 s59, s56, 112')
                E(f's_cmp_eq_u32 s57, 2'); E(f's_cselect_b32 s56, 36, 0'); E(f's_cselect_b32 s57, 19, 9')
                E(f's_add_u32 s59, s59, s56')
                E(f's_mul_i32 s56, s57, {sW}'); E(f's_add_u32 s59, s59, s56')
                E(f's_add_u32 s58, s59, s57')
            else:
                E(f's_mov_b32 s59, {sB}')
                E(f's_lshl_b32 s59, s59, 2'); E(f's_add_u32 s59, s59, {sW}'); E(f's_mul_i32 s59, s59, {npc}')
                E(f's_add_u32 s58, s59, {npc}')
            E(f's_add_u32 m0, {sW4K}, {XBUF}')
            E('L_pf:')
            E(f's_cmp_ge_u32 s59, 576'); E('s_cbranch_scc1 L_pfo')
            E(f's_lshl_b32 s56, s59, 13'); E(f's_lshl_b32 s57, {sJ}, 10'); E(f's_add_u32 s56, s56, s57')
            E(f'buffer_load_dwordx4 v{VL16}, {sWQ}, s56 offen {c.pfflags} lds'.replace('  ', ' '))
            E('s_branch L_pfn')
            E('L_pfo:')
            E(f's_sub_u32 s56, s59, 576'); E(f's_lshl_b32 s56, s56, 10'); E(f's_mul_i32 s57, {sJ}, {4*128*1152}'); E(f's_add_u32 s56, s56, s57')
            E(f'buffer_load_dwordx4 v{VL16}, {sWO}, s56 offen {c.pfflags} lds'.replace('  ', ' '))
            E('L_pfn:')
            if c.pf_depth: E(f's_waitcnt vmcnt({c.pf_depth})')
            E('s_add_u32 s59, s59, 1'); E('s_cmp_lt_u32 s59, s58'); E('s_cbranch_scc1 L_pf')
            if c.pf_wait: E('s_waitcnt vmcnt(0)')
            E('L_nopf:')
    if c.pf_first: pf_duty()
    if c.xdirect:
        def xl(jj):
            for hs in range(2):
                E(f'buffer_load_dwordx4 {ar(AX + 4*(2*jj+hs), 4)}, v{VX}, {sX}, s53 offen offset:{128*jj+16*hs} {c.xflags}'.rstrip())
        order = [('Q', 0), ('x', 0), ('x', 1)] + [('Q', i) for i in range(1, LA)] + [('x', j) for j in range(2, 9)]
        if c.xorder == 1: order = [('x', j) for j in range(9)] + [('Q', i) for i in range(LA)]
        if c.xorder == 2: order = [('x', j) for j in range(5)] + [('Q', 0), ('Q', 1)] + [('x', j) for j in range(5, 9)] + [('Q', i) for i in range(2, LA)]
        sim = []
        for kind, i in order:
            if kind == 'Q':
                issue_now('Q', i, False); sim += [('Q', i)] * 4
            else:
                xl(i); sim += [('x', i)] * 2
        N = 4 * (LA - 1)
        q = list(sim)
        for j in range(9):
            q = q[-N:] if len(q) > N else q
            assert ('x', j) not in q and ('Q', j) not in q, (j, q)
            q += [('n', j)] * 4
        if c.stamps: E('s_memrealtime s[84:85]')
    else:
        E(f's_lshl_b32 {sT2}, {sB}, 6'); E(f's_lshl_b32 {sT3}, {sW}, 4'); E(f's_add_u32 {sT2}, {sT2}, {sT3}'); E(f's_mul_i32 {sT2}, {sT2}, 1152')
        E(f's_mul_i32 {sT3}, {sW}, 18432'); E(f's_add_u32 {sT3}, {sT3}, {XST}')
        for k in range(18):
            if k % 4 == 0:
                E(f's_add_u32 m0, {sT3}, {k*1024}')
                if k: E(f's_add_u32 {sT2}, {sT2}, 4096')
                else: E('s_nop 0')
            off = f' offset:{(k%4)*1024}' if k % 4 else ''
            if not c.xp_nox:
                E(f'buffer_load_dwordx4 v{VL16}, {sX}, {sT2} offen{off} {c.xflags} lds'.replace('  ', ' '))
                g.vm_issue(('X', k))
        for i in range(4): issue_now('Q', i, False)
        g.vm_wait(lambda t: t[0] == 'X')
        if c.stamps: E('s_memrealtime s[84:85]')
        E('s_waitcnt lgkmcnt(0)')
        if not c.skip_compute:
            for jj in range(9):
                for hs in range(2):
                    E(f'ds_read_b128 {ar(AX + 4*(2*jj+hs), 4)}, v{VX} offset:{128*jj+16*hs}')
                    if (2 * jj + hs) % 8 == 7: E('s_waitcnt lgkmcnt(0)')
            E('s_waitcnt lgkmcnt(0)')

    if late:
        E(f's_and_b32 {sT1}, {sW}, 1'); E(f's_lshl_b32 {sT1}, {sT1}, 3')
    for t in late: E(t)
    if c.golines:
        E(f's_cmp_lg_u32 {sW}, 0')
        E('s_cbranch_scc1 L_noinit')
        E(f's_lshl_b32 {sT2}, s2, 7'); E(f's_add_u32 {sT2}, {sT2}, 0x1400000')
        E(f'v_mov_b32 v{TMP+2}, 0')
        E(f'v_lshrrev_b32 v{TMP+3}, 2, v{VL16}')
        E(f'v_cmp_gt_u32 vcc, 256, v{VL16}')
        E('s_and_saveexec_b64 s[54:55], vcc')
        E(f'buffer_store_dword v{TMP+2}, v{TMP+3}, {sWS}, {sT2} offen sc1')
        E('s_mov_b64 exec, s[54:55]')
        E('L_noinit:')
    sid = [0]
    def pool_init(pat, variants, win):
        L_ = []
        for v, xb in enumerate(variants):
            d = POOL + v
            if xb == 0: L_.append(f'v_add_u32 v{d}, {win*65536}, v{pat}' if win else f'v_mov_b32 v{d}, v{pat}')
            else: L_.append(f'v_xor_b32 v{d}, {xb}, v{POOL}')
        for t in L_: E(t)

    def newwin(kind, j): return j == 0 or (RING[kind][j] >> 2) != (RING[kind][j - 1] >> 2)
    def mk_pre(seq, p, my, extra=None, after=None, issue=None, j=None, n_in_phase=None, issue_map=None):
        def pre():
            if c.pairbar and j is not None:
                if j % 2 == 1:
                    if after: after()
                    return
                n = 2 if j + 1 < n_in_phase else 1
                g.flush_dma()
                if issue_map is not None: iss = sum((issue_map[j + i] for i in range(n)), [])
                else: iss = [seq[p + LA + i] for i in range(n) if p + LA + i < len(seq)]
                g.slot_sync(my, seq[p + n - 1], iss, extra)
                if after: after()
                return
            g.flush_dma()
            iss = issue if issue is not None else ([seq[p + LA]] if p + LA < len(seq) else [])
            g.slot_sync(my, seq[p], iss, extra)
            if after: after()
        return pre

    def k_ops(seq, p0, issue_map=None):
        ops = []
        for j in range(8):
            ring = RING['K'][j]; win, inw = ring >> 2, (ring & 3) * SLOT
            my = sid[0]; sid[0] += 1
            for u in range(4):
                T = 4 * j + u
                for s in range(4):
                    fr = {'slot': my, 'ra': c.ra_b, 'reads': [(f'ds_read_b128 {{d}}, v{POOL+s} offset:{inw + u*1024}', 4)]}
                    if u == 0 and s == 0:
                        fr['pre'] = mk_pre(seq, p0 + j, my, j=j, n_in_phase=8, issue_map=issue_map, issue=(issue_map[j] if issue_map else None), after=(lambda win=win: pool_init(KA0, [0, 64, 128, 192], win)) if newwin('K', j) else None)
                    D = vr(S0 + 4 * T, 4); B = vr(QN + 8 * s, 4)
                    o = {'frag': fr, 'maxr': 1, 'fill': [],
                         'mf': (lambda t, D=D, B=B, s=s: f'{MF} {D}, {vr(t,4)}, {B}, {D if s else 0}')}
                    if (s == 2 and not c.dma_early) or (c.dma_early and u == 2): o['dma'] = 1
                    if T >= 2 and s in (1, 3):
                        a = S0 + 4 * (T - 2) + (0 if s == 1 else 2)
                        o['fill'].append(f'v_max3_f32 v{VM}, v{a}, v{a+1}, v{VM}')
                    ops.append(o)
        return ops
    def q_ops(seq, p0, issue_map=None):
        ops = []
        for j in range(9):
            ring = RING['Q'][j]; win, inw = ring >> 2, (ring & 3) * SLOT
            my = sid[0]; sid[0] += 1
            for hs in range(2):
                for s in range(4):
                    for u in range(2):
                        v = 2 * s + u
                        fr = {'slot': my, 'ra': c.ra_t, 'reads': [(f'ds_read_b64_tr_b16 {{d}}, v{POOL+v} offset:{inw + (8*hs+4*t)*256}', 2) for t in range(2)]}
                        if hs == 0 and v == 0:
                            fr['pre'] = mk_pre(seq, p0 + j, my, j=j, n_in_phase=9, issue=(issue_map.get(j) if issue_map else None),
                                               after=(lambda win=win: pool_init(QC0, [0, 8, 64, 72, 128, 136, 192, 200], win)) if newwin('Q', j) else None)
                        D = vr(QN + 4 * v, 4); B = ar(AX + 4 * (2 * j + hs), 4)
                        first = (j == 0 and hs == 0)
                        o = {'frag': fr, 'fill': [], 'mf': (lambda t, D=D, B=B, first=first: f'{MF} {D}, {vr(t,4)}, {B}, {0 if first else D}')}
                        if (v in (1, 5) and not c.dma_early) or (c.dma_early and hs == 0 and v >= 4): o['dma'] = 1
                        ops.append(o)
        return ops
    def v_ops(seq, p0):
        ops = []
        for j in range(8):
            ring = RING['V'][j]; win, inw = ring >> 2, (ring & 3) * SLOT
            my = sid[0]; sid[0] += 1
            for hf in range(2):
                uu = 2 * j + hf
                for td in range(8):
                    fr = {'slot': my, 'ra': c.ra_t, 'reads': [(f'ds_read_b64_tr_b16 {{d}}, v{POOL+td} offset:{inw + (8*hf+4*t)*256}', 2) for t in range(2)]}
                    if hf == 0 and td == 0:
                        fr['pre'] = mk_pre(seq, p0 + j, my, j=j, n_in_phase=8, after=(lambda win=win: pool_init(VB0, [i << 5 for i in range(8)], win)) if newwin('V', j) else None)
                    D = ar(AO + 4 * td, 4); B = vr(S0 + 8 * uu, 4)
                    o = {'frag': fr, 'fill': [], 'uu': uu, 'mf': (lambda t, D=D, B=B, uu=uu: f'{MF} {D}, {vr(t,4)}, {B}, {D if uu else 0}')}
                    if (td in (2, 5) and not c.dma_early) or (c.dma_early and hf == 0 and td >= 4): o['dma'] = 1
                    ops.append(o)
                DL = ar(AL, 4); B = vr(S0 + 8 * uu, 4)
                ops.append({'frag': None, 'usefrag': True, 'fill': [], 'uu': uu, 'maxr': 2,
                            'mf': (lambda t, B=B, uu=uu, DL=DL: f'{MF} {DL}, {ar(AONE,4)}, {B}, {DL if uu else 0}')})
        return ops
    def o_ops(seq, p0, extra0, after0):
        ops = []
        for j in range(9):
            ring = RING['O'][j]; win, inw = ring >> 2, (ring & 3) * SLOT
            my = sid[0]; sid[0] += 1
            for s in range(4):
                fr = {'slot': my, 'ra': c.ra_o, 'reads': [(f'ds_read_b64_tr_b16 {{d}}, v{VOA} offset:{inw + s*4096 + t*2048}', 2) for t in range(2)]}
                if s == 0:
                    def after(j=j, win=win):
                        if j == 0: after0()
                        if newwin('O', j): E(f'v_add_u32 v{VOA}, {win*65536}, v{OD0}' if win else f'v_mov_b32 v{VOA}, v{OD0}')
                    fr['pre'] = mk_pre(seq, p0 + j, my, j=j, n_in_phase=9, extra=(extra0 if j == 0 else None), after=after)
                for qt in range(4):
                    D = ar(AOUT + 4 * (4 * j + qt), 4); B = vr(S0 + 4 * (4 * s + qt), 4)
                    o = {'frag': fr if qt == 0 else None, 'maxr': 1, 'fill': [], 'mf': (lambda t, D=D, B=B: f'{MF} {D}, {vr(t,4)}, {B}, {D}')}
                    if qt == 2: o['dma'] = 1
                    ops.append(o)
        return ops

    def exp_group(uu):
        b = S0 + 8 * uu
        L_ = [f'v_fma_f32 v{b+i}, v{b+i}, {sC}, -v{VMC}' for i in range(8)]
        L_ += [f'v_exp_f32 v{b+i}, v{b+i}' for i in range(8)]
        L_ += [f'v_cvt_pk_bf16_f32 v{b+i}, v{b+2*i}, v{b+2*i+1}' for i in range(4)]
        return L_
    def max_finish():
        L_ = []
        for T in (30, 31):
            a = S0 + 4 * T
            L_ += [f'v_max3_f32 v{VM}, v{a}, v{a+1}, v{VM}', f'v_max3_f32 v{VM}, v{a+2}, v{a+3}, v{VM}']
        L_ += [f'v_mov_b32 v{TMP}, v{VM}', f'v_permlane32_swap_b32 v{VM}, v{TMP}', f'v_max_f32 v{VM}, v{VM}, v{TMP}',
               f'v_mov_b32 v{TMP}, v{VM}', f'v_permlane16_swap_b32 v{VM}, v{TMP}', f'v_max_f32 v{VM}, v{VM}, v{TMP}',
               f'v_mul_f32 v{VMC}, {sC}, v{VM}']
        return L_
    def q_finalize():
        L_ = []
        for s in range(4):
            a = QN + 8 * s; t = TMP + 4 * (s & 1)
            L_ += [f'v_cvt_pk_bf16_f32 v{t}, v{a}, v{a+1}', f'v_cvt_pk_bf16_f32 v{t+1}, v{a+2}, v{a+3}',
                   f'v_cvt_pk_bf16_f32 v{t+2}, v{a+4}, v{a+5}', f'v_cvt_pk_bf16_f32 v{t+3}, v{a+6}, v{a+7}']
            L_ += [f'v_cndmask_b32 v{a}, v{t}, v{t+2}, {sODD}', f'v_cndmask_b32 v{a+1}, v{t+1}, v{t+3}, {sODD}',
                   f'v_cndmask_b32 v{a+2}, v{t+2}, v{t}, {sODD}', f'v_cndmask_b32 v{a+3}, v{t+3}, v{t+1}, {sODD}']
        return L_
    def distribute(ops, fillers, lo, hi):
        n = hi - lo
        for k, f in enumerate(fillers):
            ops[lo + (k * n) // len(fillers)]['fill'].append(f)

    def gate_arrive():
        E(f's_cmp_lg_u32 {sW}, 0')
        E('s_cbranch_scc1 L_ga_done')
        E(f'v_mov_b32 v{TMP+4}, 1')
        E(f'v_mov_b32 v{TMP+5}, 0')
        E(f's_lshl_b32 {sT2}, {sJ}, 5')
        E(f's_add_u32 {sT2}, {sT2}, 4')
        E(f'v_cmp_eq_u32 vcc, 0, v{VL16}')
        E('s_and_saveexec_b64 s[54:55], vcc')
        E(f'buffer_atomic_add v{TMP+4}, v{TMP+5}, {sDBG}, {sT2} offen sc1')
        E('s_mov_b64 exec, s[54:55]')
        E('L_ga_done:')
    def gate_wait():
        E(f's_cmp_lg_u32 {sW}, 0')
        E('s_cbranch_scc1 L_gw_done')
        E(f'v_lshlrev_b32 v{TMP+5}, 1, v{VL16}')
        E(f'v_add_u32 v{TMP+5}, 4, v{TMP+5}')
        E(f's_mov_b32 {sT3}, 0')
        E('L_gw_poll:')
        E(f'buffer_load_dword v{TMP+4}, v{TMP+5}, {sDBG}, 0 offen sc1')
        E('s_waitcnt vmcnt(0)')
        E(f'v_cmp_le_u32 vcc, 32, v{TMP+4}')
        E(f's_cmp_eq_u32 vcc_lo, 0xff')
        E('s_cbranch_scc1 L_gw_done')
        E(f's_sleep {c.poll_sleep}')
        E(f's_add_u32 {sT3}, {sT3}, 1')
        E(f's_cmp_lt_u32 {sT3}, 0x40000')
        E('s_cbranch_scc1 L_gw_poll')
        E('L_gw_done:')
        E('s_barrier')
        g.vm = []
    def o_finalize():
        tl = 64
        E(f'v_accvgpr_read_b32 v{tl}, a{AL}')
        E(f'v_add_u32 v{TMP}, {XBUF}, v{VPART}')
        E(f'v_rcp_f32 v{tl}, v{tl}')
        for s in range(4):
            t = 72 + 12 * s
            for i in range(8): E(f'v_accvgpr_read_b32 v{t+i}, a{AO + 8*s + i}')
            for i in range(8): E(f'v_mul_f32 v{t+i}, v{t+i}, v{tl}')
            for i in range(4): E(f'v_cvt_pk_bf16_f32 v{t+8+i}, v{t+2*i}, v{t+2*i+1}')
            E(f'ds_write_b128 v{TMP}, {vr(t+8,4)} offset:{s*4096}')
            g.lg_issue()
    def o_load_frags():
        E(f'v_add_u32 v{TMP}, {XBUF}, v{VL16}')
        for i in range(16):
            E(f'ds_read_b128 {vr(S0+4*i,4)}, v{TMP} offset:{i*1024}')
            g.o_frag_last = g.lg_issue()

    if not c.xdirect:
        E('s_barrier')
        for i in range(4, LA): issue_now('Q', i, False)
    g.pf_duty = pf_duty
    if not (c.pf_late and c.order == 'KVOQ') and not c.pf_first: pf_duty()
    E(f's_mov_b32 {sFIRST}, 1')
    if c.throttle: E(f's_mov_b32 {sTHR}, 0')
    E(f's_mov_b32 {sLOOP}, 0')
    E('s_branch L_Q')
    for _ in range(c.shift): E('s_nop 0')

    if c.order == 'KVOQ':
        return body_kvoq(g, E, c, locals())
    seq = [('K', i, False) for i in range(8)] + [('Q', i, False) for i in range(9)] + [('V', i, False) for i in range(8)] + \
          [('O', i, False) for i in range(9)] + [('K', i, True) for i in range(8)]
    def st(i):
        if c.istamps: return
        if c.stamps and not c.fstamps: E(f's_memtime s[{72+2*i}:{73+2*i}]')
        if c.stamps and c.fstamps: E(f's_memrealtime s[{72+2*i}:{73+2*i}]')
    def vpos(vi, uu): return next(i for i, o in enumerate(vi) if o['uu'] == uu)
    groups = [exp_group(uu) if not c.xp_noexp else exp_group(uu)[16:] for uu in range(16)]
    if c.align: E(f'.p2align {c.align}')
    E('L_K:')
    g.vm = [('K', i, False) for i in range(LA) for _ in range(4)] if 'K' not in c.skip_dma else []
    g.lg = []; g.slot_last_read = {}
    st(0)
    E(f'v_mov_b32 v{VM}, 0xff800000')
    g.stream(k_ops(seq, 0))
    g.flush_dma(); g.lg_drain()
    nq = c.q_groups
    if c.sm_in_v and not c.klast:
        E(f's_cmp_eq_u32 {sLOOP}, 3')
        E('s_cbranch_scc1 L_skipq')
    E('L_Q:')
    st(1)
    qi = q_ops(seq, 8)
    fl = max_finish()
    if not c.sm_in_v:
        for k, f in enumerate(fl): qi[3 + k]['fill'].append(f)
        distribute(qi, sum(groups[:nq], []), max(c.sm_lo, 3 + len(fl) + 1), len(qi))
    if c.xp_noq:
        for o in qi:
            o['mf'] = None
            if o.get('frag'): o['frag']['reads'] = [('s_nop 0 ; {d}', 4)]
    g.stream(qi)
    g.flush_dma(); g.lg_drain()
    E(f's_cmp_lg_u32 {sFIRST}, 0')
    E('s_cbranch_scc1 L_first_done')
    E('L_V:')
    st(2)
    vi = v_ops(seq, 17)
    if c.sm_in_v:
        vi[0]['fill'] += fl + groups[0] + groups[1]
        rest = [(None, f) for f in q_finalize()]
        allrest = [(uu, f) for uu in range(2, 16) for f in groups[uu]]
        lo, hi = 1, (c.sm_v_hi or vpos(vi, 15) - 3)
        for k, (uu, f) in enumerate(allrest):
            i = min(lo + (k * (hi - lo)) // len(allrest), vpos(vi, uu) - 2)
            vi[i]['fill'].append(f)
        distribute(vi, q_finalize(), len(vi) - 18, len(vi) - 1)
    else:
        distribute(vi, q_finalize(), 2, 18)
        allrest = [(uu, f) for uu in range(nq, 16) for f in groups[uu]]
        lo, hi = 2, max(c.sm_vhi, 4)
        for k, (uu, f) in enumerate(allrest):
            i = min(lo + (k * (hi - lo)) // len(allrest), vpos(vi, uu) - 2)
            vi[i]['fill'].append(f)
    def drop_next():
        if not c.olast:
            E(f's_cmp_eq_u32 {sLOOP}, 3')
            E('s_cselect_b32 s6, 0, s6')
        if not (c.klast and c.sm_in_v):
            E(f's_cmp_eq_u32 {sLOOP}, 2')
            E('s_cselect_b32 s14, 0, s14')
    vi[20]['fill'].append(drop_next)
    if c.dflags:
        def rdchk():
            E(f's_cmp_lg_u32 {sLOOP}, 3'); E('s_cbranch_scc1 L_nochk')
            E(f's_cmp_lg_u32 {sW}, 0'); E('s_cbranch_scc1 L_nochk')
            E(f's_lshl_b32 {sT2}, {sB}, 3'); E(f's_add_u32 {sT2}, {sT2}, 4')
            E(f'v_mov_b32 v{TMP+7}, 0')
            E(f'buffer_load_dword v{VCHK}, v{TMP+7}, {sDBG}, {sT2} offen sc1')
            if c.tailpf:
                E('s_getpc_b64 s[56:57]')
                E('L_pc2:')
                E(f'v_lshlrev_b32 v248, 3, v{VL16}')
                E(f'v_add_u32 v248, L_Olast-L_pc2, v248')
                E('v_mov_b32 v250, s57')
                E('v_add_co_u32 v249, vcc, s56, v248')
                E('v_addc_co_u32 v250, vcc, 0, v250, vcc')
                E('v_cmp_gt_u32 vcc, L_done-L_pc2, v248')
                E('s_and_saveexec_b64 s[54:55], vcc')
                E('s_cbranch_execz L_tpf_skip')
                E('v_mov_b32 v248, v249'); E('v_mov_b32 v249, v250')
                E('global_load_dword v250, v[248:249], off')
                E('L_tpf_skip:')
                E('s_mov_b64 exec, s[54:55]')
            E('L_nochk:')
        vi[24]['fill'].append(rdchk)
    g.stream(vi)
    g.flush_dma()
    st(3)
    if not c.skip_compute: o_finalize()
    if c.olast:
        E(f's_cmp_eq_u32 {sLOOP}, 3')
        E('s_cbranch_scc1 L_Olast')
        saved = (list(g.vm), list(g.lg), dict(g.slot_last_read), sid[0], g.tnext)
    oi = o_ops(seq, 25, (lambda: g.lg_drain()), (o_load_frags if not c.skip_compute else (lambda: None)))
    if not c.skip_compute: oi[0]['need'] = lambda: g.lg_wait(g.o_frag_last)
    def preg(j, h):
        k = 2 * j + h
        return 64 + 4 * k if k < 14 else 128 + 4 * (k - 14)
    def conv(j, h):
        t = 120
        L_ = []
        for k in range(2):
            for i in range(4): L_.append(f'v_accvgpr_read_b32 v{t + 4*k + i}, a{AOUT + 4*(4*j + 2*h + k) + i}')
        d = preg(j, h)
        for i in range(4): L_.append(f'v_cvt_pk_bf16_f32 v{d+i}, v{t+2*i}, v{t+2*i+1}')
        return L_
    def mk_store(j, h):
        def f():
            E(f's_add_u32 {sT2}, {sPB}, {(2*j+h)*4096}')
            E(f'buffer_store_dwordx4 {vr(preg(j,h),4)}, v{VPART}, {sWS}, {sT2} offen {c.pstflags}')
        return f
    post = []
    if not c.skip_compute and not c.olast:
        for j in range(9):
            blk = conv(j, 0) + conv(j, 1)
            pos = 16 * (j + 1) + 4
            if pos < len(oi) and c.conv_inline:
                def cb(blk=blk, j=j):
                    E(f's_cmp_lg_u32 {sLOOP}, 3'); E(f's_cbranch_scc1 L_cv{j}')
                    for t in blk[:12]: E(t)
                    if c.inline_store: mk_store(j, 0)()
                    for t in blk[12:]: E(t)
                    if c.inline_store: mk_store(j, 1)()
                    if c.inline_b:
                        E(f's_bitcmp1_b32 {sB}, 0'); E(f's_cbranch_scc0 L_cv{j}')
                        mk_store(j, 0)(); mk_store(j, 1)()
                    E(f'L_cv{j}:')
                oi[pos]['fill'].append(cb)
            else:
                post += blk
    g.stream(oi)
    g.flush_dma(); g.lg_drain()
    st(4)
    if not c.skip_dma: assert g.vm[-4*LA:] == [('K', i, True) for i in range(LA) for _ in range(4)], g.vm
    E(f's_mov_b32 {sKV}, {sKVN}')
    E(f's_add_u32 {sKVN}, {sKVN}, 131072')
    if not c.wfixed:
        E(f's_add_u32 {sWQO}, {sWQO}, 256')
        E(f's_add_u32 {sWOO}, {sWOO}, {128*1152}')
    E(f's_add_u32 {sLOOP}, {sLOOP}, 1')
    if c.throttle:
        E(f's_and_b32 {sT2}, {sB}, 1'); E(f's_lshl_b32 {sT2}, {sT2}, 4'); E(f's_add_u32 {sT2}, {sT2}, {sLOOP}')
        E(f's_cmp_eq_u32 {sT2}, 3'); E(f's_cselect_b32 {sTHR}, 1, 0')
    if c.stamps:
        E(f's_cmp_eq_u32 {sLOOP}, 3'); E('s_cbranch_scc0 L_ns3'); E('s_memrealtime s[64:65]'); E('L_ns3:')
        if c.istamps:
            for t in range(1, 5):
                E(f's_cmp_eq_u32 {sLOOP}, {t}'); E(f's_cbranch_scc0 L_is{t}'); E(f's_memrealtime s[{72+2*t}:{73+2*t}]'); E(f'L_is{t}:')
    if c.sm_in_v and c.klast:
        E(f's_cmp_lt_u32 {sLOOP}, 3')
        E('s_cbranch_scc1 L_K')
        if c.exit_at != 2:
            E(f's_cmp_eq_u32 {sLOOP}, 3')
            E('s_cbranch_scc1 L_Klast')
    else:
        E(f's_cmp_lt_u32 {sLOOP}, {4 if c.exit_at != 2 else 3}')
        E('s_cbranch_scc1 L_K')
    if c.exit_at == 2: E('s_branch L_stamps')
    E('s_branch L_exit')
    if c.sm_in_v and c.klast:
        E('L_Klast:')
        g.vm = [('K', i, False) for i in range(LA) for _ in range(4)] if 'K' not in c.skip_dma else []
        g.lg = []; g.slot_last_read = {}; g.pending = []
        st(0)
        E(f'v_mov_b32 v{VM}, 0xff800000')
        lst = [('K', i, False) for i in range(LA, 8)] + [('V', i, False) for i in range(LA)]
        g.stream(k_ops(seq, 0, {p: [lst[p]] for p in range(8)}))
        g.flush_dma(); g.lg_drain()
        if not c.skip_dma: assert g.vm[-4*LA:] == [('V', i, False) for i in range(LA) for _ in range(4)], g.vm
        E('s_branch L_V')
    if c.sm_in_v and not c.klast:
        E('L_skipq:')
        E('s_barrier')
        for i in range(LA):
            for f in g.dma_ops('V', i, False): f()
        E('s_branch L_V')
    if c.olast:
        E('L_Olast:')
        if c.wgate == 1:
            late = 2 if c.pf == 4 else 1
            E(f's_cmp_lg_u32 {sLV}, {late}'); E('s_cbranch_scc1 L_nosig')
            E(f's_cmp_lg_u32 {sW}, 0'); E('s_cbranch_scc1 L_nosig')
            E(f's_sub_u32 {sT2}, s2, {8*late}'); E(f's_lshl_b32 {sT2}, {sT2}, 7'); E(f's_add_u32 {sT2}, {sT2}, {0x1400000 + 32}')
            E(f'v_mov_b32 v{TMP+4}, 1'); E(f'v_lshlrev_b32 v{TMP+5}, 6, v{VL16}')
            E(f'v_cmp_gt_u32 vcc, {16*late}, v{VL16}')
            E('s_and_saveexec_b64 s[54:55], vcc')
            E(f'buffer_store_dword v{TMP+4}, v{TMP+5}, {sWS}, {sT2} offen sc1')
            E('s_mov_b64 exec, s[54:55]')
            E('L_nosig:')
        g.vm, g.lg, g.slot_last_read, sid[0], g.tnext = list(saved[0]), list(saved[1]), dict(saved[2]), saved[3], saved[4]
        g.pending = []
        seq_l = seq[:34]
        ol = o_ops(seq_l, 25, (lambda: g.lg_drain()), (o_load_frags if not c.skip_compute else (lambda: None)))
        if not c.skip_compute:
            ol[0]['need'] = lambda: g.lg_wait(g.o_frag_last)
            for j in range(8):
                blk = conv(j, 0) + conv(j, 1)
                lo = 16 * (j + 1) + 2
                distribute(ol, blk, lo, lo + 13)
                def stb(j=j):
                    if c.xp_notail == 2: return
                    if c.inline_store:
                        mk_store(j, 0)(); mk_store(j, 1)()
                    elif c.inline_b:
                        E(f's_bitcmp1_b32 {sB}, 0'); E(f's_cbranch_scc0 L_sb{j}')
                        mk_store(j, 0)(); mk_store(j, 1)()
                        E(f'L_sb{j}:')
                ol[lo + 13]['fill'].append(stb)
            post = conv(8, 0) + conv(8, 1)
        g.stream(ol)
        g.flush_dma(); g.lg_drain()
        st(4)
        E('s_branch L_exit')
    E('L_first_done:')
    E('s_nop 7')
    for t in q_finalize(): E(t)
    E('s_mov_b32 s88, s8'); E('s_mov_b32 s89, s9')
    E(f'v_mov_b32 v{VVS}, v{VV}')
    E(f's_add_u32 {sWQO}, {sWQO}, 256')
    E(f's_add_u32 {sKVN}, {sKVN}, 131072')
    E(f's_mov_b32 {sFIRST}, 0')
    if c.dflags:
        E(f's_cmp_lg_u32 {sW}, 0'); E('s_cbranch_scc1 L_noid')
        E(f's_lshl_b32 {sT2}, {sB}, 3'); E(f's_add_u32 {sT2}, {sT2}, 4')
        E(f'v_mov_b32 v{TMP}, 1'); E(f'v_mov_b32 v{TMP+1}, 0')
        E(f'v_cmp_eq_u32 vcc, 0, v{VL16}')
        E('s_and_saveexec_b64 s[54:55], vcc')
        E(f'buffer_atomic_add v{TMP}, v{TMP+1}, {sDBG}, {sT2} offen sc1')
        E('s_mov_b64 exec, s[54:55]')
        E('L_noid:')
    if c.stamps: E('s_memrealtime s[62:63]')
    if c.istamps: E('s_memrealtime s[72:73]')
    if c.exit_at == 1: E('s_branch L_stamps')
    E('s_branch L_K')
    E('L_exit:')
    E('s_nop 7')
    for t in post: E(t)
    def gate_code():
        E(f's_cmp_lg_u32 {sW}, 0'); E('s_cbranch_scc1 L_gate_ok')
        E(f's_lshl_b32 {sT0}, s2, 7'); E(f's_add_u32 {sT0}, {sT0}, {0x1400000 + 32}')
        E(f'v_mov_b32 v{TMP+5}, 0'); E(f's_mov_b32 {sT1}, 0')
        E('L_gate:')
        E(f'buffer_load_dword v{TMP+4}, v{TMP+5}, {sWS}, {sT0} offen sc1')
        E('s_waitcnt vmcnt(0)')
        E(f'v_readfirstlane_b32 {sT3}, v{TMP+4}')
        E(f's_cmp_eq_u32 {sT3}, 1'); E('s_cbranch_scc1 L_gate_ok')
        E('s_sleep 2')
        E(f's_add_u32 {sT1}, {sT1}, 1'); E(f's_cmp_lt_u32 {sT1}, 48'); E('s_cbranch_scc1 L_gate')
        E('L_gate_ok:')
        E('s_barrier')
    if c.xp_notail == 2:
        pass
    elif c.store_mode == 1 and not c.skip_compute:
        if c.inline_b:
            for h in range(2): mk_store(8, h)()
            E(f's_bitcmp1_b32 {sB}, 0'); E('s_cbranch_scc1 L_stored')
            if c.wgate: gate_code()
            for j in range(8):
                for h in range(2): mk_store(j, h)()
            E('L_stored:')
        else:
            if c.wgate:
                late = 2 if c.pf == 4 else 1
                E(f's_cmp_eq_u32 {sLV}, {late}'); E('s_cbranch_scc1 L_nogate')
                if c.pf == 4:
                    E(f's_cmp_ge_u32 {sB}, 30'); E('s_cbranch_scc1 L_nogate')
                gate_code()
                E('L_nogate:')
            for j in range(9):
                if c.inline_store and c.conv_inline and j < 8: continue
                for h in range(2): mk_store(j, h)()
    return g, E

def body_kvoq(g, E, c, L):
    LA = c.LA
    k_ops, q_ops, v_ops, o_ops = L['k_ops'], L['q_ops'], L['v_ops'], L['o_ops']
    exp_group, max_finish, q_finalize, distribute = L['exp_group'], L['max_finish'], L['q_finalize'], L['distribute']
    o_finalize, o_load_frags, sid = L['o_finalize'], L['o_load_frags'], L['sid']
    seq = [('K', i, False) for i in range(8)] + [('V', i, False) for i in range(8)] + [('O', i, False) for i in range(9)] + \
          [('Q', i, False) for i in range(9)] + [('K', i, True) for i in range(8)]
    def st(i):
        if c.istamps: return
        if c.stamps and not c.fstamps: E(f's_memtime s[{72+2*i}:{73+2*i}]')
        if c.stamps and c.fstamps: E(f's_memrealtime s[{72+2*i}:{73+2*i}]')
    def vpos(vi, uu): return next(i for i, o in enumerate(vi) if o['uu'] == uu)
    groups = [exp_group(uu) for uu in range(16)]
    E('L_K:')
    g.vm = [('K', i, False) for i in range(LA) for _ in range(4)]
    g.lg = []; g.slot_last_read = {}
    st(0)
    E(f'v_mov_b32 v{VM}, 0xff800000')
    g.stream(k_ops(seq, 0))
    g.flush_dma(); g.lg_drain()
    E('L_V:')
    st(2)
    vi = v_ops(seq, 8)
    vi[0]['fill'] += max_finish() + groups[0] + groups[1]
    allrest = [(uu, f) for uu in range(2, 16) for f in groups[uu]]
    lo, hi = 1, (c.sm_v_hi or vpos(vi, 15) - 3)
    for k, (uu, f) in enumerate(allrest):
        i = min(lo + (k * (hi - lo)) // len(allrest), vpos(vi, uu) - 2)
        vi[i]['fill'].append(f)
    def rdchk():
        E(f's_cmp_lg_u32 {sLOOP}, 3'); E('s_cbranch_scc1 L_nochk')
        E(f's_cmp_lg_u32 {sW}, 0'); E('s_cbranch_scc1 L_nochk')
        E(f's_lshl_b32 {sT2}, {sB}, 3'); E(f's_add_u32 {sT2}, {sT2}, 4')
        E(f'v_mov_b32 v{TMP+7}, 0')
        E(f'buffer_load_dword v{VCHK}, v{TMP+7}, {sDBG}, {sT2} offen sc1')
        E('L_nochk:')
    vi[24]['fill'].append(rdchk)
    g.stream(vi)
    g.flush_dma()
    st(3)
    o_finalize()
    E(f's_cmp_eq_u32 {sLOOP}, 3')
    E('s_cbranch_scc1 L_Olast')
    saved = (list(g.vm), list(g.lg), dict(g.slot_last_read), sid[0], g.tnext)
    oi = o_ops(seq, 16, (lambda: g.lg_drain()), o_load_frags)
    oi[0]['need'] = lambda: g.lg_wait(g.o_frag_last)
    g.stream(oi)
    g.flush_dma(); g.lg_drain()
    st(4)
    assert g.vm[-4*LA:] == [('Q', i, False) for i in range(LA) for _ in range(4)], g.vm
    E('L_Q:')
    st(1)
    g.stream(q_ops(seq, 25))
    g.flush_dma(); g.lg_drain()
    assert g.vm[-4*LA:] == [('K', i, True) for i in range(LA) for _ in range(4)], g.vm
    E('s_nop 7')
    for t in q_finalize(): E(t)
    E(f's_mov_b32 {sKV}, {sKVN}')
    E(f's_add_u32 {sKVN}, {sKVN}, 131072')
    E(f's_add_u32 {sWQO}, {sWQO}, 256')
    E(f's_cmp_lg_u32 {sFIRST}, 0')
    E('s_cbranch_scc1 L_first_done')
    E(f's_add_u32 {sWOO}, {sWOO}, {128*1152}')
    E(f's_add_u32 {sLOOP}, {sLOOP}, 1')
    if c.stamps:
        E(f's_cmp_eq_u32 {sLOOP}, 3'); E('s_cbranch_scc0 L_ns3'); E('s_memrealtime s[64:65]'); E('L_ns3:')
        if c.istamps:
            for t in range(1, 4):
                E(f's_cmp_eq_u32 {sLOOP}, {t}'); E(f's_cbranch_scc0 L_is{t}'); E(f's_memrealtime s[{72+2*t}:{73+2*t}]'); E(f'L_is{t}:')
    E('s_branch L_K')
    E('L_first_done:')
    E(f's_mov_b32 {sFIRST}, 0')
    E(f's_cmp_lg_u32 {sW}, 0'); E('s_cbranch_scc1 L_noid')
    E(f's_lshl_b32 {sT2}, {sB}, 3'); E(f's_add_u32 {sT2}, {sT2}, 4')
    E(f'v_mov_b32 v{TMP}, 1'); E(f'v_mov_b32 v{TMP+1}, 0')
    E(f'v_cmp_eq_u32 vcc, 0, v{VL16}')
    E('s_and_saveexec_b64 s[54:55], vcc')
    E(f'buffer_atomic_add v{TMP}, v{TMP+1}, {sDBG}, {sT2} offen sc1')
    E('s_mov_b64 exec, s[54:55]')
    E('L_noid:')
    if c.pf_late: g.pf_duty()
    if c.stamps: E('s_memrealtime s[62:63]')
    if c.istamps: E('s_memrealtime s[72:73]')
    E('s_branch L_K')
    def preg(j, h):
        k = 2 * j + h
        return 64 + 4 * k if k < 14 else 128 + 4 * (k - 14)
    def conv(j, h):
        t = 120; L_ = []
        for k in range(2):
            for i in range(4): L_.append(f'v_accvgpr_read_b32 v{t + 4*k + i}, a{AOUT + 4*(4*j + 2*h + k) + i}')
        d = preg(j, h)
        for i in range(4): L_.append(f'v_cvt_pk_bf16_f32 v{d+i}, v{t+2*i}, v{t+2*i+1}')
        return L_
    def mk_store(j, h):
        E(f's_add_u32 {sT2}, {sPB}, {(2*j+h)*4096}')
        E(f'buffer_store_dwordx4 {vr(preg(j,h),4)}, v{VPART}, {sWS}, {sT2} offen {c.pstflags}')
    E('L_Olast:')
    late = 1
    E(f's_cmp_lg_u32 {sLV}, {late}'); E('s_cbranch_scc1 L_nosig')
    E(f's_cmp_lg_u32 {sW}, 0'); E('s_cbranch_scc1 L_nosig')
    E(f's_sub_u32 {sT2}, s2, {8*late}'); E(f's_lshl_b32 {sT2}, {sT2}, 7'); E(f's_add_u32 {sT2}, {sT2}, {0x1400000 + 32}')
    E(f'v_mov_b32 v{TMP+4}, 1'); E(f'v_lshlrev_b32 v{TMP+5}, 6, v{VL16}')
    E(f'v_cmp_gt_u32 vcc, {16*late}, v{VL16}')
    E('s_and_saveexec_b64 s[54:55], vcc')
    E(f'buffer_store_dword v{TMP+4}, v{TMP+5}, {sWS}, {sT2} offen sc1')
    E('s_mov_b64 exec, s[54:55]')
    E('L_nosig:')
    g.vm, g.lg, g.slot_last_read, sid[0], g.tnext = list(saved[0]), list(saved[1]), dict(saved[2]), saved[3], saved[4]
    g.pending = []
    ol = o_ops(seq[:25], 16, (lambda: g.lg_drain()), o_load_frags)
    ol[0]['need'] = lambda: g.lg_wait(g.o_frag_last)
    for j in range(8):
        distribute(ol, conv(j, 0) + conv(j, 1), 16 * (j + 1) + 2, 16 * (j + 1) + 15)
        if c.inline_b:
            def stb(j=j):
                E(f's_cmp_lg_u32 {sLV}, {late}'); E(f's_cbranch_scc1 L_sb{j}')
                mk_store(j, 0); mk_store(j, 1)
                E(f'L_sb{j}:')
            ol[16 * (j + 1) + 15]['fill'].append(stb)
    g.stream(ol)
    g.flush_dma(); g.lg_drain()
    st(4)
    E('s_nop 7')
    for t in conv(8, 0) + conv(8, 1): E(t)
    E(f's_cmp_eq_u32 {sLV}, {late}'); E('s_cbranch_scc1 L_nogate')
    E(f's_cmp_lg_u32 {sW}, 0'); E('s_cbranch_scc1 L_gate_ok')
    E(f's_lshl_b32 {sT0}, s2, 7'); E(f's_add_u32 {sT0}, {sT0}, {0x1400000 + 32}')
    E(f'v_mov_b32 v{TMP+5}, 0'); E(f's_mov_b32 {sT1}, 0')
    E('L_gate:')
    E(f'buffer_load_dword v{TMP+4}, v{TMP+5}, {sWS}, {sT0} offen sc1')
    E('s_waitcnt vmcnt(0)')
    E(f'v_readfirstlane_b32 {sT3}, v{TMP+4}')
    E(f's_cmp_eq_u32 {sT3}, 1'); E('s_cbranch_scc1 L_gate_ok')
    E('s_sleep 2')
    E(f's_add_u32 {sT1}, {sT1}, 1'); E(f's_cmp_lt_u32 {sT1}, 48'); E('s_cbranch_scc1 L_gate')
    E('L_gate_ok:')
    E('s_barrier')
    E('L_nogate:')
    if c.inline_b:
        mk_store(8, 0); mk_store(8, 1)
        E(f's_cmp_eq_u32 {sLV}, {late}'); E('s_cbranch_scc1 L_stored')
        for j in range(8):
            for h in range(2): mk_store(j, h)
        E('L_stored:')
    else:
        for j in range(9):
            for h in range(2): mk_store(j, h)
    return g, E

def reduce_code(E, c):
    E(f's_mul_i32 {sT0}, {sJ}, 9')
    E(f's_add_u32 {sT0}, {sT0}, {sW}')
    E(f's_lshl_b32 {sT1}, {sB}, 3')
    E(f's_mul_i32 {sT1}, {sT1}, {72*1024}')
    fl = '' if c.two_kernel else 'sc1'
    def load_piece(k):
        E(f's_add_u32 {sT2}, {sT0}, {4*k}')
        E(f's_lshl_b32 {sT2}, {sT2}, 10')
        E(f's_add_u32 {sT2}, {sT2}, {sT1}')
        for src in range(8):
            E(f'buffer_load_dwordx4 {vr(32*k + 4*src, 4)}, v{VL16}, {sWS}, {sT2} offen {fl}')
            if src < 7: E(f's_add_u32 {sT2}, {sT2}, {72*1024}')
    def sum_store(k):
        b = 32 * k
        if c.dot_reduce:
            for i in range(8): E(f'v_mov_b32 v{100+i}, 0')
            for src in range(8):
                for d in range(4):
                    E(f'v_dot2c_f32_bf16 v{100+2*d}, v{b+4*src+d}, v112')
                    E(f'v_dot2c_f32_bf16 v{101+2*d}, v{b+4*src+d}, v113')
            E('s_nop 2')
        else:
            for d in range(4):
                E(f'v_lshlrev_b32 v{100+2*d}, 16, v{b+d}')
                E(f'v_and_b32 v{101+2*d}, 0xffff0000, v{b+d}')
            for src in range(1, 8):
                for d in range(4):
                    E(f'v_lshlrev_b32 v{108+2*d}, 16, v{b+4*src+d}')
                    E(f'v_and_b32 v{109+2*d}, 0xffff0000, v{b+4*src+d}')
                for i in range(8): E(f'v_add_f32 v{100+i}, v{100+i}, v{108+i}')
        for d in range(4): E(f'v_cvt_pk_bf16_f32 v{116+4*k+d}, v{100+2*d}, v{101+2*d}')
        E(f's_add_u32 {sT2}, {sT0}, {4*k}')
        E(f's_lshr_b32 {sT3}, {sT2}, 3')
        E(f's_lshl_b32 {sT3}, {sT3}, 2')
        E(f's_and_b32 s56, {sT2}, 3')
        E(f's_add_u32 {sT3}, {sT3}, s56')
        E(f's_lshl_b32 {sT3}, {sT3}, 5')
        E(f's_lshr_b32 s56, {sT2}, 2')
        E(f's_and_b32 s56, s56, 1')
        E(f's_lshl_b32 s56, s56, 5')
        E(f's_lshl_b32 s57, {sB}, 6')
        E(f's_add_u32 s56, s56, s57')
        E(f's_mul_i32 s56, s56, 1152')
        E(f's_add_u32 s56, s56, {sT3}')
        E(f'buffer_store_dwordx2 {vr(116+4*k,2)}, v{VOUT}, {sOUT}, s56 offen {c.outflags}')
        E(f's_add_u32 s56, s56, {16*1152}')
        E(f'buffer_store_dwordx2 {vr(118+4*k,2)}, v{VOUT}, {sOUT}, s56 offen {c.outflags}')
    E('v_mov_b32 v112, 0x00003f80'); E('v_mov_b32 v113, 0x3f800000')
    load_piece(0); load_piece(1)
    E(f's_cmp_lg_u32 {sW}, 0')
    E('s_cbranch_scc1 L_two')
    load_piece(2)
    E('L_two:')
    E('s_waitcnt vmcnt(8)')
    sum_store(0)
    E('s_waitcnt vmcnt(2)')
    sum_store(1)
    E(f's_cmp_lg_u32 {sW}, 0')
    E('s_cbranch_scc1 L_red_done')
    sum_store(2)
    E('L_red_done:')

def reduce_code2(E, c):
    E(f's_lshl_b32 {sT1}, {sB}, 3')
    E(f's_mul_i32 {sT1}, {sT1}, {72*1024}')
    E('v_mov_b32 v112, 0x00003f80'); E('v_mov_b32 v113, 0x3f800000')
    E(f'v_lshrrev_b32 v114, 4, v{VL16}')
    E('v_and_b32 v115, 15, v114')
    E('v_lshrrev_b32 v116, 4, v114')
    E('v_and_b32 v117, 1, v116')
    E('v_lshl_add_u32 v115, v117, 4, v115')
    E('v_lshrrev_b32 v116, 1, v116')
    E(f's_lshl_b32 {sT2}, {sW}, 1')
    E(f'v_add_u32 v116, {sT2}, v116')
    E('v_and_b32 v117, 7, v115')
    E('v_xor_b32 v116, v116, v117')
    E('v_lshlrev_b32 v116, 4, v116')
    E('v_lshl_add_u32 v118, v115, 7, v116')
    E('v_lshrrev_b32 v115, 3, v114')
    E(f's_lshl_b32 {sT2}, {sW}, 3')
    E(f'v_add_u32 v115, {sT2}, v115')
    E('v_and_b32 v116, 7, v114')
    E('v_and_b32 v117, 7, v115')
    E('v_xor_b32 v117, v117, v116')
    E('v_lshlrev_b32 v117, 4, v117')
    E('v_lshl_add_u32 v119, v115, 7, v117')
    E('v_mul_u32_u24 v115, 1152, v115')
    E('v_lshl_add_u32 v120, v116, 4, v115')
    def grp(k):
        if k < 2: E(f's_add_u32 {sT0}, {sJ}, {8*k}')
        else: E(f's_add_u32 {sT0}, {sJ}, 16')
    def load_piece(k):
        grp(k)
        E(f's_lshl_b32 {sT2}, {sT0}, 2'); E(f's_add_u32 {sT2}, {sT2}, {sW}')
        E(f's_lshl_b32 {sT2}, {sT2}, 10')
        E(f's_add_u32 {sT2}, {sT2}, {sT1}')
        for src in range(8):
            E(f'buffer_load_dwordx4 {vr(32*k + 4*src, 4)}, v{VL16}, {sWS}, {sT2} offen {c.pldflags}')
            if src < 7: E(f's_add_u32 {sT2}, {sT2}, {72*1024}')
    def sum_piece(k):
        b = 32 * k; r = 124 + 0
        for i in range(8): E(f'v_mov_b32 v{100+i}, 0')
        for src in range(8):
            for d in range(4):
                E(f'v_dot2c_f32_bf16 v{100+2*d}, v{b+4*src+d}, v112')
                E(f'v_dot2c_f32_bf16 v{101+2*d}, v{b+4*src+d}, v113')
        E('s_nop 2')
        for d in range(4): E(f'v_cvt_pk_bf16_f32 v{r+d}, v{100+2*d}, v{101+2*d}')
        E(f'v_permlane16_swap_b32 v{r}, v{r+2}')
        E(f'v_permlane16_swap_b32 v{r+1}, v{r+3}')
        E(f'ds_write_b128 v118, {vr(r,4)} offset:{k*4096}')
    def store_rows(k):
        grp(k)
        E(f's_and_b32 {sT3}, {sT0}, 1'); E(f's_lshl_b32 {sT3}, {sT3}, 5')
        E(f's_lshl_b32 s57, {sB}, 6'); E(f's_add_u32 {sT3}, {sT3}, s57'); E(f's_mul_i32 {sT3}, {sT3}, 1152')
        E(f's_lshr_b32 s56, {sT0}, 1'); E(f's_lshl_b32 s56, s56, 7'); E(f's_add_u32 {sT3}, {sT3}, s56')
        E(f'buffer_store_dwordx4 {vr(4*k,4)}, v120, {sOUT}, {sT3} offen {c.outflags}'.rstrip())
    load_piece(0); load_piece(1)
    E(f's_cmp_ge_u32 {sJ}, 2'); E('s_cbranch_scc1 L_r2a')
    load_piece(2)
    E('L_r2a:')
    E('s_waitcnt vmcnt(8)')
    sum_piece(0)
    E('s_waitcnt vmcnt(0)')
    sum_piece(1)
    E(f's_cmp_ge_u32 {sJ}, 2'); E('s_cbranch_scc1 L_r2b')
    sum_piece(2)
    E('L_r2b:')
    E('s_waitcnt lgkmcnt(0)')
    E('s_barrier')
    for k in range(3): E(f'ds_read_b128 {vr(4*k,4)}, v119 offset:{k*4096}')
    E('s_waitcnt lgkmcnt(0)')
    store_rows(0); store_rows(1)
    E(f's_cmp_ge_u32 {sJ}, 2'); E('s_cbranch_scc1 L_r2c')
    store_rows(2)
    E('L_r2c:')

def finish(g, E, c):
    E('s_waitcnt vmcnt(0)')
    if c.stamps: E('s_memrealtime s[66:67]')
    if not c.two_kernel and c.xp_notail != 2:
        E('s_barrier')
        E(f's_lshl_b32 {sT0}, {sB}, 3')
        E(f's_cmp_lg_u32 {sW}, 0')
        E('s_cbranch_scc1 ' + ('L_dopoll' if c.allpoll else 'L_wait_done'))
        E(f'v_mov_b32 v{TMP}, 1')
        E(f'v_mov_b32 v{TMP+1}, 0')
        if c.dflags:
            E(f's_add_u32 {sT0}, {sT0}, 4')
            E(f's_mov_b32 {sT1}, 0')
            E('L_chk:')
            E(f'v_readfirstlane_b32 {sT2}, v{VCHK}')
            E(f's_cmp_ge_u32 {sT2}, 8'); E('s_cbranch_scc1 L_chk_ok')
            E(f'buffer_load_dword v{VCHK}, v{TMP+1}, {sDBG}, {sT0} offen sc1')
            E('s_waitcnt vmcnt(0)')
            E(f's_add_u32 {sT1}, {sT1}, 1'); E(f's_cmp_lt_u32 {sT1}, 0x40000'); E('s_cbranch_scc1 L_chk')
            E('L_chk_ok:')
            E(f's_lshl_b32 {sT3}, {sB}, 10'); E(f's_lshl_b32 {sT2}, {sJ}, 2'); E(f's_add_u32 {sT3}, {sT3}, {sT2}'); E(f's_add_u32 {sT3}, {sT3}, 0x1400000')
            E(f'v_lshlrev_b32 v{TMP+1}, 3, v{VL16}')
            E(f'v_cmp_gt_u32 vcc, 128, v{VL16}')
            E('s_and_saveexec_b64 s[54:55], vcc')
            E(f'buffer_store_dword v{TMP}, v{TMP+1}, {sWS}, {sT3} offen sc1')
            E('s_mov_b64 exec, s[54:55]')
            E('L_dopoll:')
            E(f's_lshl_b32 {sT0}, s2, 7'); E(f's_add_u32 {sT0}, {sT0}, 0x1400000')
            E(f'v_lshrrev_b32 v{TMP+1}, 2, v{VL16}')
            E(f'v_and_b32 v{TMP+1}, 31, v{TMP+1}')
            E(f's_mov_b32 {sT1}, 0')
            E('L_poll:')
            E(f'buffer_load_dword v{TMP+2}, v{TMP+1}, {sWS}, {sT0} offen sc1')
            E('s_waitcnt vmcnt(0)')
            E(f'v_cmp_eq_u32 vcc, 1, v{TMP+2}')
            E(f's_cmp_eq_u64 vcc, -1')
            E('s_cbranch_scc1 L_wait_done')
            E(f's_sleep 1')
            E(f's_add_u32 {sT1}, {sT1}, 1')
            E(f's_cmp_lt_u32 {sT1}, 0x40000')
            E('s_cbranch_scc1 L_poll')
        elif c.golines:
            E(f'v_cmp_eq_u32 vcc, 0, v{VL16}')
            E('s_and_saveexec_b64 s[54:55], vcc')
            E(f'buffer_atomic_add v{TMP}, v{TMP+1}, {sDBG}, {sT0} offen sc0 sc1')
            E('s_waitcnt vmcnt(0)')
            E('s_mov_b64 exec, s[54:55]')
            E(f'v_readfirstlane_b32 {sT2}, v{TMP}')
            E(f's_and_b32 {sT2}, {sT2}, 7')
            E(f's_cmp_eq_u32 {sT2}, 7')
            E('s_cbranch_scc0 L_notlast')
            E(f's_lshl_b32 {sT3}, {sB}, 10'); E(f's_add_u32 {sT3}, {sT3}, 0x1400000')
            E(f'v_lshlrev_b32 v{TMP+1}, 3, v{VL16}')
            E(f'v_mov_b32 v{TMP}, 1')
            E(f'v_cmp_gt_u32 vcc, 128, v{VL16}')
            E('s_and_saveexec_b64 s[54:55], vcc')
            E(f'buffer_store_dword v{TMP}, v{TMP+1}, {sWS}, {sT3} offen sc1')
            E('s_mov_b64 exec, s[54:55]')
            E('s_branch L_wait_done')
            E('L_notlast:')
            E(f's_lshl_b32 {sT0}, s2, 7'); E(f's_add_u32 {sT0}, {sT0}, 0x1400000')
            E(f'v_mov_b32 v{TMP+1}, 0')
            E(f's_mov_b32 {sT1}, 0')
            E('L_poll:')
            E(f'buffer_load_dword v{TMP+2}, v{TMP+1}, {sWS}, {sT0} offen sc1')
            E('s_waitcnt vmcnt(0)')
            E(f'v_readfirstlane_b32 {sT2}, v{TMP+2}')
            E(f's_cmp_eq_u32 {sT2}, 1')
            E('s_cbranch_scc1 L_wait_done')
            E(f's_sleep 2')
            E(f's_add_u32 {sT1}, {sT1}, 1')
            E(f's_cmp_lt_u32 {sT1}, 0x40000')
            E('s_cbranch_scc1 L_poll')
        else:
            E(f'v_cmp_eq_u32 vcc, 0, v{VL16}')
            E('s_and_saveexec_b64 s[54:55], vcc')
            E(f'buffer_atomic_add v{TMP}, v{TMP+1}, {sDBG}, {sT0} offen sc1')
            E('s_mov_b64 exec, s[54:55]')
            E(f's_mov_b32 {sT1}, 0')
            E('L_poll:')
            E(f'buffer_load_dword v{TMP+2}, v{TMP+1}, {sDBG}, {sT0} offen sc1')
            E('s_waitcnt vmcnt(0)')
            E(f'v_readfirstlane_b32 {sT2}, v{TMP+2}')
            E(f's_cmp_ge_u32 {sT2}, 8')
            E('s_cbranch_scc1 L_wait_done')
            E(f's_sleep {min(c.poll_sleep, 8)}')
            E(f's_add_u32 {sT1}, {sT1}, 1')
            E(f's_cmp_lt_u32 {sT1}, 0x40000')
            E('s_cbranch_scc1 L_poll')
        E('L_wait_done:')
        if not c.allpoll: E('s_barrier')
        if c.stamps: E('s_memrealtime s[68:69]')
        if not c.xp_notail: (reduce_code2 if c.fullline else reduce_code)(E, c)
    if c.stamps:
        E('L_stamps:')
        E('s_waitcnt vmcnt(0)')
        E('s_memrealtime s[70:71]')
        E('s_waitcnt lgkmcnt(0)')
        for i in range(12): E(f'v_mov_b32 v{i}, s{60+i}')
        for i in range(4): E(f'v_mov_b32 v{12+i}, s{72+2*i}')
        E('v_mov_b32 v16, s80'); E('v_mov_b32 v17, s82'); E('v_mov_b32 v18, s84')
        E(f's_lshl_b32 {sT0}, s2, 2'); E(f's_add_u32 {sT0}, {sT0}, {sW}'); E(f's_lshl_b32 {sT0}, {sT0}, 7'); E(f's_add_u32 {sT0}, {sT0}, 0x10000000')
        if c.bstamps:
            E(f's_lshl_b32 {sT1}, s2, 2'); E(f's_add_u32 {sT1}, {sT1}, {sW}'); E(f's_lshl_b32 {sT1}, {sT1}, 9'); E(f's_add_u32 {sT1}, {sT1}, 0x11000000')
            E(f'v_lshrrev_b32 v21, 2, v{VL16}')
            E(f'buffer_store_dword v246, v21, {sWS}, {sT1} offen')
            E(f'buffer_store_dword v247, v21, {sWS}, {sT1} offen offset:256')
        E(f'v_cmp_eq_u32 vcc, 0, v{VL16}')
        E('s_and_saveexec_b64 s[54:55], vcc')
        E('v_mov_b32 v20, 0')
        for i in range(4): E(f'buffer_store_dwordx4 {vr(4*i,4)}, v20, {sWS}, {sT0} offen offset:{16*i}')
        E(f'buffer_store_dwordx3 v[16:18], v20, {sWS}, {sT0} offen offset:64')
    if c.dbgspan:
        E('s_waitcnt vmcnt(0)')
        E('s_memrealtime s[70:71]')
        E('s_waitcnt lgkmcnt(0)')
        E(f's_cmp_lg_u32 {sW}, 0'); E('s_cbranch_scc1 L_done')
        E('s_not_b32 s60, s60')
        E('v_mov_b32 v1, s60'); E('v_mov_b32 v2, s70'); E('v_mov_b32 v3, 0')
        E(f'v_cmp_eq_u32 vcc, 0, v{VL16}')
        E('s_and_saveexec_b64 s[54:55], vcc')
        E(f'buffer_atomic_umax v1, v3, {sDBG}, 0 offen offset:0 sc1')
        E(f'buffer_atomic_umax v2, v3, {sDBG}, 0 offen offset:8 sc1')
    E('L_done:')
    E('s_endpgm')

DESC = '''.section .rodata,"a"
.p2align 6
.amdhsa_kernel {name}
  .amdhsa_next_free_vgpr {vg}
  .amdhsa_next_free_sgpr 100
  .amdhsa_accum_offset {acc}
  .amdhsa_group_segment_fixed_size 0
  .amdhsa_kernarg_size 64
  .amdhsa_user_sgpr_count 2
  .amdhsa_user_sgpr_kernarg_segment_ptr 1
  .amdhsa_system_sgpr_workgroup_id_x 1
.end_amdhsa_kernel
'''
def gen(cfg=None):
    c = cfg or Cfg()
    g, E = build(c)
    finish(g, E, c)
    body = g.a.finalize()
    head = f'''; Fused MHA block for gfx950: q-projection + attention over the cached K/V + out-projection, one launch.
; Everything streamed goes through a 9-slot x 16 KB LDS ring filled by LDS-DMA (buffer_load ... lds), five slots ahead, one
; barrier per slot; bank-conflict swizzles are applied on the source addresses.  Per head:
; stores until their partner has received its last V tile (writes slow concurrent HBM reads down).
; @launch grid=(256,1,1) block=(256,1,1) lds=163840
.amdgcn_target "amdgcn-amd-amdhsa--gfx950"
.text
.globl {KNAME}
.p2align 8
.type {KNAME},@function
{KNAME}:
'''
    return head + body + DESC.format(name=KNAME, vg=512, acc=256), g

if __name__ == '__main__':
    s, g = gen()
    out = sys.argv[1] if len(sys.argv) > 1 else 'standalone__mha_block_cached__near_ridge.s'
    open(out, 'w').write(s)
    print('instructions', len(g.a.ins), 'nops inserted', g.a.nnop, 'bytes', len(s))
```

```python
import sys
sys.path.insert(0, 'work')
import importlib
import gen4 as gen
def mk(name, **kw):
    c = gen.Cfg()
    for k, v in kw.items():
        assert hasattr(c, k), k
        setattr(c, k, v)
    s, g = gen.gen(c)
    open(f'work/{name}.s', 'w').write(s)
    print(name, 'ins', len(g.a.ins), 'nops', g.a.nnop)
if __name__ == '__main__':
    kw = {}
    for a in sys.argv[2:]:
        k, v = a.split('=', 1)
        try: v = eval(v)
        except Exception: pass
        kw[k] = v
    mk(sys.argv[1], **kw)
```

```python
import sys, struct, math
sys.path.insert(0, 'work')
from asmlib import Asm

KNAME = "standalone__mha_block_cached__near_ridge_kernel"
MF = "v_mfma_f32_16x16x32_bf16"
SLOT = 16384
XBUF = 9 * SLOT

S0 = 0; QN = 128; T0 = 160; NT = 12
VK, VV = 208, 209
VWQ = 210; VWO = 214
POOL = 218
KA0, VB0, QC0, OD0 = 226, 227, 228, 229
VM, VMC = 230, 231
TMP = 232
VL16 = 240; VPART = 241; VOA = 242; VOUT = 243
AOUT = 0; AX = 144; AO = 216; AL = 248; AONE = 252
sK, sV, sWQ, sWO, sX, sWS, sOUT, sDBG = 's[4:7]', 's[8:11]', 's[12:15]', 's[16:19]', 's[20:23]', 's[24:27]', 's[28:31]', 's[32:35]'
sW, sW4K, sB, sJ = 's36', 's37', 's38', 's39'
sKV, sKVN, sWQO, sWOO, sLOOP, sC = 's40', 's41', 's42', 's43', 's44', 's45'
sODD = 's[46:47]'
sT0, sT1, sT2, sT3 = 's48', 's49', 's50', 's51'
sPB = 's52'
sVS = 's[88:91]'
sFIRST = 's53'
VVS = 244
sLV = 's86'
sTHR = 's87'
ROT0 = 92
VCHK = 245

def vr(a, n=1): return f'v{a}' if n == 1 else f'v[{a}:{a+n-1}]'
def ar(a, n=1): return f'a{a}' if n == 1 else f'a[{a}:{a+n-1}]'

class Cfg:
    LA = 5
    kflags = None; vflags = None
    kvflags = 'nt'; wflags = ''; xflags = ''; pfflags = ''
    ra_b = 5; ra_t = 4; ra_o = 2
    pairwait = True
    q_groups = 10
    stamps = False
    skip_dma = ''; skip_compute = False; wfixed = False
    pf = 2; pf_b = 20; pf_mask = 1
    store_mode = 1
    poll_sleep = 16
    exit_at = 0
    k_early = 0
    two_kernel = False
    tlbwarm = False
    conv_inline = True
    codepf = True
    sig_at = 0
    chain_kv = True
    pf_first = False
    pf_late = False
    order = 'KVOQ'
    allpoll = False
    strict_reads = True
    pstflags = 'sc1'; pldflags = 'sc1'
    tailpf = False
    late_setup = True
    fullline = True
    shift = 0
    align = 0
    throttle = 0
    xorder = 1
    xdirect = True
    wgate = 1
    xp_nox = False
    xp_notail = 0
    pairbar = False
    sm_v_hi = 0
    olast = True
    klast = False
    dma_early = False
    bstamps = False
    dbgspan = False
    rot = 0
    xp_noexp = False
    xp_noq = False
    xp_halfv = False
    sm_in_v = True
    inline_store = False
    inline_b = False
    dflags = True
    dot_reduce = True
    outflags = ''
    istamps = False
    pf_first = False
    pf_wait = True
    pf_depth = 2
    golines = True
    fstamps = False
    sm_lo = 48
    sm_vhi = 32

RING_A = {'K': list(range(8)), 'Q': [8] + list(range(8)), 'V': list(range(8)), 'O': [8] + list(range(8))}
RING_B = {'K': list(range(8)), 'V': [8] + list(range(7)), 'O': [7, 8] + list(range(7)), 'Q': [7, 8] + list(range(7))}
RING = dict(RING_A)

class G:
    def __init__(self, cfg):
        self.c = cfg; self.a = Asm()
        self.vm = []; self.lg = []; self.lgid = 0; self.tnext = 0; self.uid = 0
        self.slot_last_read = {}; self.pending = []; self.bk = 0
    def E(self, t): self.a(t)
    def vm_issue(self, tag): self.vm.append(tag)
    def vm_wait(self, pred):
        idx = [i for i, t in enumerate(self.vm) if pred(t)]
        if not idx: return
        n = min(len(self.vm) - 1 - max(idx), 63)
        self.E(f's_waitcnt vmcnt({n})')
        self.vm = self.vm[len(self.vm) - n:] if n else []
    def lg_issue(self):
        self.lgid += 1; self.lg.append(self.lgid); return self.lgid
    def lg_wait(self, i):
        if i not in self.lg: return
        n = min(len(self.lg) - 1 - self.lg.index(i), 15)
        self.E(f's_waitcnt lgkmcnt({n})')
        self.lg = self.lg[len(self.lg) - n:] if n else []
    def lg_drain(self):
        if self.lg: self.E('s_waitcnt lgkmcnt(0)'); self.lg = []

    def dma_ops(self, kind, idx, nxt, ring=None):
        c = self.c
        if ring is None: ring = RING[kind][idx]
        base = ring * SLOT
        if kind in ('K', 'V'):
            srd = sK if kind == 'K' else sVS
            voff = [VK if kind == 'K' else VVS] * 4
            sb = sKVN if nxt else sKV; so = idx * SLOT; fl = c.kvflags
            if kind == 'K' and c.kflags is not None: fl = c.kflags
            if kind == 'V' and c.vflags is not None: fl = c.vflags
        elif kind == 'Q':
            srd = sWQ; voff = [VWQ + p for p in range(4)]; sb = sWQO; so = idx * 64 * 8192; fl = c.wflags
        else:
            srd = sWO; voff = [VWO + p for p in range(4)]; sb = sWOO; so = idx * 128; fl = c.wflags
        tag = (kind, idx, nxt)
        st = sT0 if (self.uid & 1) == 0 else sT1
        self.uid += 1
        if kind in ('K', 'V') and c.rot: so = f's{64 + 0 + idx}' if False else f's{ROT0 + idx}'
        def piece(p):
            def f():
                if p == 0:
                    self.E(f's_add_u32 m0, {sW4K}, {base}')
                    self.E(f's_add_u32 {st}, {sb}, {so}')
                off = f' offset:{p*1024}' if p else ''
                if kind not in c.skip_dma:
                    self.E(f'buffer_load_dwordx4 {vr(voff[p])}, {srd}, {st} offen{off} {fl} lds'.replace('  ', ' '))
                    self.vm_issue(tag)
            return f
        return [piece(p) for p in range(4)]
    def flush_dma(self, k=99):
        while self.pending and k > 0:
            self.pending.pop(0)(); k -= 1
    def slot_sync(self, sid, tag, issue, extra=None):
        lr = self.slot_last_read.get(sid - 2)
        if lr is not None: self.lg_wait(lr)
        if extra: extra()
        if self.c.bstamps:
            k = self.bk; self.bk += 1
            self.E(f's_memtime s[{92 + 2*(k&1)}:{93 + 2*(k&1)}]')
        self.vm_wait(lambda t: t == tag)
        if self.c.throttle and tag[0] in 'KV':
            self.thr = getattr(self, 'thr', 0) + 1
            self.E(f's_cmp_eq_u32 {sTHR}, 0'); self.E(f's_cbranch_scc1 L_thr{self.thr}')
            self.E(f's_waitcnt vmcnt({self.c.throttle})')
            self.E(f'L_thr{self.thr}:')
        self.E('s_barrier')
        if self.c.bstamps:
            self.E(f's_memtime s[{96 + 2*(k&1)}:{97 + 2*(k&1)}]')
            if k > 0:
                self.E(f'v_writelane_b32 v246, s{92 + 2*((k-1)&1)}, {(k-1) % 64}')
                self.E(f'v_writelane_b32 v247, s{96 + 2*((k-1)&1)}, {(k-1) % 64}')
        for it in issue: self.pending += self.dma_ops(*it)

    def stream(self, ops):
        frags = []
        for i, o in enumerate(ops):
            if o.get('frag'):
                o['fi'] = len(frags); frags.append(o['frag'])
            else:
                o['fi'] = len(frags) - 1 if o.get('mf') and o.get('usefrag', True) else None
        rq = []
        for fi, f in enumerate(frags):
            for k in range(len(f['reads'])): rq.append((fi, k))
        rp = 0
        skip = self.c.skip_compute
        def issue_read():
            nonlocal rp
            fi, k = rq[rp]; f = frags[fi]
            if k == 0:
                if f.get('pre'): f['pre']()
                f['T'] = T0 + 4 * (self.tnext % NT); self.tnext += 1
            tmpl, w = f['reads'][k]
            if not skip:
                d = f['T'] + (2 * k if w == 2 else 0)
                self.E(tmpl.format(d=vr(d, w)))
                f['last'] = self.lg_issue()
                if f.get('slot') is not None: self.slot_last_read[f['slot']] = f['last']
            rp += 1
        for i, o in enumerate(ops):
            cur = o['fi'] if o['fi'] is not None else -1
            if o.get('dma'): self.flush_dma(o['dma'])
            if cur >= 0:
                ra = frags[cur].get('ra', 6)
            else:
                ra = 0
            target = cur + ra
            base = o.get('maxr', 2)
            n = 0
            while rp < len(rq) and (rq[rp][0] <= cur or (rq[rp][0] <= target and len(self.lg) < 14 and
                                    (i == 0 or n < base or (n < base + 1 and (not self.c.strict_reads or rq[rp][0] < target - 1)) ))):
                issue_read(); n += 1
            if o.get('need'): o['need']()
            if cur >= 0 and o.get('mf') and not skip:
                f = frags[cur]
                if f['last'] in self.lg:
                    tgt = f['last']
                    if self.c.pairwait and cur + 1 < len(frags) and frags[cur + 1].get('last') in self.lg and frags[cur + 1].get('slot') is not None:
                        tgt = frags[cur + 1]['last']
                    self.lg_wait(tgt)
            for f in o.get('fill', []):
                if callable(f): f()
                elif not skip: self.E(f)
            if o.get('mf') and not skip:
                self.E(o['mf'](frags[cur]['T'] if cur >= 0 else None))
        assert rp == len(rq)

def build(cfg):
    RING.clear(); RING.update(RING_B if cfg.order == 'KVOQ' else RING_A)
    g = G(cfg); E = g.E; c = cfg
    LA = c.LA
    if c.stamps or c.dbgspan: E('s_memrealtime s[60:61]')
    E('s_cmp_ge_u32 s2, 256')
    E('s_cbranch_scc1 L_done')
    for dst, off in ((20, 0), (12, 24), (4, 8), (8, 16), (16, 32), (28, 40), (32, 48), (24, 56)):
        E(f's_load_dwordx2 s[{dst}:{dst+1}], s[0:1], {off}')
    if c.codepf:
        E('s_getpc_b64 s[56:57]')
        E('L_pc:')
        E('v_lshlrev_b32 v113, 7, v0')
        E('v_mov_b32 v115, s57')
        E('v_add_co_u32 v114, vcc, s56, v113')
        E('v_addc_co_u32 v115, vcc, 0, v115, vcc')
        E('v_cmp_gt_u32 vcc, L_done-L_pc, v113')
        E('s_and_saveexec_b64 s[54:55], vcc')
        E('s_cbranch_execz L_cpf_skip')
        E('global_load_dword v116, v[114:115], off')
        E('L_cpf_skip:')
        E('s_mov_b64 exec, s[54:55]')
    late = []
    def EL(t):
        if c.late_setup: late.append(t)
        else: E(t)
    L, C_, G_, RR, CC, POS, X, Y = 100, 101, 102, 103, 104, 106, 107, 108
    E(f'v_and_b32 v{L}, 63, v0')
    E(f'v_lshrrev_b32 v{X}, 6, v0')
    E(f'v_readfirstlane_b32 {sW}, v{X}')
    E(f'v_and_b32 v{C_}, 15, v{L}')
    E(f'v_lshrrev_b32 v{G_}, 4, v{L}')
    EL(f'v_lshrrev_b32 v{RR}, 2, v{L}')
    EL(f'v_and_b32 v{RR}, 3, v{RR}')
    EL(f'v_and_b32 v{CC}, 3, v{L}')
    E(f's_lshl_b32 {sW4K}, {sW}, 12')
    E(f's_and_b32 {sJ}, s2, 7')
    E(f's_lshr_b32 {sB}, s2, 3')
    E(f'v_lshlrev_b32 v{VL16}, 4, v{L}')
    EL(f's_lshl_b32 {sT0}, {sW}, 2')
    EL(f'v_add_u32 v{X}, {sT0}, v{G_}')
    EL(f'v_xor_b32 v{X}, v{X}, v{C_}')
    EL(f'v_lshlrev_b32 v{X}, 4, v{X}')
    EL(f'v_lshl_add_u32 v{X}, v{G_}, 8, v{X}')
    EL(f'v_add_u32 v{VK}, {sW4K}, v{X}')
    E(f's_and_b32 {sT1}, {sW}, 1')
    E(f's_lshl_b32 {sT1}, {sT1}, 3')
    EL(f'v_lshlrev_b32 v{X}, 1, v{G_}')
    EL(f'v_or_b32 v{X}, {sT1}, v{X}')
    EL(f'v_xor_b32 v{X}, v{X}, v{C_}')
    EL(f'v_lshlrev_b32 v{X}, 4, v{X}')
    EL(f'v_lshl_add_u32 v{X}, v{G_}, 8, v{X}')
    EL(f'v_add_u32 v{VV}, {sW4K}, v{X}')
    E(f'v_and_b32 v{X}, 1, v{G_}')
    E(f'v_lshrrev_b32 v{Y}, 1, v{G_}')
    E(f'v_lshl_or_b32 v{X}, v{Y}, 2, v{X}')
    E(f'v_or_b32 v{X}, {sT1}, v{X}')
    E(f'v_xor_b32 v{X}, v{X}, v{C_}')
    E(f'v_lshlrev_b32 v{X}, 4, v{X}')
    E(f'v_lshl_add_u32 v{X}, v{G_}, 13, v{X}')
    E(f's_lshl_b32 {sT2}, {sW}, 17')
    E(f'v_add_u32 v{VWQ}, {sT2}, v{X}')
    for p in range(1, 4): E(f'v_add_u32 v{VWQ+p}, {p*(32768-1024)}, v{VWQ}')
    EL(f'v_lshrrev_b32 v{X}, 3, v{L}')
    EL(f'v_and_b32 v{Y}, 6, v{X}')
    EL(f'v_and_b32 v{POS}, 7, v{L}')
    EL(f'v_xor_b32 v{Y}, v{Y}, v{POS}')
    EL(f'v_lshlrev_b32 v{Y}, 4, v{Y}')
    EL(f'v_mul_u32_u24 v{X}, 1152, v{X}')
    EL(f'v_add_u32 v{X}, v{X}, v{Y}')
    EL(f's_mul_i32 {sT2}, {sW}, {32*1152}')
    EL(f'v_add_u32 v{VWO}, {sT2}, v{X}')
    for p in range(1, 4): EL(f'v_add_u32 v{VWO+p}, {p*(8*1152-1024)}, v{VWO}')
    EL(f'v_lshrrev_b32 v{X}, 2, v{C_}')
    EL(f'v_lshlrev_b32 v{X}, 12, v{X}')
    EL(f'v_and_b32 v{Y}, 3, v{C_}')
    EL(f'v_lshl_add_u32 v{X}, v{Y}, 8, v{X}')
    EL(f'v_xor_b32 v{Y}, v{G_}, v{C_}')
    EL(f'v_lshl_add_u32 v{KA0}, v{Y}, 4, v{X}')
    ROWP, G1, C1 = 109, 110, 111
    EL(f'v_lshlrev_b32 v{ROWP}, 4, v{G_}')
    EL(f'v_add_u32 v{ROWP}, v{ROWP}, v{RR}')
    EL(f'v_lshlrev_b32 v{ROWP}, 8, v{ROWP}')
    EL(f'v_and_b32 v{G1}, 1, v{G_}')
    EL(f'v_lshlrev_b32 v{G1}, 3, v{G1}')
    EL(f'v_and_b32 v{C1}, 1, v{CC}')
    EL(f'v_lshlrev_b32 v{C1}, 3, v{C1}')
    EL(f'v_lshl_or_b32 v{X}, v{RR}, 1, v{G1}')
    EL(f'v_lshrrev_b32 v{Y}, 1, v{CC}')
    EL(f'v_xor_b32 v{X}, v{X}, v{Y}')
    EL(f'v_lshl_add_u32 v{X}, v{X}, 4, v{C1}')
    EL(f'v_add_u32 v{VB0}, v{ROWP}, v{X}')
    EL(f'v_and_b32 v{X}, 1, v{RR}')
    EL(f'v_lshrrev_b32 v{Y}, 1, v{RR}')
    EL(f'v_lshl_or_b32 v{X}, v{Y}, 2, v{X}')
    EL(f'v_or_b32 v{X}, v{X}, v{G1}')
    EL(f'v_xor_b32 v{X}, v{X}, v{CC}')
    EL(f'v_lshl_add_u32 v{X}, v{X}, 4, v{C1}')
    EL(f'v_add_u32 v{QC0}, v{ROWP}, v{X}')
    EL(f'v_lshrrev_b32 v{X}, 1, v{RR}')
    EL(f'v_lshlrev_b32 v{X}, 1, v{X}')
    EL(f'v_lshrrev_b32 v{Y}, 1, v{G1}')
    EL(f'v_or_b32 v{X}, v{X}, v{Y}')
    EL(f'v_lshrrev_b32 v{Y}, 1, v{CC}')
    EL(f's_lshl_b32 {sT2}, {sW}, 1')
    EL(f'v_add_u32 v{Y}, {sT2}, v{Y}')
    EL(f'v_xor_b32 v{X}, v{X}, v{Y}')
    EL(f'v_lshl_add_u32 v{X}, v{X}, 4, v{C1}')
    EL(f'v_lshlrev_b32 v{Y}, 2, v{G_}')
    EL(f'v_add_u32 v{Y}, v{Y}, v{RR}')
    EL(f'v_lshl_add_u32 v{OD0}, v{Y}, 7, v{X}')
    EL(f'v_and_b32 v{X}, 1, v{G_}')
    EL(f'v_cmp_eq_u32 {sODD}, 1, v{X}')
    XST = 3 * SLOT
    VX = 112
    if not c.xdirect:
        E(f's_mul_i32 {sT2}, {sW}, {16*1152}')
        E(f'v_mul_u32_u24 v{X}, 1152, v{C_}')
        E(f'v_lshl_add_u32 v{X}, v{G_}, 5, v{X}')
        E(f'v_add_u32 v{VX}, {sT2}, v{X}')
        E(f'v_add_u32 v{VX}, {XST}, v{VX}')
    EL(f's_lshl_b32 {sT2}, {sW}, 10')
    EL(f'v_add_u32 v{VPART}, {sT2}, v{VL16}')
    EL(f'v_mul_u32_u24 v{VOUT}, 1152, v{C_}')
    EL(f'v_lshl_add_u32 v{VOUT}, v{G_}, 3, v{VOUT}')
    EL(f's_lshl_b32 {sKV}, {sB}, 5')
    EL(f's_lshl_b32 {sT2}, {sJ}, 2')
    EL(f's_add_u32 {sKV}, {sKV}, {sT2}')
    EL(f's_lshl_b32 {sKV}, {sKV}, 17')
    EL(f's_mov_b32 {sKVN}, {sKV}')
    E(f's_lshl_b32 {sWQO}, {sJ}, 10')
    EL(f's_mul_i32 {sWOO}, {sJ}, {4*128*1152}')
    cval = struct.unpack('<I', struct.pack('<f', (128 ** -0.5) * math.log2(math.e)))[0]
    EL(f's_mov_b32 {sC}, {hex(cval)}')
    if c.pf == 4:
        EL(f's_mul_i32 {sT2}, {sB}, 86'); EL(f's_lshr_b32 {sT2}, {sT2}, 8'); EL(f's_mul_i32 {sT2}, {sT2}, 3'); EL(f's_sub_u32 {sLV}, {sB}, {sT2}')
    else:
        EL(f's_and_b32 {sLV}, {sB}, 1')
    EL(f's_lshl_b32 {sPB}, {sB}, 3')
    EL(f's_add_u32 {sPB}, {sPB}, {sJ}')
    EL(f's_mul_i32 {sPB}, {sPB}, {72*1024}')
    for i in range(4): EL(f'v_mov_b32 v{TMP+i}, 0')
    EL(f'v_mov_b32 v{TMP+4}, 0x3f803f80')
    for i in range(9): EL(f'v_mfma_f32_32x32x16_bf16 {ar(AOUT+16*i,16)}, {vr(TMP,4)}, {vr(TMP,4)}, 0')
    for i in range(4): EL(f'v_accvgpr_write_b32 a{AONE+i}, v{TMP+4}')
    EL('v_mov_b32 v%d, v%d' % (VVS, VV if c.order == 'KVOQ' else VK))
    EL(f'v_mov_b32 v{VCHK}, 0')
    if c.pf:
        E(f's_lshl_b32 s58, {sB}, 2'); E(f's_add_u32 s58, s58, {sW}'); E(f's_lshl_b32 s58, s58, 1')
        E(f's_cmp_ge_u32 s58, 144'); E(f's_cselect_b32 s59, 144, 0'); E(f's_sub_u32 s58, s58, s59')
        E(f's_lshl_b32 s58, s58, 15'); E(f's_add_u32 s58, s58, {sWQO}')
        E(f'v_lshrrev_b32 v{X}, 4, v{L}'); E(f'v_lshlrev_b32 v{X}, 13, v{X}'); E(f'v_and_b32 v{Y}, 15, v{L}'); E(f'v_lshl_add_u32 v113, v{Y}, 4, v{X}')
        E(f's_add_u32 m0, {sW4K}, {XBUF}')
    if c.xdirect:
        E(f's_lshl_b32 s53, {sB}, 6'); E(f's_lshl_b32 s56, {sW}, 4'); E(f's_add_u32 s53, s53, s56'); E(f's_mul_i32 s53, s53, 1152')
        E(f'v_mul_u32_u24 v{X}, 1152, v{C_}')
        E(f'v_lshl_add_u32 v{VX}, v{G_}, 5, v{X}')
    for base, nrec in ((20, 2359296), (12, 4718592), (4, 0x8000000), (8, 0x8000000), (16, 4718592), (24, 0x1400000 + 256*128), (28, 2359296), (32, 256)):
        emit = E if base in (12, 20) or (c.pf_first and base == 16) else EL
        emit(f's_mov_b32 s{base+2}, {hex(nrec)}')
        emit(f's_mov_b32 s{base+3}, 0x20000')
    E('s_waitcnt lgkmcnt(0)')
    if c.stamps: E('s_memrealtime s[82:83]')
    if c.stamps: EL('s_mov_b32 s26, 0x20000000')
    vsel0 = 8 if c.order == 'KVOQ' else 4
    for i in range(4): EL(f's_mov_b32 s{88+i}, s{vsel0+i}')
    if c.rot:
        if c.rot == 1: E(f's_add_u32 {sT2}, {sB}, {sJ}')
        elif c.rot == 2: E(f's_mov_b32 {sT2}, {sB}')
        elif c.rot == 3:
            E(f's_lshr_b32 {sT2}, {sB}, 1'); E(f's_add_u32 {sT2}, {sT2}, {sJ}')
        elif c.rot == 4:
            E(f's_mul_i32 {sT2}, {sB}, 3'); E(f's_add_u32 {sT2}, {sT2}, {sJ}')
        for i in range(8):
            E(f's_add_u32 {sT3}, {sT2}, {i}'); E(f's_and_b32 {sT3}, {sT3}, 7'); E(f's_lshl_b32 s{ROT0+i}, {sT3}, 14')
    if c.tlbwarm:
        def touch(lo, off_code, dst):
            off_code()
            E(f's_add_u32 s86, s{lo}, {sT2}')
            E(f's_addc_u32 s87, s{lo+1}, 0')
            E(f's_load_dword s{dst}, s[86:87], 0')
        touch(20, lambda: E(f's_mul_i32 {sT2}, {sB}, {64*1152}'), 64)
        touch(4, lambda: E(f's_mov_b32 {sT2}, {sKV}'), 65)
        touch(8, lambda: E(f's_mov_b32 {sT2}, {sKV}'), 66)
        for k, off in enumerate((0, 1572864, 3145728, 4718588)):
            touch(12, lambda off=off: E(f's_mov_b32 {sT2}, {off}'), 67)
        touch(16, lambda: E(f's_mov_b32 {sT2}, {sWOO}'), 68)
        touch(16, lambda: E(f's_add_u32 {sT2}, {sWOO}, {4*128*1152-4}'), 68)
        touch(24, lambda: E(f's_mov_b32 {sT2}, {sPB}'), 69)
        touch(28, lambda: E(f's_mul_i32 {sT2}, {sB}, {64*1152}'), 69)
        E('s_load_dword s70, s[32:33], 0')

    def issue_now(kind, idx, nxt):
        for f in g.dma_ops(kind, idx, nxt): f()
    def pf_pieces(srd, n, sbase_code, step):
        sbase_code()
        E(f's_add_u32 m0, {sW4K}, {XBUF}')
        for k in range(n):
            E(f'buffer_load_dwordx4 v{VL16}, {srd}, {sT2} offen {c.pfflags} lds'.replace('  ', ' '))
            if k < n - 1: E(f's_add_u32 {sT2}, {sT2}, {step}')
    if c.pf:
        for k in range(2):
            E(f'buffer_load_dwordx4 v113, {sWQ}, s58 offen {c.pfflags} lds'.replace('  ', ' '))
            if k == 0: E(f's_add_u32 s58, s58, 32768')
    def pf_duty():
        if c.pf:
            npc = 9 if c.pf == 1 else c.pf_b
            if c.pf == 2:
                E(f's_and_b32 s58, {sB}, {c.pf_mask}')
                E(f's_cmp_eq_u32 s58, 0'); E('s_cbranch_scc1 L_nopf')
                E(f's_lshr_b32 s59, {sB}, 1')
                E(f's_lshl_b32 s59, s59, 2'); E(f's_add_u32 s59, s59, {sW}'); E(f's_mul_i32 s59, s59, {npc}')
                E(f's_add_u32 s58, s59, {npc}')
            elif c.pf == 3:
                E(f's_and_b32 s57, {sB}, 3')
                E(f's_cmp_eq_u32 s57, 0'); E('s_cbranch_scc1 L_nopf')
                E(f's_lshr_b32 s59, {sB}, 2'); E(f's_mul_i32 s59, s59, 144')
                E(f's_sub_u32 s56, s57, 1'); E(f's_mul_i32 s56, s56, s57'); E(f's_mul_i32 s56, s56, 12')
                E(f's_add_u32 s59, s59, s56')
                E(f's_mul_i32 s57, s57, 6')
                E(f's_mul_i32 s56, s57, {sW}'); E(f's_add_u32 s59, s59, s56')
                E(f's_add_u32 s58, s59, s57')
            elif c.pf == 4:
                E(f's_mul_i32 s56, {sB}, 86'); E(f's_lshr_b32 s56, s56, 8')
                E(f's_mul_i32 s57, s56, 3'); E(f's_sub_u32 s57, {sB}, s57')
                E(f's_cmp_eq_u32 s57, 0'); E('s_cbranch_scc1 L_nopf')
                E(f's_mul_i32 s59, s56, 112')
                E(f's_cmp_eq_u32 s57, 2'); E(f's_cselect_b32 s56, 36, 0'); E(f's_cselect_b32 s57, 19, 9')
                E(f's_add_u32 s59, s59, s56')
                E(f's_mul_i32 s56, s57, {sW}'); E(f's_add_u32 s59, s59, s56')
                E(f's_add_u32 s58, s59, s57')
            else:
                E(f's_mov_b32 s59, {sB}')
                E(f's_lshl_b32 s59, s59, 2'); E(f's_add_u32 s59, s59, {sW}'); E(f's_mul_i32 s59, s59, {npc}')
                E(f's_add_u32 s58, s59, {npc}')
            E(f's_add_u32 m0, {sW4K}, {XBUF}')
            E('L_pf:')
            E(f's_cmp_ge_u32 s59, 576'); E('s_cbranch_scc1 L_pfo')
            E(f's_lshl_b32 s56, s59, 13'); E(f's_lshl_b32 s57, {sJ}, 10'); E(f's_add_u32 s56, s56, s57')
            E(f'buffer_load_dwordx4 v{VL16}, {sWQ}, s56 offen {c.pfflags} lds'.replace('  ', ' '))
            E('s_branch L_pfn')
            E('L_pfo:')
            E(f's_sub_u32 s56, s59, 576'); E(f's_lshl_b32 s56, s56, 10'); E(f's_mul_i32 s57, {sJ}, {4*128*1152}'); E(f's_add_u32 s56, s56, s57')
            E(f'buffer_load_dwordx4 v{VL16}, {sWO}, s56 offen {c.pfflags} lds'.replace('  ', ' '))
            E('L_pfn:')
            if c.pf_depth == 15:
                E('s_bitcmp1_b32 s59, 0'); E('s_cbranch_scc1 L_pfw'); E('s_waitcnt vmcnt(2)'); E('s_branch L_pfw2'); E('L_pfw:'); E('s_waitcnt vmcnt(1)'); E('L_pfw2:')
            elif c.pf_depth: E(f's_waitcnt vmcnt({c.pf_depth})')
            E('s_add_u32 s59, s59, 1'); E('s_cmp_lt_u32 s59, s58'); E('s_cbranch_scc1 L_pf')
            if c.pf_wait: E('s_waitcnt vmcnt(0)')
            E('L_nopf:')
    if c.pf_first: pf_duty()
    if c.xdirect:
        def xl(jj):
            for hs in range(2):
                E(f'buffer_load_dwordx4 {ar(AX + 4*(2*jj+hs), 4)}, v{VX}, {sX}, s53 offen offset:{128*jj+16*hs} {c.xflags}'.rstrip())
        order = [('Q', 0), ('x', 0), ('x', 1)] + [('Q', i) for i in range(1, LA)] + [('x', j) for j in range(2, 9)]
        if c.xorder == 1: order = [('x', j) for j in range(9)] + [('Q', i) for i in range(LA)]
        if c.xorder == 2: order = [('x', j) for j in range(5)] + [('Q', 0), ('Q', 1)] + [('x', j) for j in range(5, 9)] + [('Q', i) for i in range(2, LA)]
        sim = []
        for kind, i in order:
            if kind == 'Q':
                issue_now('Q', i, False); sim += [('Q', i)] * 4
            else:
                xl(i); sim += [('x', i)] * 2
        N = 4 * (LA - 1)
        q = list(sim)
        for j in range(9):
            q = q[-N:] if len(q) > N else q
            assert ('x', j) not in q and ('Q', j) not in q, (j, q)
            q += [('n', j)] * 4
        if c.stamps: E('s_memrealtime s[84:85]')
    else:
        E(f's_lshl_b32 {sT2}, {sB}, 6'); E(f's_lshl_b32 {sT3}, {sW}, 4'); E(f's_add_u32 {sT2}, {sT2}, {sT3}'); E(f's_mul_i32 {sT2}, {sT2}, 1152')
        E(f's_mul_i32 {sT3}, {sW}, 18432'); E(f's_add_u32 {sT3}, {sT3}, {XST}')
        for k in range(18):
            if k % 4 == 0:
                E(f's_add_u32 m0, {sT3}, {k*1024}')
                if k: E(f's_add_u32 {sT2}, {sT2}, 4096')
                else: E('s_nop 0')
            off = f' offset:{(k%4)*1024}' if k % 4 else ''
            if not c.xp_nox:
                E(f'buffer_load_dwordx4 v{VL16}, {sX}, {sT2} offen{off} {c.xflags} lds'.replace('  ', ' '))
                g.vm_issue(('X', k))
        for i in range(4): issue_now('Q', i, False)
        g.vm_wait(lambda t: t[0] == 'X')
        if c.stamps: E('s_memrealtime s[84:85]')
        E('s_waitcnt lgkmcnt(0)')
        if not c.skip_compute:
            for jj in range(9):
                for hs in range(2):
                    E(f'ds_read_b128 {ar(AX + 4*(2*jj+hs), 4)}, v{VX} offset:{128*jj+16*hs}')
                    if (2 * jj + hs) % 8 == 7: E('s_waitcnt lgkmcnt(0)')
            E('s_waitcnt lgkmcnt(0)')

    if late:
        E(f's_and_b32 {sT1}, {sW}, 1'); E(f's_lshl_b32 {sT1}, {sT1}, 3')
    for t in late: E(t)
    if c.golines:
        E(f's_cmp_lg_u32 {sW}, 0')
        E('s_cbranch_scc1 L_noinit')
        E(f's_lshl_b32 {sT2}, s2, 7'); E(f's_add_u32 {sT2}, {sT2}, 0x1400000')
        E(f'v_mov_b32 v{TMP+2}, 0')
        E(f'v_lshrrev_b32 v{TMP+3}, 2, v{VL16}')
        E(f'v_cmp_gt_u32 vcc, 256, v{VL16}')
        E('s_and_saveexec_b64 s[54:55], vcc')
        E(f'buffer_store_dword v{TMP+2}, v{TMP+3}, {sWS}, {sT2} offen sc1')
        E('s_mov_b64 exec, s[54:55]')
        E('L_noinit:')
    sid = [0]
    def pool_init(pat, variants, win):
        L_ = []
        for v, xb in enumerate(variants):
            d = POOL + v
            if xb == 0: L_.append(f'v_add_u32 v{d}, {win*65536}, v{pat}' if win else f'v_mov_b32 v{d}, v{pat}')
            else: L_.append(f'v_xor_b32 v{d}, {xb}, v{POOL}')
        for t in L_: E(t)

    def newwin(kind, j): return j == 0 or (RING[kind][j] >> 2) != (RING[kind][j - 1] >> 2)
    def mk_pre(seq, p, my, extra=None, after=None, issue=None, j=None, n_in_phase=None, issue_map=None):
        def pre():
            if c.pairbar and j is not None:
                if j % 2 == 1:
                    if after: after()
                    return
                n = 2 if j + 1 < n_in_phase else 1
                g.flush_dma()
                if issue_map is not None: iss = sum((issue_map[j + i] for i in range(n)), [])
                else: iss = [seq[p + LA + i] for i in range(n) if p + LA + i < len(seq)]
                g.slot_sync(my, seq[p + n - 1], iss, extra)
                if after: after()
                return
            g.flush_dma()
            iss = issue if issue is not None else ([seq[p + LA]] if p + LA < len(seq) else [])
            g.slot_sync(my, seq[p], iss, extra)
            if after: after()
        return pre

    def k_ops(seq, p0, issue_map=None):
        ops = []
        for j in range(8):
            ring = RING['K'][j]; win, inw = ring >> 2, (ring & 3) * SLOT
            my = sid[0]; sid[0] += 1
            for u in range(4):
                T = 4 * j + u
                for s in range(4):
                    fr = {'slot': my, 'ra': c.ra_b, 'reads': [(f'ds_read_b128 {{d}}, v{POOL+s} offset:{inw + u*1024}', 4)]}
                    if u == 0 and s == 0:
                        fr['pre'] = mk_pre(seq, p0 + j, my, j=j, n_in_phase=8, issue_map=issue_map, issue=(issue_map[j] if issue_map else None), after=(lambda win=win: pool_init(KA0, [0, 64, 128, 192], win)) if newwin('K', j) else None)
                    D = vr(S0 + 4 * T, 4); B = vr(QN + 8 * s, 4)
                    o = {'frag': fr, 'maxr': 1, 'fill': [],
                         'mf': (lambda t, D=D, B=B, s=s: f'{MF} {D}, {vr(t,4)}, {B}, {D if s else 0}')}
                    if (s == 2 and not c.dma_early) or (c.dma_early and u == 2): o['dma'] = 1
                    if T >= 2 and s in (1, 3):
                        a = S0 + 4 * (T - 2) + (0 if s == 1 else 2)
                        o['fill'].append(f'v_max3_f32 v{VM}, v{a}, v{a+1}, v{VM}')
                    ops.append(o)
        return ops
    def q_ops(seq, p0, issue_map=None):
        ops = []
        for j in range(9):
            ring = RING['Q'][j]; win, inw = ring >> 2, (ring & 3) * SLOT
            my = sid[0]; sid[0] += 1
            for hs in range(2):
                for s in range(4):
                    for u in range(2):
                        v = 2 * s + u
                        fr = {'slot': my, 'ra': c.ra_t, 'reads': [(f'ds_read_b64_tr_b16 {{d}}, v{POOL+v} offset:{inw + (8*hs+4*t)*256}', 2) for t in range(2)]}
                        if hs == 0 and v == 0:
                            fr['pre'] = mk_pre(seq, p0 + j, my, j=j, n_in_phase=9, issue=(issue_map.get(j) if issue_map else None),
                                               after=(lambda win=win: pool_init(QC0, [0, 8, 64, 72, 128, 136, 192, 200], win)) if newwin('Q', j) else None)
                        D = vr(QN + 4 * v, 4); B = ar(AX + 4 * (2 * j + hs), 4)
                        first = (j == 0 and hs == 0)
                        o = {'frag': fr, 'fill': [], 'mf': (lambda t, D=D, B=B, first=first: f'{MF} {D}, {vr(t,4)}, {B}, {0 if first else D}')}
                        if (v in (1, 5) and not c.dma_early) or (c.dma_early and hs == 0 and v >= 4): o['dma'] = 1
                        ops.append(o)
        return ops
    def v_ops(seq, p0):
        ops = []
        for j in range(8):
            ring = RING['V'][j]; win, inw = ring >> 2, (ring & 3) * SLOT
            my = sid[0]; sid[0] += 1
            for hf in range(2):
                uu = 2 * j + hf
                for td in range(8):
                    fr = {'slot': my, 'ra': c.ra_t, 'reads': [(f'ds_read_b64_tr_b16 {{d}}, v{POOL+td} offset:{inw + (8*hf+4*t)*256}', 2) for t in range(2)]}
                    if hf == 0 and td == 0:
                        fr['pre'] = mk_pre(seq, p0 + j, my, j=j, n_in_phase=8, after=(lambda win=win: pool_init(VB0, [i << 5 for i in range(8)], win)) if newwin('V', j) else None)
                    D = ar(AO + 4 * td, 4); B = vr(S0 + 8 * uu, 4)
                    o = {'frag': fr, 'fill': [], 'uu': uu, 'mf': (lambda t, D=D, B=B, uu=uu: f'{MF} {D}, {vr(t,4)}, {B}, {D if uu else 0}')}
                    if (td in (2, 5) and not c.dma_early) or (c.dma_early and hf == 0 and td >= 4): o['dma'] = 1
                    ops.append(o)
                DL = ar(AL, 4); B = vr(S0 + 8 * uu, 4)
                ops.append({'frag': None, 'usefrag': True, 'fill': [], 'uu': uu, 'maxr': 2,
                            'mf': (lambda t, B=B, uu=uu, DL=DL: f'{MF} {DL}, {ar(AONE,4)}, {B}, {DL if uu else 0}')})
        return ops
    def o_ops(seq, p0, extra0, after0):
        ops = []
        for j in range(9):
            ring = RING['O'][j]; win, inw = ring >> 2, (ring & 3) * SLOT
            my = sid[0]; sid[0] += 1
            for s in range(4):
                fr = {'slot': my, 'ra': c.ra_o, 'reads': [(f'ds_read_b64_tr_b16 {{d}}, v{VOA} offset:{inw + s*4096 + t*2048}', 2) for t in range(2)]}
                if s == 0:
                    def after(j=j, win=win):
                        if j == 0: after0()
                        if newwin('O', j): E(f'v_add_u32 v{VOA}, {win*65536}, v{OD0}' if win else f'v_mov_b32 v{VOA}, v{OD0}')
                    fr['pre'] = mk_pre(seq, p0 + j, my, j=j, n_in_phase=9, extra=(extra0 if j == 0 else None), after=after)
                for qt in range(4):
                    D = ar(AOUT + 4 * (4 * j + qt), 4); B = vr(S0 + 4 * (4 * s + qt), 4)
                    o = {'frag': fr if qt == 0 else None, 'maxr': 1, 'fill': [], 'mf': (lambda t, D=D, B=B: f'{MF} {D}, {vr(t,4)}, {B}, {D}')}
                    if qt == 2: o['dma'] = 1
                    ops.append(o)
        return ops

    def exp_group(uu):
        b = S0 + 8 * uu
        L_ = [f'v_fma_f32 v{b+i}, v{b+i}, {sC}, -v{VMC}' for i in range(8)]
        L_ += [f'v_exp_f32 v{b+i}, v{b+i}' for i in range(8)]
        L_ += [f'v_cvt_pk_bf16_f32 v{b+i}, v{b+2*i}, v{b+2*i+1}' for i in range(4)]
        return L_
    def max_finish():
        L_ = []
        for T in (30, 31):
            a = S0 + 4 * T
            L_ += [f'v_max3_f32 v{VM}, v{a}, v{a+1}, v{VM}', f'v_max3_f32 v{VM}, v{a+2}, v{a+3}, v{VM}']
        L_ += [f'v_mov_b32 v{TMP}, v{VM}', f'v_permlane32_swap_b32 v{VM}, v{TMP}', f'v_max_f32 v{VM}, v{VM}, v{TMP}',
               f'v_mov_b32 v{TMP}, v{VM}', f'v_permlane16_swap_b32 v{VM}, v{TMP}', f'v_max_f32 v{VM}, v{VM}, v{TMP}',
               f'v_mul_f32 v{VMC}, {sC}, v{VM}']
        return L_
    def q_finalize():
        L_ = []
        for s in range(4):
            a = QN + 8 * s; t = TMP + 4 * (s & 1)
            L_ += [f'v_cvt_pk_bf16_f32 v{t}, v{a}, v{a+1}', f'v_cvt_pk_bf16_f32 v{t+1}, v{a+2}, v{a+3}',
                   f'v_cvt_pk_bf16_f32 v{t+2}, v{a+4}, v{a+5}', f'v_cvt_pk_bf16_f32 v{t+3}, v{a+6}, v{a+7}']
            L_ += [f'v_cndmask_b32 v{a}, v{t}, v{t+2}, {sODD}', f'v_cndmask_b32 v{a+1}, v{t+1}, v{t+3}, {sODD}',
                   f'v_cndmask_b32 v{a+2}, v{t+2}, v{t}, {sODD}', f'v_cndmask_b32 v{a+3}, v{t+3}, v{t+1}, {sODD}']
        return L_
    def distribute(ops, fillers, lo, hi):
        n = hi - lo
        for k, f in enumerate(fillers):
            ops[lo + (k * n) // len(fillers)]['fill'].append(f)

    def gate_arrive():
        E(f's_cmp_lg_u32 {sW}, 0')
        E('s_cbranch_scc1 L_ga_done')
        E(f'v_mov_b32 v{TMP+4}, 1')
        E(f'v_mov_b32 v{TMP+5}, 0')
        E(f's_lshl_b32 {sT2}, {sJ}, 5')
        E(f's_add_u32 {sT2}, {sT2}, 4')
        E(f'v_cmp_eq_u32 vcc, 0, v{VL16}')
        E('s_and_saveexec_b64 s[54:55], vcc')
        E(f'buffer_atomic_add v{TMP+4}, v{TMP+5}, {sDBG}, {sT2} offen sc1')
        E('s_mov_b64 exec, s[54:55]')
        E('L_ga_done:')
    def gate_wait():
        E(f's_cmp_lg_u32 {sW}, 0')
        E('s_cbranch_scc1 L_gw_done')
        E(f'v_lshlrev_b32 v{TMP+5}, 1, v{VL16}')
        E(f'v_add_u32 v{TMP+5}, 4, v{TMP+5}')
        E(f's_mov_b32 {sT3}, 0')
        E('L_gw_poll:')
        E(f'buffer_load_dword v{TMP+4}, v{TMP+5}, {sDBG}, 0 offen sc1')
        E('s_waitcnt vmcnt(0)')
        E(f'v_cmp_le_u32 vcc, 32, v{TMP+4}')
        E(f's_cmp_eq_u32 vcc_lo, 0xff')
        E('s_cbranch_scc1 L_gw_done')
        E(f's_sleep {c.poll_sleep}')
        E(f's_add_u32 {sT3}, {sT3}, 1')
        E(f's_cmp_lt_u32 {sT3}, 0x40000')
        E('s_cbranch_scc1 L_gw_poll')
        E('L_gw_done:')
        E('s_barrier')
        g.vm = []
    def o_finalize():
        tl = 64
        E(f'v_accvgpr_read_b32 v{tl}, a{AL}')
        E(f'v_add_u32 v{TMP}, {XBUF}, v{VPART}')
        E(f'v_rcp_f32 v{tl}, v{tl}')
        for s in range(4):
            t = 72 + 12 * s
            for i in range(8): E(f'v_accvgpr_read_b32 v{t+i}, a{AO + 8*s + i}')
            for i in range(8): E(f'v_mul_f32 v{t+i}, v{t+i}, v{tl}')
            for i in range(4): E(f'v_cvt_pk_bf16_f32 v{t+8+i}, v{t+2*i}, v{t+2*i+1}')
            E(f'ds_write_b128 v{TMP}, {vr(t+8,4)} offset:{s*4096}')
            g.lg_issue()
    def o_load_frags():
        E(f'v_add_u32 v{TMP}, {XBUF}, v{VL16}')
        for i in range(16):
            E(f'ds_read_b128 {vr(S0+4*i,4)}, v{TMP} offset:{i*1024}')
            g.o_frag_last = g.lg_issue()

    if not c.xdirect:
        E('s_barrier')
        for i in range(4, LA): issue_now('Q', i, False)
    g.pf_duty = pf_duty
    if not (c.pf_late and c.order == 'KVOQ') and not c.pf_first: pf_duty()
    E(f's_mov_b32 {sFIRST}, 1')
    if c.throttle: E(f's_mov_b32 {sTHR}, 0')
    E(f's_mov_b32 {sLOOP}, 0')
    E('s_branch L_Q')
    for _ in range(c.shift): E('s_nop 0')

    if c.order == 'KVOQ':
        return body_kvoq(g, E, c, locals())
    seq = [('K', i, False) for i in range(8)] + [('Q', i, False) for i in range(9)] + [('V', i, False) for i in range(8)] + \
          [('O', i, False) for i in range(9)] + [('K', i, True) for i in range(8)]
    def st(i):
        if c.istamps: return
        if c.stamps and not c.fstamps: E(f's_memtime s[{72+2*i}:{73+2*i}]')
        if c.stamps and c.fstamps: E(f's_memrealtime s[{72+2*i}:{73+2*i}]')
    def vpos(vi, uu): return next(i for i, o in enumerate(vi) if o['uu'] == uu)
    groups = [exp_group(uu) if not c.xp_noexp else exp_group(uu)[16:] for uu in range(16)]
    if c.align: E(f'.p2align {c.align}')
    E('L_K:')
    g.vm = [('K', i, False) for i in range(LA) for _ in range(4)] if 'K' not in c.skip_dma else []
    g.lg = []; g.slot_last_read = {}
    st(0)
    E(f'v_mov_b32 v{VM}, 0xff800000')
    g.stream(k_ops(seq, 0))
    g.flush_dma(); g.lg_drain()
    nq = c.q_groups
    if c.sm_in_v and not c.klast:
        E(f's_cmp_eq_u32 {sLOOP}, 3')
        E('s_cbranch_scc1 L_skipq')
    E('L_Q:')
    st(1)
    qi = q_ops(seq, 8)
    fl = max_finish()
    if not c.sm_in_v:
        for k, f in enumerate(fl): qi[3 + k]['fill'].append(f)
        distribute(qi, sum(groups[:nq], []), max(c.sm_lo, 3 + len(fl) + 1), len(qi))
    if c.xp_noq:
        for o in qi:
            o['mf'] = None
            if o.get('frag'): o['frag']['reads'] = [('s_nop 0 ; {d}', 4)]
    g.stream(qi)
    g.flush_dma(); g.lg_drain()
    E(f's_cmp_lg_u32 {sFIRST}, 0')
    E('s_cbranch_scc1 L_first_done')
    E('L_V:')
    st(2)
    vi = v_ops(seq, 17)
    if c.sm_in_v:
        vi[0]['fill'] += fl + groups[0] + groups[1]
        rest = [(None, f) for f in q_finalize()]
        allrest = [(uu, f) for uu in range(2, 16) for f in groups[uu]]
        lo, hi = 1, (c.sm_v_hi or vpos(vi, 15) - 3)
        for k, (uu, f) in enumerate(allrest):
            i = min(lo + (k * (hi - lo)) // len(allrest), vpos(vi, uu) - 2)
            vi[i]['fill'].append(f)
        distribute(vi, q_finalize(), len(vi) - 18, len(vi) - 1)
    else:
        distribute(vi, q_finalize(), 2, 18)
        allrest = [(uu, f) for uu in range(nq, 16) for f in groups[uu]]
        lo, hi = 2, max(c.sm_vhi, 4)
        for k, (uu, f) in enumerate(allrest):
            i = min(lo + (k * (hi - lo)) // len(allrest), vpos(vi, uu) - 2)
            vi[i]['fill'].append(f)
    def drop_next():
        if not c.olast:
            E(f's_cmp_eq_u32 {sLOOP}, 3')
            E('s_cselect_b32 s6, 0, s6')
        if not (c.klast and c.sm_in_v):
            E(f's_cmp_eq_u32 {sLOOP}, 2')
            E('s_cselect_b32 s14, 0, s14')
    vi[20]['fill'].append(drop_next)
    if c.dflags:
        def rdchk():
            E(f's_cmp_lg_u32 {sLOOP}, 3'); E('s_cbranch_scc1 L_nochk')
            E(f's_cmp_lg_u32 {sW}, 0'); E('s_cbranch_scc1 L_nochk')
            E(f's_lshl_b32 {sT2}, {sB}, 3'); E(f's_add_u32 {sT2}, {sT2}, 4')
            E(f'v_mov_b32 v{TMP+7}, 0')
            E(f'buffer_load_dword v{VCHK}, v{TMP+7}, {sDBG}, {sT2} offen sc1')
            if c.tailpf:
                E('s_getpc_b64 s[56:57]')
                E('L_pc2:')
                E(f'v_lshlrev_b32 v248, 3, v{VL16}')
                E(f'v_add_u32 v248, L_Olast-L_pc2, v248')
                E('v_mov_b32 v250, s57')
                E('v_add_co_u32 v249, vcc, s56, v248')
                E('v_addc_co_u32 v250, vcc, 0, v250, vcc')
                E('v_cmp_gt_u32 vcc, L_done-L_pc2, v248')
                E('s_and_saveexec_b64 s[54:55], vcc')
                E('s_cbranch_execz L_tpf_skip')
                E('v_mov_b32 v248, v249'); E('v_mov_b32 v249, v250')
                E('global_load_dword v250, v[248:249], off')
                E('L_tpf_skip:')
                E('s_mov_b64 exec, s[54:55]')
            E('L_nochk:')
        vi[24]['fill'].append(rdchk)
    g.stream(vi)
    g.flush_dma()
    st(3)
    if not c.skip_compute: o_finalize()
    if c.olast:
        E(f's_cmp_eq_u32 {sLOOP}, 3')
        E('s_cbranch_scc1 L_Olast')
        saved = (list(g.vm), list(g.lg), dict(g.slot_last_read), sid[0], g.tnext)
    oi = o_ops(seq, 25, (lambda: g.lg_drain()), (o_load_frags if not c.skip_compute else (lambda: None)))
    if not c.skip_compute: oi[0]['need'] = lambda: g.lg_wait(g.o_frag_last)
    def preg(j, h):
        k = 2 * j + h
        return 64 + 4 * k if k < 14 else 128 + 4 * (k - 14)
    def conv(j, h):
        t = 120
        L_ = []
        for k in range(2):
            for i in range(4): L_.append(f'v_accvgpr_read_b32 v{t + 4*k + i}, a{AOUT + 4*(4*j + 2*h + k) + i}')
        d = preg(j, h)
        for i in range(4): L_.append(f'v_cvt_pk_bf16_f32 v{d+i}, v{t+2*i}, v{t+2*i+1}')
        return L_
    def mk_store(j, h):
        def f():
            E(f's_add_u32 {sT2}, {sPB}, {(2*j+h)*4096}')
            E(f'buffer_store_dwordx4 {vr(preg(j,h),4)}, v{VPART}, {sWS}, {sT2} offen {c.pstflags}')
        return f
    post = []
    if not c.skip_compute and not c.olast:
        for j in range(9):
            blk = conv(j, 0) + conv(j, 1)
            pos = 16 * (j + 1) + 4
            if pos < len(oi) and c.conv_inline:
                def cb(blk=blk, j=j):
                    E(f's_cmp_lg_u32 {sLOOP}, 3'); E(f's_cbranch_scc1 L_cv{j}')
                    for t in blk[:12]: E(t)
                    if c.inline_store: mk_store(j, 0)()
                    for t in blk[12:]: E(t)
                    if c.inline_store: mk_store(j, 1)()
                    if c.inline_b:
                        E(f's_bitcmp1_b32 {sB}, 0'); E(f's_cbranch_scc0 L_cv{j}')
                        mk_store(j, 0)(); mk_store(j, 1)()
                    E(f'L_cv{j}:')
                oi[pos]['fill'].append(cb)
            else:
                post += blk
    g.stream(oi)
    g.flush_dma(); g.lg_drain()
    st(4)
    if not c.skip_dma: assert g.vm[-4*LA:] == [('K', i, True) for i in range(LA) for _ in range(4)], g.vm
    E(f's_mov_b32 {sKV}, {sKVN}')
    E(f's_add_u32 {sKVN}, {sKVN}, 131072')
    if not c.wfixed:
        E(f's_add_u32 {sWQO}, {sWQO}, 256')
        E(f's_add_u32 {sWOO}, {sWOO}, {128*1152}')
    E(f's_add_u32 {sLOOP}, {sLOOP}, 1')
    if c.throttle:
        E(f's_and_b32 {sT2}, {sB}, 1'); E(f's_lshl_b32 {sT2}, {sT2}, 4'); E(f's_add_u32 {sT2}, {sT2}, {sLOOP}')
        E(f's_cmp_eq_u32 {sT2}, 3'); E(f's_cselect_b32 {sTHR}, 1, 0')
    if c.stamps:
        E(f's_cmp_eq_u32 {sLOOP}, 3'); E('s_cbranch_scc0 L_ns3'); E('s_memrealtime s[64:65]'); E('L_ns3:')
        if c.istamps:
            for t in range(1, 5):
                E(f's_cmp_eq_u32 {sLOOP}, {t}'); E(f's_cbranch_scc0 L_is{t}'); E(f's_memrealtime s[{72+2*t}:{73+2*t}]'); E(f'L_is{t}:')
    if c.sm_in_v and c.klast:
        E(f's_cmp_lt_u32 {sLOOP}, 3')
        E('s_cbranch_scc1 L_K')
        if c.exit_at != 2:
            E(f's_cmp_eq_u32 {sLOOP}, 3')
            E('s_cbranch_scc1 L_Klast')
    else:
        E(f's_cmp_lt_u32 {sLOOP}, {4 if c.exit_at != 2 else 3}')
        E('s_cbranch_scc1 L_K')
    if c.exit_at == 2: E('s_branch L_stamps')
    E('s_branch L_exit')
    if c.sm_in_v and c.klast:
        E('L_Klast:')
        g.vm = [('K', i, False) for i in range(LA) for _ in range(4)] if 'K' not in c.skip_dma else []
        g.lg = []; g.slot_last_read = {}; g.pending = []
        st(0)
        E(f'v_mov_b32 v{VM}, 0xff800000')
        lst = [('K', i, False) for i in range(LA, 8)] + [('V', i, False) for i in range(LA)]
        g.stream(k_ops(seq, 0, {p: [lst[p]] for p in range(8)}))
        g.flush_dma(); g.lg_drain()
        if not c.skip_dma: assert g.vm[-4*LA:] == [('V', i, False) for i in range(LA) for _ in range(4)], g.vm
        E('s_branch L_V')
    if c.sm_in_v and not c.klast:
        E('L_skipq:')
        E('s_barrier')
        for i in range(LA):
            for f in g.dma_ops('V', i, False): f()
        E('s_branch L_V')
    if c.olast:
        E('L_Olast:')
        if c.wgate == 1:
            late = 2 if c.pf == 4 else 1
            E(f's_cmp_lg_u32 {sLV}, {late}'); E('s_cbranch_scc1 L_nosig')
            E(f's_cmp_lg_u32 {sW}, 0'); E('s_cbranch_scc1 L_nosig')
            E(f's_sub_u32 {sT2}, s2, {8*late}'); E(f's_lshl_b32 {sT2}, {sT2}, 7'); E(f's_add_u32 {sT2}, {sT2}, {0x1400000 + 32}')
            E(f'v_mov_b32 v{TMP+4}, 1'); E(f'v_lshlrev_b32 v{TMP+5}, 6, v{VL16}')
            E(f'v_cmp_gt_u32 vcc, {16*late}, v{VL16}')
            E('s_and_saveexec_b64 s[54:55], vcc')
            E(f'buffer_store_dword v{TMP+4}, v{TMP+5}, {sWS}, {sT2} offen sc1')
            E('s_mov_b64 exec, s[54:55]')
            E('L_nosig:')
        g.vm, g.lg, g.slot_last_read, sid[0], g.tnext = list(saved[0]), list(saved[1]), dict(saved[2]), saved[3], saved[4]
        g.pending = []
        seq_l = seq[:34]
        ol = o_ops(seq_l, 25, (lambda: g.lg_drain()), (o_load_frags if not c.skip_compute else (lambda: None)))
        if not c.skip_compute:
            ol[0]['need'] = lambda: g.lg_wait(g.o_frag_last)
            for j in range(8):
                blk = conv(j, 0) + conv(j, 1)
                lo = 16 * (j + 1) + 2
                distribute(ol, blk, lo, lo + 13)
                def stb(j=j):
                    if c.xp_notail == 2: return
                    if c.inline_store:
                        mk_store(j, 0)(); mk_store(j, 1)()
                    elif c.inline_b:
                        E(f's_bitcmp1_b32 {sB}, 0'); E(f's_cbranch_scc0 L_sb{j}')
                        mk_store(j, 0)(); mk_store(j, 1)()
                        E(f'L_sb{j}:')
                ol[lo + 13]['fill'].append(stb)
            post = conv(8, 0) + conv(8, 1)
        g.stream(ol)
        g.flush_dma(); g.lg_drain()
        st(4)
        E('s_branch L_exit')
    E('L_first_done:')
    E('s_nop 7')
    for t in q_finalize(): E(t)
    E('s_mov_b32 s88, s8'); E('s_mov_b32 s89, s9')
    E(f'v_mov_b32 v{VVS}, v{VV}')
    E(f's_add_u32 {sWQO}, {sWQO}, 256')
    E(f's_add_u32 {sKVN}, {sKVN}, 131072')
    E(f's_mov_b32 {sFIRST}, 0')
    if c.dflags:
        E(f's_cmp_lg_u32 {sW}, 0'); E('s_cbranch_scc1 L_noid')
        E(f's_lshl_b32 {sT2}, {sB}, 3'); E(f's_add_u32 {sT2}, {sT2}, 4')
        E(f'v_mov_b32 v{TMP}, 1'); E(f'v_mov_b32 v{TMP+1}, 0')
        E(f'v_cmp_eq_u32 vcc, 0, v{VL16}')
        E('s_and_saveexec_b64 s[54:55], vcc')
        E(f'buffer_atomic_add v{TMP}, v{TMP+1}, {sDBG}, {sT2} offen sc1')
        E('s_mov_b64 exec, s[54:55]')
        E('L_noid:')
    if c.stamps: E('s_memrealtime s[62:63]')
    if c.istamps: E('s_memrealtime s[72:73]')
    if c.exit_at == 1: E('s_branch L_stamps')
    E('s_branch L_K')
    E('L_exit:')
    E('s_nop 7')
    for t in post: E(t)
    def gate_code():
        E(f's_cmp_lg_u32 {sW}, 0'); E('s_cbranch_scc1 L_gate_ok')
        E(f's_lshl_b32 {sT0}, s2, 7'); E(f's_add_u32 {sT0}, {sT0}, {0x1400000 + 32}')
        E(f'v_mov_b32 v{TMP+5}, 0'); E(f's_mov_b32 {sT1}, 0')
        E('L_gate:')
        E(f'buffer_load_dword v{TMP+4}, v{TMP+5}, {sWS}, {sT0} offen sc1')
        E('s_waitcnt vmcnt(0)')
        E(f'v_readfirstlane_b32 {sT3}, v{TMP+4}')
        E(f's_cmp_eq_u32 {sT3}, 1'); E('s_cbranch_scc1 L_gate_ok')
        E('s_sleep 2')
        E(f's_add_u32 {sT1}, {sT1}, 1'); E(f's_cmp_lt_u32 {sT1}, 48'); E('s_cbranch_scc1 L_gate')
        E('L_gate_ok:')
        E('s_barrier')
    if c.xp_notail == 2:
        pass
    elif c.store_mode == 1 and not c.skip_compute:
        if c.inline_b:
            for h in range(2): mk_store(8, h)()
            E(f's_bitcmp1_b32 {sB}, 0'); E('s_cbranch_scc1 L_stored')
            if c.wgate: gate_code()
            for j in range(8):
                for h in range(2): mk_store(j, h)()
            E('L_stored:')
        else:
            if c.wgate:
                late = 2 if c.pf == 4 else 1
                E(f's_cmp_eq_u32 {sLV}, {late}'); E('s_cbranch_scc1 L_nogate')
                if c.pf == 4:
                    E(f's_cmp_ge_u32 {sB}, 30'); E('s_cbranch_scc1 L_nogate')
                gate_code()
                E('L_nogate:')
            for j in range(9):
                if c.inline_store and c.conv_inline and j < 8: continue
                for h in range(2): mk_store(j, h)()
    return g, E

def body_kvoq(g, E, c, L):
    LA = c.LA
    k_ops, q_ops, v_ops, o_ops = L['k_ops'], L['q_ops'], L['v_ops'], L['o_ops']
    exp_group, max_finish, q_finalize, distribute = L['exp_group'], L['max_finish'], L['q_finalize'], L['distribute']
    o_finalize, o_load_frags, sid = L['o_finalize'], L['o_load_frags'], L['sid']
    seq = [('K', i, False) for i in range(8)] + [('V', i, False) for i in range(8)] + [('O', i, False) for i in range(9)] + \
          [('Q', i, False) for i in range(9)] + [('K', i, True) for i in range(8)]
    def st(i):
        if c.istamps: return
        if c.stamps and not c.fstamps: E(f's_memtime s[{72+2*i}:{73+2*i}]')
        if c.stamps and c.fstamps: E(f's_memrealtime s[{72+2*i}:{73+2*i}]')
    def vpos(vi, uu): return next(i for i, o in enumerate(vi) if o['uu'] == uu)
    groups = [exp_group(uu) for uu in range(16)]
    E('L_K:')
    g.vm = [('K', i, False) for i in range(LA) for _ in range(4)]
    g.lg = []; g.slot_last_read = {}
    st(0)
    E(f'v_mov_b32 v{VM}, 0xff800000')
    ki = k_ops(seq, 0)
    if c.chain_kv:
        def qf():
            for t in q_finalize(): E(t)
        ki[0]['need'] = qf
    else:
        g.stream(ki)
        g.flush_dma(); g.lg_drain()
        E('L_V:')
        st(2)
    vi = v_ops(seq, 8)
    vi[0]['fill'] += max_finish() + groups[0] + groups[1]
    allrest = [(uu, f) for uu in range(2, 16) for f in groups[uu]]
    lo, hi = 1, (c.sm_v_hi or vpos(vi, 15) - 3)
    for k, (uu, f) in enumerate(allrest):
        i = min(lo + (k * (hi - lo)) // len(allrest), vpos(vi, uu) - 2)
        vi[i]['fill'].append(f)
    def rdchk():
        E(f's_cmp_lg_u32 {sLOOP}, 3'); E('s_cbranch_scc1 L_nochk')
        E(f's_cmp_lg_u32 {sW}, 0'); E('s_cbranch_scc1 L_nochk')
        E(f's_lshl_b32 {sT2}, {sB}, 3'); E(f's_add_u32 {sT2}, {sT2}, 4')
        E(f'v_mov_b32 v{TMP+7}, 0')
        E(f'buffer_load_dword v{VCHK}, v{TMP+7}, {sDBG}, {sT2} offen sc1')
        E('L_nochk:')
    def signal():
        late = 1
        E(f's_cmp_lg_u32 {sLV}, {late}'); E('s_cbranch_scc1 L_nosig')
        E(f's_cmp_lg_u32 {sW}, 0'); E('s_cbranch_scc1 L_nosig')
        E(f's_sub_u32 {sT2}, s2, {8*late}'); E(f's_lshl_b32 {sT2}, {sT2}, 7'); E(f's_add_u32 {sT2}, {sT2}, {0x1400000 + 32}')
        E(f'v_mov_b32 v{TMP+4}, 1'); E(f'v_lshlrev_b32 v{TMP+5}, 6, v{VL16}')
        E(f'v_cmp_gt_u32 vcc, {16*late}, v{VL16}')
        E('s_and_saveexec_b64 s[54:55], vcc')
        E(f'buffer_store_dword v{TMP+4}, v{TMP+5}, {sWS}, {sT2} offen sc1')
        E('s_mov_b64 exec, s[54:55]')
        E('L_nosig:')
    def signal_last():
        E(f's_cmp_lg_u32 {sLOOP}, 3'); E('s_cbranch_scc1 L_nosig2')
        signal()
        E('L_nosig2:')
    if c.sig_at: vi[c.sig_at]['fill'].append(signal_last)
    vi[24]['fill'].append(rdchk)
    g.stream((ki + vi) if c.chain_kv else vi)
    g.flush_dma()
    st(3)
    o_finalize()
    E(f's_cmp_eq_u32 {sLOOP}, 3')
    E('s_cbranch_scc1 L_Olast')
    saved = (list(g.vm), list(g.lg), dict(g.slot_last_read), sid[0], g.tnext)
    oi = o_ops(seq, 16, (lambda: g.lg_drain()), o_load_frags)
    oi[0]['need'] = lambda: g.lg_wait(g.o_frag_last)
    g.stream(oi)
    g.flush_dma(); g.lg_drain()
    st(4)
    assert g.vm[-4*LA:] == [('Q', i, False) for i in range(LA) for _ in range(4)], g.vm
    E('L_Q:')
    st(1)
    g.stream(q_ops(seq, 25))
    g.flush_dma(); g.lg_drain()
    assert g.vm[-4*LA:] == [('K', i, True) for i in range(LA) for _ in range(4)], g.vm
    if not c.chain_kv:
        E('s_nop 7')
        for t in q_finalize(): E(t)
    E(f's_mov_b32 {sKV}, {sKVN}')
    E(f's_add_u32 {sKVN}, {sKVN}, 131072')
    E(f's_add_u32 {sWQO}, {sWQO}, 256')
    E(f's_cmp_lg_u32 {sFIRST}, 0')
    E('s_cbranch_scc1 L_first_done')
    E(f's_add_u32 {sWOO}, {sWOO}, {128*1152}')
    E(f's_add_u32 {sLOOP}, {sLOOP}, 1')
    if c.stamps:
        E(f's_cmp_eq_u32 {sLOOP}, 3'); E('s_cbranch_scc0 L_ns3'); E('s_memrealtime s[64:65]'); E('L_ns3:')
        if c.istamps:
            for t in range(1, 4):
                E(f's_cmp_eq_u32 {sLOOP}, {t}'); E(f's_cbranch_scc0 L_is{t}'); E(f's_memrealtime s[{72+2*t}:{73+2*t}]'); E(f'L_is{t}:')
    E('s_branch L_K')
    E('L_first_done:')
    E(f's_mov_b32 {sFIRST}, 0')
    E(f's_cmp_lg_u32 {sW}, 0'); E('s_cbranch_scc1 L_noid')
    E(f's_lshl_b32 {sT2}, {sB}, 3'); E(f's_add_u32 {sT2}, {sT2}, 4')
    E(f'v_mov_b32 v{TMP}, 1'); E(f'v_mov_b32 v{TMP+1}, 0')
    E(f'v_cmp_eq_u32 vcc, 0, v{VL16}')
    E('s_and_saveexec_b64 s[54:55], vcc')
    E(f'buffer_atomic_add v{TMP}, v{TMP+1}, {sDBG}, {sT2} offen sc1')
    E('s_mov_b64 exec, s[54:55]')
    E('L_noid:')
    if c.pf_late: g.pf_duty()
    if c.stamps: E('s_memrealtime s[62:63]')
    if c.istamps: E('s_memrealtime s[72:73]')
    E('s_branch L_K')
    def preg(j, h):
        k = 2 * j + h
        return 64 + 4 * k if k < 14 else 128 + 4 * (k - 14)
    def conv(j, h):
        t = 120; L_ = []
        for k in range(2):
            for i in range(4): L_.append(f'v_accvgpr_read_b32 v{t + 4*k + i}, a{AOUT + 4*(4*j + 2*h + k) + i}')
        d = preg(j, h)
        for i in range(4): L_.append(f'v_cvt_pk_bf16_f32 v{d+i}, v{t+2*i}, v{t+2*i+1}')
        return L_
    def mk_store(j, h):
        E(f's_add_u32 {sT2}, {sPB}, {(2*j+h)*4096}')
        E(f'buffer_store_dwordx4 {vr(preg(j,h),4)}, v{VPART}, {sWS}, {sT2} offen {c.pstflags}')
    E('L_Olast:')
    late = 1
    if not c.sig_at: signal()
    g.vm, g.lg, g.slot_last_read, sid[0], g.tnext = list(saved[0]), list(saved[1]), dict(saved[2]), saved[3], saved[4]
    g.pending = []
    ol = o_ops(seq[:25], 16, (lambda: g.lg_drain()), o_load_frags)
    ol[0]['need'] = lambda: g.lg_wait(g.o_frag_last)
    for j in range(8):
        distribute(ol, conv(j, 0) + conv(j, 1), 16 * (j + 1) + 2, 16 * (j + 1) + 15)
        if c.inline_b:
            def stb(j=j):
                E(f's_cmp_lg_u32 {sLV}, {late}'); E(f's_cbranch_scc1 L_sb{j}')
                mk_store(j, 0); mk_store(j, 1)
                E(f'L_sb{j}:')
            ol[16 * (j + 1) + 15]['fill'].append(stb)
    g.stream(ol)
    g.flush_dma(); g.lg_drain()
    st(4)
    E('s_nop 7')
    for t in conv(8, 0) + conv(8, 1): E(t)
    E(f's_cmp_eq_u32 {sLV}, {late}'); E('s_cbranch_scc1 L_nogate')
    E(f's_cmp_lg_u32 {sW}, 0'); E('s_cbranch_scc1 L_gate_ok')
    E(f's_lshl_b32 {sT0}, s2, 7'); E(f's_add_u32 {sT0}, {sT0}, {0x1400000 + 32}')
    E(f'v_mov_b32 v{TMP+5}, 0'); E(f's_mov_b32 {sT1}, 0')
    E('L_gate:')
    E(f'buffer_load_dword v{TMP+4}, v{TMP+5}, {sWS}, {sT0} offen sc1')
    E('s_waitcnt vmcnt(0)')
    E(f'v_readfirstlane_b32 {sT3}, v{TMP+4}')
    E(f's_cmp_eq_u32 {sT3}, 1'); E('s_cbranch_scc1 L_gate_ok')
    E('s_sleep 2')
    E(f's_add_u32 {sT1}, {sT1}, 1'); E(f's_cmp_lt_u32 {sT1}, 48'); E('s_cbranch_scc1 L_gate')
    E('L_gate_ok:')
    E('s_barrier')
    E('L_nogate:')
    if c.inline_b:
        mk_store(8, 0); mk_store(8, 1)
        E(f's_cmp_eq_u32 {sLV}, {late}'); E('s_cbranch_scc1 L_stored')
        for j in range(8):
            for h in range(2): mk_store(j, h)
        E('L_stored:')
    else:
        for j in range(9):
            for h in range(2): mk_store(j, h)
    return g, E

def reduce_code(E, c):
    E(f's_mul_i32 {sT0}, {sJ}, 9')
    E(f's_add_u32 {sT0}, {sT0}, {sW}')
    E(f's_lshl_b32 {sT1}, {sB}, 3')
    E(f's_mul_i32 {sT1}, {sT1}, {72*1024}')
    fl = '' if c.two_kernel else 'sc1'
    def load_piece(k):
        E(f's_add_u32 {sT2}, {sT0}, {4*k}')
        E(f's_lshl_b32 {sT2}, {sT2}, 10')
        E(f's_add_u32 {sT2}, {sT2}, {sT1}')
        for src in range(8):
            E(f'buffer_load_dwordx4 {vr(32*k + 4*src, 4)}, v{VL16}, {sWS}, {sT2} offen {fl}')
            if src < 7: E(f's_add_u32 {sT2}, {sT2}, {72*1024}')
    def sum_store(k):
        b = 32 * k
        if c.dot_reduce:
            for i in range(8): E(f'v_mov_b32 v{100+i}, 0')
            for src in range(8):
                for d in range(4):
                    E(f'v_dot2c_f32_bf16 v{100+2*d}, v{b+4*src+d}, v112')
                    E(f'v_dot2c_f32_bf16 v{101+2*d}, v{b+4*src+d}, v113')
            E('s_nop 2')
        else:
            for d in range(4):
                E(f'v_lshlrev_b32 v{100+2*d}, 16, v{b+d}')
                E(f'v_and_b32 v{101+2*d}, 0xffff0000, v{b+d}')
            for src in range(1, 8):
                for d in range(4):
                    E(f'v_lshlrev_b32 v{108+2*d}, 16, v{b+4*src+d}')
                    E(f'v_and_b32 v{109+2*d}, 0xffff0000, v{b+4*src+d}')
                for i in range(8): E(f'v_add_f32 v{100+i}, v{100+i}, v{108+i}')
        for d in range(4): E(f'v_cvt_pk_bf16_f32 v{116+4*k+d}, v{100+2*d}, v{101+2*d}')
        E(f's_add_u32 {sT2}, {sT0}, {4*k}')
        E(f's_lshr_b32 {sT3}, {sT2}, 3')
        E(f's_lshl_b32 {sT3}, {sT3}, 2')
        E(f's_and_b32 s56, {sT2}, 3')
        E(f's_add_u32 {sT3}, {sT3}, s56')
        E(f's_lshl_b32 {sT3}, {sT3}, 5')
        E(f's_lshr_b32 s56, {sT2}, 2')
        E(f's_and_b32 s56, s56, 1')
        E(f's_lshl_b32 s56, s56, 5')
        E(f's_lshl_b32 s57, {sB}, 6')
        E(f's_add_u32 s56, s56, s57')
        E(f's_mul_i32 s56, s56, 1152')
        E(f's_add_u32 s56, s56, {sT3}')
        E(f'buffer_store_dwordx2 {vr(116+4*k,2)}, v{VOUT}, {sOUT}, s56 offen {c.outflags}')
        E(f's_add_u32 s56, s56, {16*1152}')
        E(f'buffer_store_dwordx2 {vr(118+4*k,2)}, v{VOUT}, {sOUT}, s56 offen {c.outflags}')
    E('v_mov_b32 v112, 0x00003f80'); E('v_mov_b32 v113, 0x3f800000')
    load_piece(0); load_piece(1)
    E(f's_cmp_lg_u32 {sW}, 0')
    E('s_cbranch_scc1 L_two')
    load_piece(2)
    E('L_two:')
    E('s_waitcnt vmcnt(8)')
    sum_store(0)
    E('s_waitcnt vmcnt(2)')
    sum_store(1)
    E(f's_cmp_lg_u32 {sW}, 0')
    E('s_cbranch_scc1 L_red_done')
    sum_store(2)
    E('L_red_done:')

def reduce_code2(E, c):
    E(f's_lshl_b32 {sT1}, {sB}, 3')
    E(f's_mul_i32 {sT1}, {sT1}, {72*1024}')
    E('v_mov_b32 v112, 0x00003f80'); E('v_mov_b32 v113, 0x3f800000')
    E(f'v_lshrrev_b32 v114, 4, v{VL16}')
    E('v_and_b32 v115, 15, v114')
    E('v_lshrrev_b32 v116, 4, v114')
    E('v_and_b32 v117, 1, v116')
    E('v_lshl_add_u32 v115, v117, 4, v115')
    E('v_lshrrev_b32 v116, 1, v116')
    E(f's_lshl_b32 {sT2}, {sW}, 1')
    E(f'v_add_u32 v116, {sT2}, v116')
    E('v_and_b32 v117, 7, v115')
    E('v_xor_b32 v116, v116, v117')
    E('v_lshlrev_b32 v116, 4, v116')
    E('v_lshl_add_u32 v118, v115, 7, v116')
    E('v_lshrrev_b32 v115, 3, v114')
    E(f's_lshl_b32 {sT2}, {sW}, 3')
    E(f'v_add_u32 v115, {sT2}, v115')
    E('v_and_b32 v116, 7, v114')
    E('v_and_b32 v117, 7, v115')
    E('v_xor_b32 v117, v117, v116')
    E('v_lshlrev_b32 v117, 4, v117')
    E('v_lshl_add_u32 v119, v115, 7, v117')
    E('v_mul_u32_u24 v115, 1152, v115')
    E('v_lshl_add_u32 v120, v116, 4, v115')
    def grp(k):
        if k < 2: E(f's_add_u32 {sT0}, {sJ}, {8*k}')
        else: E(f's_add_u32 {sT0}, {sJ}, 16')
    def load_piece(k):
        grp(k)
        E(f's_lshl_b32 {sT2}, {sT0}, 2'); E(f's_add_u32 {sT2}, {sT2}, {sW}')
        E(f's_lshl_b32 {sT2}, {sT2}, 10')
        E(f's_add_u32 {sT2}, {sT2}, {sT1}')
        for src in range(8):
            E(f'buffer_load_dwordx4 {vr(32*k + 4*src, 4)}, v{VL16}, {sWS}, {sT2} offen {c.pldflags}')
            if src < 7: E(f's_add_u32 {sT2}, {sT2}, {72*1024}')
    def sum_piece(k):
        b = 32 * k; r = 124 + 0
        for i in range(8): E(f'v_mov_b32 v{100+i}, 0')
        for src in range(8):
            for d in range(4):
                E(f'v_dot2c_f32_bf16 v{100+2*d}, v{b+4*src+d}, v112')
                E(f'v_dot2c_f32_bf16 v{101+2*d}, v{b+4*src+d}, v113')
        E('s_nop 2')
        for d in range(4): E(f'v_cvt_pk_bf16_f32 v{r+d}, v{100+2*d}, v{101+2*d}')
        E(f'v_permlane16_swap_b32 v{r}, v{r+2}')
        E(f'v_permlane16_swap_b32 v{r+1}, v{r+3}')
        E(f'ds_write_b128 v118, {vr(r,4)} offset:{k*4096}')
    def store_rows(k):
        grp(k)
        E(f's_and_b32 {sT3}, {sT0}, 1'); E(f's_lshl_b32 {sT3}, {sT3}, 5')
        E(f's_lshl_b32 s57, {sB}, 6'); E(f's_add_u32 {sT3}, {sT3}, s57'); E(f's_mul_i32 {sT3}, {sT3}, 1152')
        E(f's_lshr_b32 s56, {sT0}, 1'); E(f's_lshl_b32 s56, s56, 7'); E(f's_add_u32 {sT3}, {sT3}, s56')
        E(f'buffer_store_dwordx4 {vr(4*k,4)}, v120, {sOUT}, {sT3} offen {c.outflags}'.rstrip())
    load_piece(0); load_piece(1)
    E(f's_cmp_ge_u32 {sJ}, 2'); E('s_cbranch_scc1 L_r2a')
    load_piece(2)
    E('L_r2a:')
    E('s_waitcnt vmcnt(8)')
    sum_piece(0)
    E('s_waitcnt vmcnt(0)')
    sum_piece(1)
    E(f's_cmp_ge_u32 {sJ}, 2'); E('s_cbranch_scc1 L_r2b')
    sum_piece(2)
    E('L_r2b:')
    E('s_waitcnt lgkmcnt(0)')
    E('s_barrier')
    for k in range(3): E(f'ds_read_b128 {vr(4*k,4)}, v119 offset:{k*4096}')
    E('s_waitcnt lgkmcnt(0)')
    store_rows(0); store_rows(1)
    E(f's_cmp_ge_u32 {sJ}, 2'); E('s_cbranch_scc1 L_r2c')
    store_rows(2)
    E('L_r2c:')

def finish(g, E, c):
    E('s_waitcnt vmcnt(0)')
    if c.stamps: E('s_memrealtime s[66:67]')
    if not c.two_kernel and c.xp_notail != 2:
        E('s_barrier')
        E(f's_lshl_b32 {sT0}, {sB}, 3')
        E(f's_cmp_lg_u32 {sW}, 0')
        E('s_cbranch_scc1 ' + ('L_dopoll' if c.allpoll else 'L_wait_done'))
        E(f'v_mov_b32 v{TMP}, 1')
        E(f'v_mov_b32 v{TMP+1}, 0')
        if c.dflags:
            E(f's_add_u32 {sT0}, {sT0}, 4')
            E(f's_mov_b32 {sT1}, 0')
            E('L_chk:')
            E(f'v_readfirstlane_b32 {sT2}, v{VCHK}')
            E(f's_cmp_ge_u32 {sT2}, 8'); E('s_cbranch_scc1 L_chk_ok')
            E(f'buffer_load_dword v{VCHK}, v{TMP+1}, {sDBG}, {sT0} offen sc1')
            E('s_waitcnt vmcnt(0)')
            E(f's_add_u32 {sT1}, {sT1}, 1'); E(f's_cmp_lt_u32 {sT1}, 0x40000'); E('s_cbranch_scc1 L_chk')
            E('L_chk_ok:')
            E(f's_lshl_b32 {sT3}, {sB}, 10'); E(f's_lshl_b32 {sT2}, {sJ}, 2'); E(f's_add_u32 {sT3}, {sT3}, {sT2}'); E(f's_add_u32 {sT3}, {sT3}, 0x1400000')
            E(f'v_lshlrev_b32 v{TMP+1}, 3, v{VL16}')
            E(f'v_cmp_gt_u32 vcc, 128, v{VL16}')
            E('s_and_saveexec_b64 s[54:55], vcc')
            E(f'buffer_store_dword v{TMP}, v{TMP+1}, {sWS}, {sT3} offen sc1')
            E('s_mov_b64 exec, s[54:55]')
            E('L_dopoll:')
            E(f's_lshl_b32 {sT0}, s2, 7'); E(f's_add_u32 {sT0}, {sT0}, 0x1400000')
            E(f'v_lshrrev_b32 v{TMP+1}, 2, v{VL16}')
            E(f'v_and_b32 v{TMP+1}, 31, v{TMP+1}')
            E(f's_mov_b32 {sT1}, 0')
            E('L_poll:')
            E(f'buffer_load_dword v{TMP+2}, v{TMP+1}, {sWS}, {sT0} offen sc1')
            E('s_waitcnt vmcnt(0)')
            E(f'v_cmp_eq_u32 vcc, 1, v{TMP+2}')
            E(f's_cmp_eq_u64 vcc, -1')
            E('s_cbranch_scc1 L_wait_done')
            E(f's_sleep 1')
            E(f's_add_u32 {sT1}, {sT1}, 1')
            E(f's_cmp_lt_u32 {sT1}, 0x40000')
            E('s_cbranch_scc1 L_poll')
        elif c.golines:
            E(f'v_cmp_eq_u32 vcc, 0, v{VL16}')
            E('s_and_saveexec_b64 s[54:55], vcc')
            E(f'buffer_atomic_add v{TMP}, v{TMP+1}, {sDBG}, {sT0} offen sc0 sc1')
            E('s_waitcnt vmcnt(0)')
            E('s_mov_b64 exec, s[54:55]')
            E(f'v_readfirstlane_b32 {sT2}, v{TMP}')
            E(f's_and_b32 {sT2}, {sT2}, 7')
            E(f's_cmp_eq_u32 {sT2}, 7')
            E('s_cbranch_scc0 L_notlast')
            E(f's_lshl_b32 {sT3}, {sB}, 10'); E(f's_add_u32 {sT3}, {sT3}, 0x1400000')
            E(f'v_lshlrev_b32 v{TMP+1}, 3, v{VL16}')
            E(f'v_mov_b32 v{TMP}, 1')
            E(f'v_cmp_gt_u32 vcc, 128, v{VL16}')
            E('s_and_saveexec_b64 s[54:55], vcc')
            E(f'buffer_store_dword v{TMP}, v{TMP+1}, {sWS}, {sT3} offen sc1')
            E('s_mov_b64 exec, s[54:55]')
            E('s_branch L_wait_done')
            E('L_notlast:')
            E(f's_lshl_b32 {sT0}, s2, 7'); E(f's_add_u32 {sT0}, {sT0}, 0x1400000')
            E(f'v_mov_b32 v{TMP+1}, 0')
            E(f's_mov_b32 {sT1}, 0')
            E('L_poll:')
            E(f'buffer_load_dword v{TMP+2}, v{TMP+1}, {sWS}, {sT0} offen sc1')
            E('s_waitcnt vmcnt(0)')
            E(f'v_readfirstlane_b32 {sT2}, v{TMP+2}')
            E(f's_cmp_eq_u32 {sT2}, 1')
            E('s_cbranch_scc1 L_wait_done')
            E(f's_sleep 2')
            E(f's_add_u32 {sT1}, {sT1}, 1')
            E(f's_cmp_lt_u32 {sT1}, 0x40000')
            E('s_cbranch_scc1 L_poll')
        else:
            E(f'v_cmp_eq_u32 vcc, 0, v{VL16}')
            E('s_and_saveexec_b64 s[54:55], vcc')
            E(f'buffer_atomic_add v{TMP}, v{TMP+1}, {sDBG}, {sT0} offen sc1')
            E('s_mov_b64 exec, s[54:55]')
            E(f's_mov_b32 {sT1}, 0')
            E('L_poll:')
            E(f'buffer_load_dword v{TMP+2}, v{TMP+1}, {sDBG}, {sT0} offen sc1')
            E('s_waitcnt vmcnt(0)')
            E(f'v_readfirstlane_b32 {sT2}, v{TMP+2}')
            E(f's_cmp_ge_u32 {sT2}, 8')
            E('s_cbranch_scc1 L_wait_done')
            E(f's_sleep {min(c.poll_sleep, 8)}')
            E(f's_add_u32 {sT1}, {sT1}, 1')
            E(f's_cmp_lt_u32 {sT1}, 0x40000')
            E('s_cbranch_scc1 L_poll')
        E('L_wait_done:')
        if not c.allpoll: E('s_barrier')
        if c.stamps: E('s_memrealtime s[68:69]')
        if not c.xp_notail: (reduce_code2 if c.fullline else reduce_code)(E, c)
    if c.stamps:
        E('L_stamps:')
        E('s_waitcnt vmcnt(0)')
        E('s_memrealtime s[70:71]')
        E('s_waitcnt lgkmcnt(0)')
        for i in range(12): E(f'v_mov_b32 v{i}, s{60+i}')
        for i in range(4): E(f'v_mov_b32 v{12+i}, s{72+2*i}')
        E('v_mov_b32 v16, s80'); E('v_mov_b32 v17, s82'); E('v_mov_b32 v18, s84')
        E(f's_lshl_b32 {sT0}, s2, 2'); E(f's_add_u32 {sT0}, {sT0}, {sW}'); E(f's_lshl_b32 {sT0}, {sT0}, 7'); E(f's_add_u32 {sT0}, {sT0}, 0x10000000')
        if c.bstamps:
            E(f's_lshl_b32 {sT1}, s2, 2'); E(f's_add_u32 {sT1}, {sT1}, {sW}'); E(f's_lshl_b32 {sT1}, {sT1}, 9'); E(f's_add_u32 {sT1}, {sT1}, 0x11000000')
            E(f'v_lshrrev_b32 v21, 2, v{VL16}')
            E(f'buffer_store_dword v246, v21, {sWS}, {sT1} offen')
            E(f'buffer_store_dword v247, v21, {sWS}, {sT1} offen offset:256')
        E(f'v_cmp_eq_u32 vcc, 0, v{VL16}')
        E('s_and_saveexec_b64 s[54:55], vcc')
        E('v_mov_b32 v20, 0')
        for i in range(4): E(f'buffer_store_dwordx4 {vr(4*i,4)}, v20, {sWS}, {sT0} offen offset:{16*i}')
        E(f'buffer_store_dwordx3 v[16:18], v20, {sWS}, {sT0} offen offset:64')
    if c.dbgspan:
        E('s_waitcnt vmcnt(0)')
        E('s_memrealtime s[70:71]')
        E('s_waitcnt lgkmcnt(0)')
        E(f's_cmp_lg_u32 {sW}, 0'); E('s_cbranch_scc1 L_done')
        E('s_not_b32 s60, s60')
        E('v_mov_b32 v1, s60'); E('v_mov_b32 v2, s70'); E('v_mov_b32 v3, 0')
        E(f'v_cmp_eq_u32 vcc, 0, v{VL16}')
        E('s_and_saveexec_b64 s[54:55], vcc')
        E(f'buffer_atomic_umax v1, v3, {sDBG}, 0 offen offset:0 sc1')
        E(f'buffer_atomic_umax v2, v3, {sDBG}, 0 offen offset:8 sc1')
    E('L_done:')
    E('s_endpgm')

DESC = '''.section .rodata,"a"
.p2align 6
.amdhsa_kernel {name}
  .amdhsa_next_free_vgpr {vg}
  .amdhsa_next_free_sgpr 100
  .amdhsa_accum_offset {acc}
  .amdhsa_group_segment_fixed_size 0
  .amdhsa_kernarg_size 64
  .amdhsa_user_sgpr_count 2
  .amdhsa_user_sgpr_kernarg_segment_ptr 1
  .amdhsa_system_sgpr_workgroup_id_x 1
.end_amdhsa_kernel
'''
def gen(cfg=None):
    c = cfg or Cfg()
    g, E = build(c)
    finish(g, E, c)
    body = g.a.finalize()
    head = f'''; Fused MHA block for gfx950: q-projection + attention over the cached K/V + out-projection, one launch.
; Everything streamed goes through a 9-slot x 16 KB LDS ring filled by LDS-DMA (buffer_load ... lds), five slots ahead, one
; barrier per slot; bank-conflict swizzles are applied on the source addresses.  Per head:
; stores until their partner has received its last V tile (writes slow concurrent HBM reads down).
; @launch grid=(256,1,1) block=(256,1,1) lds=163840
.amdgcn_target "amdgcn-amd-amdhsa--gfx950"
.text
.globl {KNAME}
.p2align 8
.type {KNAME},@function
{KNAME}:
'''
    return head + body + DESC.format(name=KNAME, vg=512, acc=256), g

if __name__ == '__main__':
    s, g = gen()
    out = sys.argv[1] if len(sys.argv) > 1 else 'standalone__mha_block_cached__near_ridge.s'
    open(out, 'w').write(s)
    print('instructions', len(g.a.ins), 'nops inserted', g.a.nnop, 'bytes', len(s))
```
